```python
import torch

def _softmax(x, axis=-1):
    return torch.softmax(x, dim=axis)
def _gelu(x):
    return torch.nn.functional.gelu(x, approximate="tanh")
def _silu(x):
    return torch.nn.functional.silu(x)
def _sigmoid(x):
    return torch.sigmoid(x)
def _layernorm(x, axis=-1, eps=1e-5):
    m = x.mean(dim=axis, keepdim=True)
    v = x.var(dim=axis, keepdim=True, unbiased=False)
    return (x - m) / torch.sqrt(v + eps)
def _scatter_add(tgt, idx, src, axis=0):
    return tgt.clone().index_add_(axis, idx, src)
def _segment_sum(src, seg, n):
    out = torch.zeros((n,) + src.shape[1:], dtype=src.dtype)
    return out.index_add_(0, seg, src)
def _pad(x, pw):
    flat = tuple(v for pair in reversed(pw) for v in pair)
    return torch.nn.functional.pad(x, flat)

kernel_name = 'sequential_preLN__softmax_full_mha__geglu_ffn__prompt'

def setup_inputs():

    _w = (lambda a: (lambda t: t.to(torch.bfloat16) if t.is_floating_point() else t)(torch.as_tensor(a)))
    def _A_setup():
        B, S, D = 1, 2048, 512
        return {
            "x": _w((lambda *s: torch.randn(*s, dtype=torch.bfloat16) * 0.05)(B, S, D)),
            "wqkv": _w((lambda *s: torch.randn(*s, dtype=torch.bfloat16) * 0.05)(D, 3 * D)),
            "wo": _w((lambda *s: torch.randn(*s, dtype=torch.bfloat16) * 0.05)(D, D)),
        }
    _A_in = _A_setup()

    def _B_setup():
        B, S, D, F = 1, 2048, 512, 1376
        return {
            "x": _w((lambda *s: torch.randn(*s, dtype=torch.bfloat16) * 0.05)(B, S, D)),
            "w_gate": _w((lambda *s: torch.randn(*s, dtype=torch.bfloat16) * 0.05)(D, F)),
            "w_up": _w((lambda *s: torch.randn(*s, dtype=torch.bfloat16) * 0.05)(D, F)),
            "w_down": _w((lambda *s: torch.randn(*s, dtype=torch.bfloat16) * 0.05)(F, D)),
        }
    _B_in = _B_setup()

    return {
        "A_x": _A_in["x"],
        "A_wqkv": _A_in["wqkv"],
        "A_wo": _A_in["wo"],
        "B_x": _B_in["x"],
        "B_w_gate": _B_in["w_gate"],
        "B_w_up": _B_in["w_up"],
        "B_w_down": _B_in["w_down"],
    }

def reference(A_x, A_wqkv, A_wo, B_x, B_w_gate, B_w_up, B_w_down):
    def _A_ref(x, wqkv, wo):
        B, S, D = x.shape
        H = 32; Dh = D // H
        qkv = (lambda x, *d: x.permute(*d))((x @ wqkv).reshape(B, S, 3, H, Dh), 2, 0, 3, 1, 4)
        q, k, v = qkv[0], qkv[1], qkv[2]
        scale = Dh ** -0.5
        scores = torch.einsum("bhqd,bhkd->bhqk", q, k) * scale
        p = _softmax(scores, axis=-1)
        o = torch.einsum("bhqk,bhkd->bhqd", p, v)
        return (lambda x, *d: x.permute(*d))(o, 0, 2, 1, 3).reshape(B, S, D) @ wo

    def _B_ref(x, w_gate, w_up, w_down):
        return (_gelu(x @ w_gate) * (x @ w_up)) @ w_down

    x = A_x
    h = x + _A_ref(_layernorm(x, axis=-1), A_wqkv, A_wo)
    h2 = h + _B_ref(_layernorm(h, axis=-1), B_w_gate, B_w_up, B_w_down)
    return h2
```

```python
class Asm:
    def __init__(self):
        self.lines = []
        self.uid = 0

    def __call__(self, s):
        for l in s.strip("\n").split("\n"):
            l = l.strip()
            if l:
                self.lines.append("    " + l)

    def label(self, name):
        self.lines.append(name + ":")

    def raw(self, s):
        self.lines.append(s)

    def newlabel(self, base):
        self.uid += 1
        return f"L_{base}_{self.uid}"

    def text(self):
        return "\n".join(self.lines) + "\n"


class Regs:
    def __init__(self, start, limit, kind):
        self.n = start
        self.limit = limit
        self.kind = kind
        self.hi = start

    def alloc(self, cnt=1, align=1):
        self.n = (self.n + align - 1) // align * align
        r = self.n
        self.n += cnt
        assert self.n <= self.limit, f"out of {self.kind} regs"
        self.hi = max(self.hi, self.n)
        return r

    def mark(self):
        return self.n

    def release(self, m):
        self.n = m


def v(r, n=1):
    return f"v{r}" if n == 1 else f"v[{r}:{r+n-1}]"


def s(r, n=1):
    return f"s{r}" if n == 1 else f"s[{r}:{r+n-1}]"


def kernel_desc(name, vgpr, sgpr=96):
    vg = (vgpr + 7) // 8 * 8
    acc = (vg + 3) // 4 * 4
    return f""".p2align 6
.amdhsa_kernel {name}
  .amdhsa_next_free_vgpr {vg}
  .amdhsa_next_free_sgpr {sgpr}
  .amdhsa_accum_offset {acc}
  .amdhsa_group_segment_fixed_size 0
  .amdhsa_kernarg_size 80
  .amdhsa_user_sgpr_count 2
  .amdhsa_user_sgpr_kernarg_segment_ptr 1
  .amdhsa_system_sgpr_workgroup_id_x 1
.end_amdhsa_kernel
"""


def f32bits(x):
    import struct
    return struct.unpack("<I", struct.pack("<f", x))[0]


def hexf(x):
    return "0x%08x" % f32bits(x)
```

```python
from asmlib import *
import math

QF = 0
KF = 2 << 20
VF = 4 << 20
OF = 6 << 20
HF = 8 << 20
GF = 10 << 20
WS_SIZE = 16 << 20

EPS = 1e-5
QSCALE = 0.25 * math.log2(math.e)


def srd(a, dst, ptr, nbytes):
    a(f"""
    s_mov_b32 s{dst}, s{ptr}
    s_mov_b32 s{dst+1}, s{ptr+1}
    s_mov_b32 s{dst+2}, {hex(nbytes)}
    s_mov_b32 s{dst+3}, 0x00020000
    """)


def half_sum(a, r, t):
    a(f"""
    v_mov_b32 v{t}, v{r}
    s_nop 1
    v_permlane32_swap_b32 v{r}, v{t}
    s_nop 1
    v_add_f32 v{r}, v{r}, v{t}
    """)


def gen_k1(a):
    name = "qkv_kernel"
    V = Regs(1, 256, "v")
    a.raw(f".globl {name}\n.p2align 8\n.type {name},@function")
    a.label(name)
    SX, SW, SWS = 12, 16, 20
    sWave, sRb, sCg, sTt, sCh = 24, 25, 26, 27, 28
    sXo, sWo, sDm, sC, sRd, sOne, sA, sB, sT0, sT1 = 29, 30, 31, 32, 33, 34, 35, 36, 37, 38
    a(f"""
    s_cmp_ge_u32 s2, 256
    s_cbranch_scc1 L_k1_end
    s_load_dwordx4 s[4:7], s[0:1], 0
    s_load_dwordx2 s[8:9], s[0:1], 72
    """)
    lane = V.alloc(); t0 = V.alloc(); t1 = V.alloc(); t2 = V.alloc()
    xd0 = V.alloc(); xd1 = V.alloc(); wd0 = V.alloc(); wd1 = V.alloc()
    xa = [V.alloc() for _ in range(4)]
    wa = V.alloc()
    cx = [V.alloc() for _ in range(4)]
    cw = V.alloc()
    a(f"""
    v_lshrrev_b32 v{t0}, 6, v0
    v_and_b32 v{lane}, 63, v0
    s_and_b32 s{sT0}, s2, 7
    v_readfirstlane_b32 s{sWave}, v{t0}
    s_lshr_b32 s{sT1}, s2, 3
    s_and_b32 s{sRb}, s{sT0}, 3
    s_lshl_b32 s{sRb}, s{sRb}, 3
    s_and_b32 s{sCg}, s{sT1}, 7
    s_add_u32 s{sRb}, s{sRb}, s{sCg}
    s_lshr_b32 s{sCg}, s{sT0}, 2
    s_lshl_b32 s{sCg}, s{sCg}, 2
    s_lshr_b32 s{sT1}, s{sT1}, 3
    s_add_u32 s{sCg}, s{sCg}, s{sT1}
    s_and_b32 s{sTt}, s{sWave}, 1
    s_lshr_b32 s{sCh}, s{sWave}, 1
    s_lshl_b32 s{sXo}, s{sRb}, 16
    s_lshl_b32 s{sWo}, s{sCg}, 7
    s_mov_b32 s{sDm}, 0
    s_lshl_b32 s{sA}, s{sWave}, 11
    s_mul_i32 s{sB}, s{sWave}, 6144
    s_add_u32 s{sB}, s{sB}, 8192
    s_lshl_b32 s{sT0}, s{sWave}, 4
    """)
    a(f"""
    v_lshrrev_b32 v{t0}, 3, v{lane}
    v_add_u32 v{t0}, s{sT0}, v{t0}
    v_lshlrev_b32 v{t0}, 10, v{t0}
    v_and_b32 v{t1}, 7, v{lane}
    v_lshrrev_b32 v{t2}, 4, v{lane}
    v_xor_b32 v{t1}, v{t1}, v{t2}
    v_lshl_add_u32 v{xd0}, v{t1}, 4, v{t0}
    v_xor_b32 v{xd1}, 64, v{xd0}
    v_add_u32 v{xd1}, 7168, v{xd1}
    v_lshrrev_b32 v{t0}, 2, v{lane}
    v_add_u32 v{t0}, s{sT0}, v{t0}
    v_mul_u32_u24 v{t0}, 3072, v{t0}
    v_and_b32 v{t1}, 3, v{lane}
    v_lshl_add_u32 v{wd0}, v{t1}, 4, v{t0}
    v_add_u32 v{wd1}, 64, v{wd0}
    s_waitcnt lgkmcnt(0)
    """)
    srd(a, SX, 4, 2048 * 512 * 2)
    srd(a, SW, 6, 512 * 1536 * 2)
    srd(a, SWS, 8, WS_SIZE)

    def dma_chunk():
        a(f"""
        s_add_u32 m0, s{sDm}, s{sA}
        s_add_u32 s{sT1}, s{sDm}, s{sB}
        buffer_load_dwordx4 v{xd0}, s[{SX}:{SX+3}], s{sXo} offen lds
        buffer_load_dwordx4 v{xd1}, s[{SX}:{SX+3}], s{sXo} offen offset:1024 lds
        s_mov_b32 m0, s{sT1}
        s_add_u32 s{sXo}, s{sXo}, 128
        buffer_load_dwordx4 v{wd0}, s[{SW}:{SW+3}], s{sWo} offen lds
        buffer_load_dwordx4 v{wd0}, s[{SW}:{SW+3}], s{sWo} offen offset:1024 lds
        buffer_load_dwordx4 v{wd0}, s[{SW}:{SW+3}], s{sWo} offen offset:2048 lds
        s_add_u32 m0, s{sT1}, 3072
        s_add_u32 s{sDm}, s{sDm}, 0x8000
        buffer_load_dwordx4 v{wd1}, s[{SW}:{SW+3}], s{sWo} offen lds
        buffer_load_dwordx4 v{wd1}, s[{SW}:{SW+3}], s{sWo} offen offset:1024 lds
        buffer_load_dwordx4 v{wd1}, s[{SW}:{SW+3}], s{sWo} offen offset:2048 lds
        s_and_b32 s{sDm}, s{sDm}, 0x1ffff
        s_add_u32 s{sWo}, s{sWo}, {64*3072}
        """)

    a(f"s_mov_b32 s{sC}, 0")
    a.label("L_k1_pre")
    dma_chunk()
    a(f"""
    s_add_u32 s{sC}, s{sC}, 1
    s_cmp_lt_u32 s{sC}, 4
    s_cbranch_scc1 L_k1_pre
    """)
    a(f"""
    v_and_b32 v{t0}, 31, v{lane}
    s_lshl_b32 s{sT0}, s{sTt}, 12
    v_lshrrev_b32 v{t1}, 1, v{t0}
    v_and_b32 v{t1}, 7, v{t1}
    v_lshrrev_b32 v{t2}, 5, v{lane}
    v_xor_b32 v{t1}, v{t1}, v{t2}
    v_lshlrev_b32 v{t0}, 7, v{t0}
    v_lshl_add_u32 v{t0}, v{t1}, 4, v{t0}
    v_add_u32 v{xa[0]}, s{sT0}, v{t0}
    v_xor_b32 v{xa[1]}, 32, v{xa[0]}
    v_xor_b32 v{xa[2]}, 64, v{xa[0]}
    v_xor_b32 v{xa[3]}, 96, v{xa[0]}
    s_mul_i32 s{sT0}, s{sCh}, 3072
    s_add_u32 s{sT0}, s{sT0}, 8192
    v_lshlrev_b32 v{t0}, 9, v{t2}
    v_bfe_u32 v{t1}, v{lane}, 2, 2
    v_lshl_add_u32 v{t0}, v{t1}, 6, v{t0}
    v_bfe_u32 v{t1}, v{lane}, 4, 1
    v_lshl_add_u32 v{t0}, v{t1}, 5, v{t0}
    v_and_b32 v{t1}, 3, v{lane}
    v_lshl_add_u32 v{t0}, v{t1}, 3, v{t0}
    v_add_u32 v{wa}, s{sT0}, v{t0}
    s_mov_b32 s{sOne}, 0x3f803f80
    """)
    acc = [V.alloc(16, 4) for _ in range(3)]
    fr = [V.alloc(16, 4) for _ in range(2)]
    st = [V.alloc() for _ in range(5)]
    for r in range(48):
        a(f"v_mov_b32 v{acc[0]+r}, 0")
    for r in st:
        a(f"v_mov_b32 v{r}, 0")
    for i in range(4):
        a(f"v_mov_b32 v{cx[i]}, v{xa[i]}")
    a(f"v_mov_b32 v{cw}, v{wa}")

    def reads(s4, f):
        a(f"ds_read_b128 {v(f,4)}, v{cx[s4]}")
        for seg in range(3):
            for jj in range(2):
                a(f"ds_read_b64_tr_b16 {v(f+4+4*seg+2*jj,2)}, v{cw} offset:{s4*6144+seg*1024+jj*256}")

    def compute(f):
        def dots(i):
            a(f"""
            v_dot2_f32_bf16 v{st[0]}, v{f+i}, s{sOne}, v{st[0]}
            v_dot2_f32_bf16 v{st[1]}, v{f+i}, v{f+i}, v{st[1]}
            v_dot2_f32_bf16 v{st[2]}, v{f+4+i}, s{sOne}, v{st[2]}
            v_dot2_f32_bf16 v{st[3]}, v{f+8+i}, s{sOne}, v{st[3]}
            v_dot2_f32_bf16 v{st[4]}, v{f+12+i}, s{sOne}, v{st[4]}
            """)
        a(f"v_mfma_f32_32x32x16_bf16 {v(acc[0],16)}, {v(f+4,4)}, {v(f,4)}, {v(acc[0],16)}")
        dots(0)
        a(f"v_mfma_f32_32x32x16_bf16 {v(acc[1],16)}, {v(f+8,4)}, {v(f,4)}, {v(acc[1],16)}")
        dots(1)
        dots(2)
        a(f"v_mfma_f32_32x32x16_bf16 {v(acc[2],16)}, {v(f,4)}, {v(f+12,4)}, {v(acc[2],16)}")
        dots(3)

    a(f"""
    s_mov_b32 s{sC}, 0
    s_mov_b32 s{sRd}, 0
    s_waitcnt vmcnt(24)
    s_barrier
    """)
    reads(0, fr[0])
    a.label("L_k1_loop")
    reads(1, fr[1])
    a("s_waitcnt lgkmcnt(7)")
    compute(fr[0])
    reads(2, fr[0])
    a("s_waitcnt lgkmcnt(7)")
    compute(fr[1])
    reads(3, fr[1])
    a("s_waitcnt lgkmcnt(7)")
    compute(fr[0])
    a(f"""
    s_add_u32 s{sRd}, s{sRd}, 0x8000
    s_and_b32 s{sRd}, s{sRd}, 0x1ffff
    s_cmp_ge_u32 s{sC}, 5
    s_cbranch_scc1 L_k1_tailwait
    s_waitcnt vmcnt(16) lgkmcnt(0)
    """)
    a.label("L_k1_back")
    for i in range(4):
        a(f"v_add_u32 v{cx[i]}, s{sRd}, v{xa[i]}")
    a(f"v_add_u32 v{cw}, s{sRd}, v{wa}")
    a(f"""
    s_barrier
    s_cmp_ge_u32 s{sC}, 4
    s_cbranch_scc1 L_k1_nodma
    """)
    dma_chunk()
    a.label("L_k1_nodma")
    reads(0, fr[0])
    compute(fr[1])
    a(f"""
    s_add_u32 s{sC}, s{sC}, 1
    s_cmp_lt_u32 s{sC}, 8
    s_cbranch_scc1 L_k1_loop
    """)
    a("s_waitcnt lgkmcnt(0)")
    tt_ = V.alloc()
    for r in st:
        half_sum(a, r, tt_)
    mean = V.alloc(); rstd = V.alloc(); nmr = V.alloc(); rq = V.alloc(2, 2); nm = V.alloc(2, 2); rk = V.alloc(2, 2); cv = V.alloc(2, 2)
    sad = V.alloc(); rad = V.alloc()
    a(f"""
    v_mul_f32 v{mean}, {hexf(1.0/512)}, v{st[0]}
    v_mul_f32 v{t0}, {hexf(1.0/512)}, v{st[1]}
    v_fma_f32 v{t0}, -v{mean}, v{mean}, v{t0}
    v_max_f32 v{t0}, 0, v{t0}
    v_add_f32 v{t0}, {hexf(EPS)}, v{t0}
    v_rsq_f32 v{rstd}, v{t0}
    s_lshl_b32 s{sT0}, s{sWave}, 9
    s_add_u32 s{sT0}, s{sT0}, 0x20000
    v_and_b32 v{t1}, 31, v{lane}
    v_lshl_add_u32 v{sad}, v{t1}, 2, s{sT0}
    v_lshrrev_b32 v{t2}, 5, v{lane}
    v_lshl_add_u32 v{rad}, v{t2}, 4, s{sT0}
    v_mul_f32 v{nmr}, v{mean}, v{rstd}
    v_sub_f32 v{nmr}, 0, v{nmr}
    v_sub_f32 v{nm}, 0, v{mean}
    v_mul_f32 v{rq}, {hexf(QSCALE)}, v{rstd}
    v_mov_b32 v{rk}, v{rstd}
    v_mov_b32 v{cv}, v{st[4]}
    ds_write_b32 v{sad}, v{st[2]}
    ds_write_b32 v{sad}, v{st[3]} offset:128
    ds_write_b32 v{sad}, v{rstd} offset:256
    ds_write_b32 v{sad}, v{nmr} offset:384
    s_waitcnt lgkmcnt(0)
    """)
    tr = [V.alloc(16, 4) for _ in range(4)]
    for k in range(4):
        for q in range(4):
            a(f"ds_read_b128 {v(tr[k]+4*q,4)}, v{rad} offset:{k*128+q*32}")
    l16 = V.alloc(); vv = V.alloc()
    a(f"""
    v_lshlrev_b32 v{l16}, 4, v{lane}
    v_bfe_u32 v{t0}, v{lane}, 4, 1
    v_lshlrev_b32 v{vv}, 16, v{t0}
    v_lshl_add_u32 v{vv}, v{t2}, 8, v{vv}
    v_and_b32 v{t0}, 3, v{lane}
    v_lshl_add_u32 v{vv}, v{t0}, 4, v{vv}
    v_bfe_u32 v{t0}, v{lane}, 2, 1
    v_lshl_add_u32 v{vv}, v{t0}, 7, v{vv}
    v_bfe_u32 v{t0}, v{lane}, 3, 1
    v_lshl_add_u32 v{vv}, v{t0}, 6, v{vv}
    s_lshl_b32 s{sT0}, s{sCg}, 2
    s_lshl_b32 s{sT1}, s{sCh}, 1
    s_add_u32 s{sT0}, s{sT0}, s{sT1}
    s_lshl_b32 s{sT0}, s{sT0}, 6
    s_lshl_b32 s{sT1}, s{sRb}, 1
    s_add_u32 s{sT0}, s{sT0}, s{sT1}
    s_add_u32 s{sT0}, s{sT0}, s{sTt}
    s_lshl_b32 s{sT0}, s{sT0}, 10
    """)
    out = fr[0]
    a("s_waitcnt lgkmcnt(12)")
    for idx, (ac, sc, base) in enumerate(((acc[0], rq, QF), (acc[1], rk, KF))):
        if idx == 1:
            a("s_waitcnt lgkmcnt(8)")
        for r in range(0, 16, 2):
            a(f"v_pk_fma_f32 {v(ac+r,2)}, {v(tr[idx]+r,2)}, {v(nm,2)}, {v(ac+r,2)} op_sel_hi:[1,0,1]")
        for r in range(0, 16, 2):
            a(f"v_pk_mul_f32 {v(ac+r,2)}, {v(ac+r,2)}, {v(sc,2)} op_sel_hi:[1,0]")
        o = out + 8 * idx
        for r in range(8):
            a(f"v_cvt_pk_bf16_f32 v{o+r}, v{ac+2*r}, v{ac+2*r+1}")
        a(f"""
        s_add_u32 s{sA}, s{sT0}, {hex(base)}
        s_add_u32 s{sB}, s{sT0}, {hex(base+65536)}
        buffer_store_dwordx4 {v(o,4)}, v{l16}, s[{SWS}:{SWS+3}], s{sA} offen
        buffer_store_dwordx4 {v(o+4,4)}, v{l16}, s[{SWS}:{SWS+3}], s{sB} offen
        """)
    a("s_waitcnt lgkmcnt(0)")
    ac = acc[2]
    for r in range(0, 16, 2):
        a(f"v_pk_mul_f32 {v(ac+r,2)}, {v(ac+r,2)}, {v(tr[2]+r,2)}")
    for r in range(0, 16, 2):
        a(f"v_pk_fma_f32 {v(ac+r,2)}, {v(tr[3]+r,2)}, {v(cv,2)}, {v(ac+r,2)} op_sel_hi:[1,0,1]")
    o = fr[1]
    for r in range(8):
        a(f"v_cvt_pk_bf16_f32 v{o+r}, v{ac+2*r}, v{ac+2*r+1}")
    a(f"""
    s_add_u32 s{sT1}, s{sT0}, {hex(VF)}
    s_nop 0
    buffer_store_dwordx4 {v(o,4)}, v{vv}, s[{SWS}:{SWS+3}], s{sT1} offen
    buffer_store_dwordx4 {v(o+4,4)}, v{vv}, s[{SWS}:{SWS+3}], s{sT1} offen offset:512
    """)
    a.label("L_k1_end")
    a("s_endpgm")
    a.label("L_k1_tailwait")
    a(f"""
    s_cmp_eq_u32 s{sC}, 5
    s_cbranch_scc1 L_k1_tw8
    s_waitcnt vmcnt(0) lgkmcnt(0)
    s_branch L_k1_back
    """)
    a.label("L_k1_tw8")
    a(f"""
    s_waitcnt vmcnt(8) lgkmcnt(0)
    s_branch L_k1_back
    """)
    return name, V.hi, 256, 256, 0x20000 + 2048
```

```python
from asmlib import *
from k1 import QF, KF, VF, OF, WS_SIZE, srd

ONES = 0x20000
XCH = 0x21000
FLAG = XCH + 8 * 9 * 256
MXS = FLAG + 64
LDS_K2 = MXS + 8 * 2 * 256


def gen_k2(a):
    name = "attn_kernel"
    V = Regs(1, 256, "v")
    a.raw(f".globl {name}\n.p2align 8\n.type {name},@function")
    a.label(name)
    SWS = 12
    sWave, sHead, sQb, sQp, sKh, sIt, sT0, sT1, sG, sPass = 16, 17, 18, 19, 20, 21, 22, 23, 24, 25
    a(f"""
    s_cmp_ge_u32 s2, 256
    s_cbranch_scc1 L_k2_end
    s_load_dwordx2 s[8:9], s[0:1], 72
    """)
    lane = V.alloc(); t0 = V.alloc(); t1 = V.alloc(); l16 = V.alloc()
    ka = V.alloc(); va = V.alloc(); vs = V.alloc(); ka0 = V.alloc(); va0 = V.alloc()
    one = V.alloc(2, 2)
    Q = [V.alloc(4, 4) for _ in range(2)]
    M = [V.alloc(16, 4) for _ in range(2)]
    S = [V.alloc(16, 4) for _ in range(2)]
    O = [V.alloc(16, 4) for _ in range(2)]
    P = V.alloc(8, 4)
    Kf = [V.alloc(4, 4) for _ in range(2)]
    Vf = [V.alloc(8, 4) for _ in range(2)]
    a(f"""
    v_lshrrev_b32 v{t0}, 6, v0
    v_and_b32 v{lane}, 63, v0
    s_and_b32 s{sT0}, s2, 7
    v_readfirstlane_b32 s{sWave}, v{t0}
    s_lshr_b32 s{sT1}, s2, 3
    s_lshl_b32 s{sHead}, s{sT0}, 2
    s_and_b32 s{sT0}, s{sT1}, 3
    s_add_u32 s{sHead}, s{sHead}, s{sT0}
    s_lshr_b32 s{sQb}, s{sT1}, 2
    v_lshlrev_b32 v{l16}, 4, v{lane}
    s_and_b32 s{sQp}, s{sWave}, 3
    s_lshr_b32 s{sKh}, s{sWave}, 2
    """)
    a(f"""
    s_and_b32 s{sT0}, s{sWave}, 1
    s_lshl_b32 s{sG}, s{sT0}, 16
    s_bfe_u32 s{sT1}, s{sWave}, 0x10001
    s_lshl_b32 s{sT1}, s{sT1}, 15
    s_lshl_b32 s{sIt}, s{sKh}, 11
    s_add_u32 s{sT1}, s{sT1}, s{sIt}
    s_add_u32 s{sG}, s{sG}, s{sT1}
    s_lshl_b32 s{sT0}, s{sT0}, 21
    s_add_u32 s{sT1}, s{sT1}, s{sT0}
    s_lshl_b32 s{sT0}, s{sHead}, 16
    s_add_u32 s{sT1}, s{sT1}, s{sT0}
    s_add_u32 s{sT1}, s{sT1}, {hex(KF)}
    s_lshl_b32 s{sIt}, s{sQb}, 13
    s_add_u32 s{sT0}, s{sT0}, s{sIt}
    s_lshl_b32 s{sIt}, s{sQp}, 11
    s_add_u32 s{sT0}, s{sT0}, s{sIt}
    s_waitcnt lgkmcnt(0)
    """)
    assert QF == 0 and VF == KF + (2 << 20)
    srd(a, SWS, 8, WS_SIZE)
    a(f"""
    s_mov_b32 m0, s{sG}
    buffer_load_dwordx4 {v(Q[0],4)}, v{l16}, s[{SWS}:{SWS+3}], s{sT0} offen
    buffer_load_dwordx4 {v(Q[1],4)}, v{l16}, s[{SWS}:{SWS+3}], s{sT0} offen offset:1024
    s_mov_b32 s{sIt}, 0
    """)
    a.label("L_k2_dma")
    a(f"""
    buffer_load_dwordx4 v{l16}, s[{SWS}:{SWS+3}], s{sT1} offen lds
    buffer_load_dwordx4 v{l16}, s[{SWS}:{SWS+3}], s{sT1} offen offset:1024 lds
    s_add_u32 m0, m0, 4096
    s_add_u32 s{sT1}, s{sT1}, 4096
    s_add_u32 s{sIt}, s{sIt}, 1
    s_cmp_lt_u32 s{sIt}, 8
    s_cbranch_scc1 L_k2_dma
    """)
    a(f"""
    v_mov_b32 v{one}, 0x3f803f80
    v_mov_b32 v{one+1}, 0x3f803f80
    v_lshlrev_b32 v{t0}, 3, v0
    v_add_u32 v{t0}, {hex(ONES)}, v{t0}
    ds_write_b64 v{t0}, {v(one,2)}
    s_lshl_b32 s{sT0}, s{sKh}, 15
    v_add_u32 v{ka0}, s{sT0}, v{l16}
    v_and_b32 v{t0}, 15, v{lane}
    v_lshlrev_b32 v{t0}, 4, v{t0}
    v_lshrrev_b32 v{t1}, 5, v{lane}
    v_lshl_add_u32 v{t1}, v{t1}, 8, v{t0}
    s_add_u32 s{sT0}, s{sT0}, 0x10000
    v_add_u32 v{t1}, s{sT0}, v{t1}
    v_add_u32 v{t0}, {hex(ONES-1024)}, v{t0}
    v_and_b32 v{vs}, 16, v{lane}
    v_cmp_eq_u32 vcc, 0, v{vs}
    v_mov_b32 v{vs}, 0x1000
    s_mov_b32 s{sPass}, 0
    v_cndmask_b32 v{va0}, v{t0}, v{t1}, vcc
    v_cndmask_b32 v{vs}, 0, v{vs}, vcc
    s_waitcnt vmcnt(14) lgkmcnt(0)
    s_barrier
    ds_read_b128 {v(Kf[1],4)}, v{l16}
    s_waitcnt lgkmcnt(0)
    v_mfma_f32_32x32x16_bf16 {v(S[0],16)}, {v(Kf[1],4)}, {v(Q[0],4)}, 0
    v_mfma_f32_32x32x16_bf16 {v(S[1],16)}, {v(Kf[1],4)}, {v(Q[1],4)}, 0
    s_nop 7
    s_nop 3
    """)

    def max16(dst, src):
        a(f"v_max3_f32 v{dst}, v{src}, v{src+1}, v{src+2}")
        for i in range(3, 15, 2):
            a(f"v_max3_f32 v{dst}, v{dst}, v{src+i}, v{src+i+1}")
        a(f"v_max_f32 v{dst}, v{dst}, v{src+15}")

    def half_max(r, t):
        a(f"""
        v_mov_b32 v{t}, v{r}
        s_nop 1
        v_permlane32_swap_b32 v{r}, v{t}
        s_nop 1
        v_max_f32 v{r}, v{r}, v{t}
        """)

    mx = [V.alloc(), V.alloc()]
    max16(mx[0], S[0])
    max16(mx[1], S[1])
    half_max(mx[0], t0)
    half_max(mx[1], t1)
    a.label("L_k2_start")
    for q in range(2):
        a(f"v_sub_f32 v{M[q]}, 0, v{mx[q]}")
        for r in range(1, 16):
            a(f"v_sub_f32 v{M[q]+r}, 0, v{mx[q]}")
    a(f"""
    v_mov_b32 v{ka}, v{ka0}
    v_mov_b32 v{va}, v{va0}
    v_add_u32 v{t0}, 1024, v{va0}
    ds_read_b128 {v(Kf[0],4)}, v{ka}
    """)
    a(f"""
    v_lshrrev_b32 v{t1}, 2, v{vs}
    v_sub_u32 v{t0}, v{t0}, v{t1}
    s_nop 0
    ds_read_b128 {v(Vf[0],4)}, v{t0}
    ds_read_b128 {v(Vf[0]+4,4)}, v{t0} offset:512
    """)
    for q in range(2):
        for r in range(16):
            a(f"v_mov_b32 v{O[q]+r}, 0")
    for r in range(4):
        a(f"v_mov_b32 v{P+4+r}, 0")
        a(f"v_mov_b32 v{Vf[1]+4+r}, 0")
    a(f"""
    s_mov_b32 s{sIt}, 0
    s_waitcnt lgkmcnt(0)
    v_mfma_f32_32x32x16_bf16 {v(S[0],16)}, {v(Kf[0],4)}, {v(Q[0],4)}, {v(M[0],16)}
    s_nop 7
    s_nop 3
    """)
    a.raw(".p2align 6")
    a.label("L_k2_loop")
    for u in range(8):
        t = u >> 1
        q = u & 1
        Sx = S[q]
        e = lambda i: a(f"v_exp_f32 v{Sx+i}, v{Sx+i}")
        c = lambda j: a(f"v_cvt_pk_bf16_f32 v{P+j}, v{Sx+2*j}, v{Sx+2*j+1}")
        tp = (u - 1) >> 1
        qp = (u - 1) & 1
        tn = (u + 1) >> 1
        qn = (u + 1) & 1
        e(0); e(1)
        a(f"v_mfma_f32_32x32x16_bf16 {v(O[qp],16)}, {v(Vf[tp&1]+4,4)}, {v(P+4,4)}, {v(O[qp],16)}")
        if q == 0:
            if t == 3:
                a(f"""
                s_cmp_ge_u32 s{sIt}, 2
                s_cbranch_scc0 L_k2_sync
                """)
                a.label("L_k2_syncback")
            a(f"""
            ds_read_b128 {v(Kf[(t+1)&1],4)}, v{ka} offset:{(t+1)*1024}
            ds_read_b128 {v(Vf[(t+1)&1],4)}, v{va} offset:{(t+1)*1024}
            ds_read_b128 {v(Vf[(t+1)&1]+4,4)}, v{va} offset:{(t+1)*1024+512}
            """)
        e(2); e(3); c(0); c(1); e(4); e(5)
        if q == 1:
            a("s_waitcnt lgkmcnt(0)")
        a(f"v_mfma_f32_32x32x16_bf16 {v(S[qn],16)}, {v(Kf[tn&1],4)}, {v(Q[qn],4)}, {v(M[qn],16)}")
        e(6); e(7); c(2); c(3); e(8); e(9); e(10)
        a(f"v_mfma_f32_32x32x16_bf16 {v(O[q],16)}, {v(Vf[t&1],4)}, {v(P,4)}, {v(O[q],16)}")
        e(11); c(4); c(5); e(12); e(13)
        if u == 7:
            a(f"""
            v_add_u32 v{ka}, 0x1000, v{ka}
            v_add_u32 v{va}, v{vs}, v{va}
            s_add_u32 s{sIt}, s{sIt}, 1
            s_cmp_lt_u32 s{sIt}, 8
            """)
        e(14); e(15); c(6); c(7)
    a("s_cbranch_scc1 L_k2_loop")
    a(f"""
    s_nop 1
    v_mfma_f32_32x32x16_bf16 {v(O[1],16)}, {v(Vf[1]+4,4)}, {v(P+4,4)}, {v(O[1],16)}
    """)
    xw = V.alloc(); xr = V.alloc(); fl = V.alloc()
    R = S[0]
    a(f"""
    s_mul_i32 s{sT0}, s{sWave}, {9*256}
    s_add_u32 s{sT0}, s{sT0}, {hex(XCH)}
    s_xor_b32 s{sT1}, s{sWave}, 4
    s_mul_i32 s{sT1}, s{sT1}, {9*256}
    s_add_u32 s{sT1}, s{sT1}, {hex(XCH)}
    v_add_u32 v{xw}, s{sT0}, v{l16}
    v_add_u32 v{xr}, s{sT1}, v{l16}
    v_lshl_add_u32 v{t0}, v{lane}, 2, s{sT0}
    v_lshl_add_u32 v{t1}, v{lane}, 2, s{sT1}
    s_lshl_b32 s{sT0}, s{sWave}, 2
    s_add_u32 s{sT0}, s{sT0}, {hex(FLAG)}
    v_mov_b32 v{fl}, s{sT0}
    s_mov_b32 s{sT1}, 0x5f800000
    s_nop 2
    v_cmp_nlt_f32 vcc, v{O[0]+8}, s{sT1}
    s_mov_b64 s[26:27], vcc
    v_cmp_nlt_f32 vcc, v{O[1]+8}, s{sT1}
    s_or_b64 s[26:27], s[26:27], vcc
    s_cselect_b32 s{sT0}, 1, 0
    v_mov_b32 v{one}, s{sT0}
    ds_write_b32 v{fl}, v{one}
    s_cmp_eq_u32 s{sKh}, 0
    s_cbranch_scc1 L_k2_x0
    """)
    a(f"""
    ds_write_b128 v{xw}, {v(O[0],4)}
    ds_write_b128 v{xw}, {v(O[0]+4,4)} offset:1024
    ds_write_b32 v{t0}, v{O[0]+8} offset:2048
    s_nop 1
    """)
    for r in range(9):
        a(f"v_mov_b32 v{P if False else M[0]+r}, v{O[1]+r}")
    a("s_branch L_k2_x1")
    a.label("L_k2_x0")
    a(f"""
    ds_write_b128 v{xw}, {v(O[1],4)}
    ds_write_b128 v{xw}, {v(O[1]+4,4)} offset:1024
    ds_write_b32 v{t0}, v{O[1]+8} offset:2048
    """)
    for r in range(9):
        a(f"v_mov_b32 v{M[0]+r}, v{O[0]+r}")
    a.label("L_k2_x1")
    F = S[1]
    a(f"""
    v_mov_b32 v{fl}, {hex(FLAG)}
    s_waitcnt lgkmcnt(0)
    s_barrier
    ds_read_b128 {v(F,4)}, v{fl}
    ds_read_b128 {v(F+4,4)}, v{fl} offset:16
    ds_read_b128 {v(R,4)}, v{xr}
    ds_read_b128 {v(R+4,4)}, v{xr} offset:1024
    ds_read_b32 v{R+8}, v{t1} offset:2048
    s_lshl_b32 s{sT0}, s{sQb}, 3
    s_lshl_b32 s{sT1}, s{sQp}, 1
    s_add_u32 s{sT0}, s{sT0}, s{sT1}
    s_add_u32 s{sT0}, s{sT0}, s{sKh}
    s_lshl_b32 s{sT0}, s{sT0}, 5
    s_add_u32 s{sT0}, s{sT0}, s{sHead}
    s_lshl_b32 s{sT0}, s{sT0}, 10
    s_add_u32 s{sT0}, s{sT0}, {hex(OF)}
    s_waitcnt lgkmcnt(3)
    v_or3_b32 v{F}, v{F}, v{F+1}, v{F+2}
    v_or3_b32 v{F+3}, v{F+3}, v{F+4}, v{F+5}
    v_or3_b32 v{F}, v{F}, v{F+6}, v{F+7}
    v_or_b32 v{F}, v{F}, v{F+3}
    s_nop 0
    v_readfirstlane_b32 s{sT1}, v{F}
    s_waitcnt lgkmcnt(0)
    v_add_f32 v{R+8}, v{R+8}, v{M[0]+8}
    v_rcp_f32 v{R+8}, v{R+8}
    s_andn2_b32 s{sT1}, s{sT1}, s{sPass}
    s_cbranch_scc1 L_k2_fallback
    """)
    for r in range(8):
        a(f"v_add_f32 v{R+r}, v{R+r}, v{M[0]+r}")
    for r in range(8):
        a(f"v_mul_f32 v{R+r}, v{R+r}, v{R+8}")
    for r in range(4):
        a(f"v_cvt_pk_bf16_f32 v{P+r}, v{R+2*r}, v{R+2*r+1}")
    a(f"buffer_store_dwordx4 {v(P,4)}, v{l16}, s[{SWS}:{SWS+3}], s{sT0} offen")
    a.label("L_k2_end")
    a("s_endpgm")

    a.label("L_k2_sync")
    a(f"""
    s_cmp_eq_u32 s{sPass}, 1
    s_cbranch_scc1 L_k2_syncback
    s_cmp_eq_u32 s{sIt}, 0
    s_cbranch_scc1 L_k2_sync0
    s_waitcnt vmcnt(0)
    s_barrier
    s_branch L_k2_syncback
    """)
    a.label("L_k2_sync0")
    a(f"""
    s_waitcnt vmcnt(12)
    s_barrier
    s_branch L_k2_syncback
    """)

    a.label("L_k2_fallback")
    a(f"""
    s_mov_b32 s{sPass}, 1
    v_mov_b32 v{ka}, v{ka0}
    v_mov_b32 v{mx[0]}, 0xff800000
    v_mov_b32 v{mx[1]}, 0xff800000
    s_mov_b32 s{sIt}, 0
    """)
    a.label("L_k2_fbloop")
    a(f"""
    ds_read_b128 {v(Kf[0],4)}, v{ka}
    v_add_u32 v{ka}, 1024, v{ka}
    s_waitcnt lgkmcnt(0)
    v_mfma_f32_32x32x16_bf16 {v(S[0],16)}, {v(Kf[0],4)}, {v(Q[0],4)}, 0
    v_mfma_f32_32x32x16_bf16 {v(S[1],16)}, {v(Kf[0],4)}, {v(Q[1],4)}, 0
    s_nop 7
    s_nop 3
    """)
    for q in range(2):
        for i in range(0, 16, 2):
            a(f"v_max3_f32 v{mx[q]}, v{mx[q]}, v{S[q]+i}, v{S[q]+i+1}")
    a(f"""
    s_add_u32 s{sIt}, s{sIt}, 1
    s_cmp_lt_u32 s{sIt}, 32
    s_cbranch_scc1 L_k2_fbloop
    """)
    half_max(mx[0], t0)
    half_max(mx[1], t1)
    a(f"""
    s_lshl_b32 s{sT0}, s{sWave}, 9
    s_add_u32 s{sT0}, s{sT0}, {hex(MXS)}
    s_xor_b32 s{sT1}, s{sWave}, 4
    s_lshl_b32 s{sT1}, s{sT1}, 9
    s_add_u32 s{sT1}, s{sT1}, {hex(MXS)}
    v_lshl_add_u32 v{t0}, v{lane}, 2, s{sT0}
    v_lshl_add_u32 v{t1}, v{lane}, 2, s{sT1}
    ds_write_b32 v{t0}, v{mx[0]}
    ds_write_b32 v{t0}, v{mx[1]} offset:256
    s_waitcnt lgkmcnt(0)
    s_barrier
    ds_read_b32 v{S[0]}, v{t1}
    ds_read_b32 v{S[0]+1}, v{t1} offset:256
    s_waitcnt lgkmcnt(0)
    v_max_f32 v{mx[0]}, v{mx[0]}, v{S[0]}
    v_max_f32 v{mx[1]}, v{mx[1]}, v{S[0]+1}
    s_branch L_k2_start
    """)
    return name, V.hi, 256, 512, LDS_K2
```

```python
from asmlib import *
from k1 import OF, HF, GF, WS_SIZE, srd, half_sum

ST = (15 << 20) + (1 << 19)


def tr_addr(a, dst, lane, t0, t1, sigma=True):
    a(f"""
    v_lshrrev_b32 v{t0}, 5, v{lane}
    v_lshlrev_b32 v{t0}, 9, v{t0}
    v_bfe_u32 v{t1}, v{lane}, 2, 2
    v_lshl_add_u32 v{t0}, v{t1}, 6, v{t0}
    v_bfe_u32 v{t1}, v{lane}, 4, 1
    v_lshl_add_u32 v{t0}, v{t1}, 5, v{t0}
    """)
    if sigma:
        a(f"""
        v_and_b32 v{t1}, 1, v{lane}
        v_lshl_add_u32 v{t0}, v{t1}, 4, v{t0}
        v_bfe_u32 v{t1}, v{lane}, 1, 1
        v_lshl_add_u32 v{dst}, v{t1}, 3, v{t0}
        """)
    else:
        a(f"""
        v_and_b32 v{t1}, 3, v{lane}
        v_lshl_add_u32 v{dst}, v{t1}, 3, v{t0}
        """)


def gen_splitk(a, which):
    wo = which == "wo"
    name = "wo_kernel" if wo else "down_kernel"
    L = "k3" if wo else "k5"
    KS = 32 if wo else 86
    D = 8
    AOFF = OF if wo else GF
    V = Regs(1, 256, "v")
    a.raw(f".globl {name}\n.p2align 8\n.type {name},@function")
    a.label(name)
    SA, SW, SWS, SR = 12, 16, 20, 24
    sWave, sRb, sCg, sAo, sWo, sDm, sKs, sI, sN, sT0, sT1, sBase, sRd = range(28, 41)
    a(f"""
    s_cmp_ge_u32 s2, 256
    s_cbranch_scc1 L_{L}_end
    s_load_dwordx2 s[4:5], s[0:1], {16 if wo else 48}
    s_load_dwordx2 s[6:7], s[0:1], {0 if wo else 56}
    s_load_dwordx2 s[8:9], s[0:1], 72
    """)
    lane = V.alloc(); t0 = V.alloc(); t1 = V.alloc(); l16 = V.alloc()
    ad0 = V.alloc(); ad1 = V.alloc(); wd0 = V.alloc(); wd1 = V.alloc()
    ra = V.alloc(); rw = V.alloc(); ca = V.alloc(); cw = V.alloc(); rm = V.alloc()
    res = V.alloc(8, 4)
    acc = [V.alloc(16, 4) for _ in range(4)]
    fr = [V.alloc(16, 4) for _ in range(2)]
    a(f"""
    v_lshrrev_b32 v{t0}, 6, v0
    v_and_b32 v{lane}, 63, v0
    s_and_b32 s{sT0}, s2, 7
    v_readfirstlane_b32 s{sWave}, v{t0}
    s_lshr_b32 s{sT1}, s2, 3
    s_lshl_b32 s{sRb}, s{sT0}, 2
    s_and_b32 s{sT0}, s{sT1}, 3
    s_add_u32 s{sRb}, s{sRb}, s{sT0}
    s_lshr_b32 s{sCg}, s{sT1}, 2
    v_lshlrev_b32 v{l16}, 4, v{lane}
    """)
    a(f"""
    s_and_b32 s{sT0}, s{sWave}, 1
    s_mul_i32 s{sT1}, s{sT0}, {KS*1024}
    v_add_u32 v{ad0}, s{sT1}, v{l16}
    s_sub_u32 s{sT1}, {KS*1024}, s{sT1}
    v_add_u32 v{ad1}, s{sT1}, v{l16}
    v_lshrrev_b32 v{t0}, 2, v{lane}
    v_and_b32 v{t1}, 3, v{lane}
    v_lshlrev_b32 v{t0}, 10, v{t0}
    v_lshl_add_u32 v{t0}, v{t1}, 4, v{t0}
    s_lshr_b32 s{sT1}, s{sWave}, 1
    s_lshl_b32 s{sT1}, s{sT1}, 6
    v_add_u32 v{wd0}, s{sT1}, v{t0}
    v_xor_b32 v{wd1}, 64, v{wd0}
    s_mul_i32 s{sAo}, s{sRb}, {2*KS*1024}
    s_lshl_b32 s{sKs}, s{sWave}, 10
    s_add_u32 s{sAo}, s{sAo}, s{sKs}
    s_add_u32 s{sAo}, s{sAo}, {hex(AOFF)}
    s_lshl_b32 s{sWo}, s{sWave}, 14
    s_lshl_b32 s{sKs}, s{sCg}, 7
    s_add_u32 s{sWo}, s{sWo}, s{sKs}
    s_mov_b32 s{sKs}, s{sWave}
    s_mul_i32 s{sBase}, s{sWave}, {D*4096}
    s_mov_b32 s{sDm}, 0
    """)
    a(f"""
    v_and_b32 v{t0}, 31, v{lane}
    v_lshlrev_b32 v{t0}, 10, v{t0}
    v_lshrrev_b32 v{t1}, 5, v{lane}
    v_lshl_add_u32 v{rm}, v{t1}, 4, v{t0}
    s_lshl_b32 s{sI}, s{sRb}, 16
    s_lshl_b32 s{sT0}, s{sT0}, 15
    s_add_u32 s{sI}, s{sI}, s{sT0}
    s_lshl_b32 s{sN}, s{sCg}, 7
    s_add_u32 s{sI}, s{sI}, s{sN}
    s_add_u32 s{sI}, s{sI}, s{sT1}
    v_add_u32 v{rm}, s{sI}, v{rm}
    """)
    sH = 41
    a(f"""
    s_lshl_b32 s{sH}, s{sRb}, 16
    s_add_u32 s{sH}, s{sH}, s{sT0}
    s_lshl_b32 s{sN}, s{sCg}, 12
    s_add_u32 s{sH}, s{sH}, s{sN}
    s_lshl_b32 s{sN}, s{sT1}, 5
    s_add_u32 s{sH}, s{sH}, s{sN}
    s_add_u32 s{sH}, s{sH}, {hex(HF)}
    s_waitcnt lgkmcnt(0)
    """)
    srd(a, SA, 8, WS_SIZE)
    srd(a, SW, 4, KS * 16 * 1024)
    srd(a, SWS, 8, WS_SIZE)
    srd(a, SR, 6, 2048 * 1024)

    def dma_step():
        a(f"""
        s_add_u32 m0, s{sBase}, s{sDm}
        s_cmp_lt_u32 s{sKs}, {KS}
        s_cselect_b32 s{SA+2}, {hex(WS_SIZE)}, 0
        s_cselect_b32 s{SW+2}, {hex(KS*16*1024)}, 0
        buffer_load_dwordx4 v{ad0}, s[{SA}:{SA+3}], s{sAo} offen lds
        s_add_u32 m0, m0, 1024
        s_add_u32 s{sKs}, s{sKs}, 4
        buffer_load_dwordx4 v{ad1}, s[{SA}:{SA+3}], s{sAo} offen lds
        s_add_u32 m0, m0, 1024
        s_add_u32 s{sAo}, s{sAo}, 4096
        buffer_load_dwordx4 v{wd0}, s[{SW}:{SW+3}], s{sWo} offen lds
        s_add_u32 m0, m0, 1024
        s_add_u32 s{sDm}, s{sDm}, 4096
        buffer_load_dwordx4 v{wd1}, s[{SW}:{SW+3}], s{sWo} offen lds
        s_and_b32 s{sDm}, s{sDm}, {D*4096-1}
        s_add_u32 s{sWo}, s{sWo}, 65536
        """)

    a(f"s_mov_b32 s{sI}, 0")
    a.label(f"L_{L}_pre")
    dma_step()
    a(f"""
    s_add_u32 s{sI}, s{sI}, 1
    s_cmp_lt_u32 s{sI}, {D}
    s_cbranch_scc1 L_{L}_pre
    """)
    if wo:
        a(f"""
        buffer_load_dwordx4 {v(res,4)}, v{rm}, s[{SR}:{SR+3}], 0 offen
        buffer_load_dwordx4 {v(res+4,4)}, v{rm}, s[{SR}:{SR+3}], 0 offen offset:32
        """)
    else:
        a(f"""
        buffer_load_dwordx4 {v(res,4)}, v{l16}, s[{SWS}:{SWS+3}], s{sH} offen
        buffer_load_dwordx4 {v(res+4,4)}, v{l16}, s[{SWS}:{SWS+3}], s{sH} offen offset:1024
        """)
    tr_addr(a, rw, lane, t0, t1)
    a(f"""
    v_add_u32 v{rw}, s{sBase}, v{rw}
    v_add_u32 v{ra}, s{sBase}, v{l16}
    v_mov_b32 v{ca}, v{ra}
    v_mov_b32 v{cw}, v{rw}
    """)
    for r in range(64):
        a(f"v_mov_b32 v{acc[0]+r}, 0")
    nmax = (KS + 3) // 4
    assert nmax % 2 == 0
    a(f"""
    s_mov_b32 s{sI}, 0
    s_mov_b32 s{sRd}, 0
    """)

    def reads(f):
        a(f"""
        ds_read_b128 {v(f,4)}, v{ca}
        ds_read_b128 {v(f+4,4)}, v{ca} offset:1024
        ds_read_b64_tr_b16 {v(f+8,2)}, v{cw} offset:2048
        ds_read_b64_tr_b16 {v(f+10,2)}, v{cw} offset:{2048+256}
        ds_read_b64_tr_b16 {v(f+12,2)}, v{cw} offset:3072
        ds_read_b64_tr_b16 {v(f+14,2)}, v{cw} offset:{3072+256}
        """)

    def adv():
        a(f"""
        s_add_u32 s{sRd}, s{sRd}, 4096
        s_and_b32 s{sRd}, s{sRd}, {D*4096-1}
        v_add_u32 v{ca}, s{sRd}, v{ra}
        v_add_u32 v{cw}, s{sRd}, v{rw}
        """)

    def mm(f):
        for jc in range(2):
            for jt in range(2):
                ac = acc[jc * 2 + jt]
                a(f"v_mfma_f32_32x32x16_bf16 {v(ac,16)}, {v(f+8+4*jc,4)}, {v(f+4*jt,4)}, {v(ac,16)}")

    a(f"s_waitcnt vmcnt({4*(D-1)+2})")
    reads(fr[0])
    adv()
    a.label(f"L_{L}_loop")
    for h in range(2):
        a(f"s_waitcnt vmcnt({4*(D-2)})")
        reads(fr[1 - h])
        adv()
        a("s_waitcnt lgkmcnt(6)")
        dma_step()
        mm(fr[h])
    a(f"""
    s_add_u32 s{sI}, s{sI}, 2
    s_cmp_lt_u32 s{sI}, {nmax}
    s_cbranch_scc1 L_{L}_loop
    """)
    a(f"""
    s_waitcnt vmcnt(0) lgkmcnt(0)
    s_nop 7
    """)
    for j in range(1, 4):
        for q in range(4):
            a(f"ds_write_b128 v{ra}, {v(acc[j]+4*q,4)} offset:{(j-1)*4096+q*1024}")
    rr = [V.alloc() for _ in range(3)]
    for j in range(1, 4):
        a(f"""
        s_xor_b32 s{sT0}, s{sWave}, {j}
        s_mul_i32 s{sT0}, s{sT0}, {D*4096}
        v_add_u32 v{rr[j-1]}, s{sT0}, v{l16}
        """)
    a(f"""
    s_waitcnt lgkmcnt(0)
    s_barrier
    """)
    for j in range(1, 4):
        for q in range(4):
            a(f"ds_read_b128 {v(acc[j]+4*q,4)}, v{rr[j-1]} offset:{(j-1)*4096+q*1024}")
    u = fr[0]
    for r in range(8):
        a(f"v_lshlrev_b32 v{u+2*r}, 16, v{res+r}")
        a(f"v_and_b32 v{u+2*r+1}, 0xffff0000, v{res+r}")
    for r in range(0, 16, 2):
        a(f"v_pk_add_f32 {v(acc[0]+r,2)}, {v(acc[0]+r,2)}, {v(u+r,2)}")
    for j in range(1, 4):
        a(f"s_waitcnt lgkmcnt({(3-j)*4})")
        for r in range(0, 16, 2):
            a(f"v_pk_add_f32 {v(acc[0]+r,2)}, {v(acc[0]+r,2)}, {v(acc[j]+r,2)}")
    o = fr[1]
    for r in range(8):
        a(f"v_cvt_pk_bf16_f32 v{o+r}, v{acc[0]+2*r}, v{acc[0]+2*r+1}")
    if wo:
        a(f"""
        buffer_store_dwordx4 {v(o,4)}, v{l16}, s[{SWS}:{SWS+3}], s{sH} offen
        buffer_store_dwordx4 {v(o+4,4)}, v{l16}, s[{SWS}:{SWS+3}], s{sH} offen offset:1024
        s_mov_b32 s{sT0}, 0x3f803f80
        """)
        sm = acc[1]
        a(f"""
        v_mov_b32 v{sm}, 0
        v_mov_b32 v{sm+1}, 0
        """)
        for r in range(8):
            a(f"v_dot2_f32_bf16 v{sm}, v{o+r}, s{sT0}, v{sm}")
            a(f"v_dot2_f32_bf16 v{sm+1}, v{o+r}, v{o+r}, v{sm+1}")
        a(f"""
        s_and_b32 s{sT0}, s{sWave}, 1
        s_lshl_b32 s{sT1}, s{sRb}, 1
        s_add_u32 s{sT0}, s{sT0}, s{sT1}
        s_lshl_b32 s{sT0}, s{sT0}, 3
        s_add_u32 s{sT0}, s{sT0}, s{sCg}
        s_lshl_b32 s{sT0}, s{sT0}, 9
        s_lshr_b32 s{sT1}, s{sWave}, 1
        s_lshl_b32 s{sT1}, s{sT1}, 3
        s_add_u32 s{sT0}, s{sT0}, s{sT1}
        s_add_u32 s{sT0}, s{sT0}, {hex(ST)}
        v_and_b32 v{t1}, 0x1ff, v{l16}
        """)
        half_sum(a, sm, t0)
        half_sum(a, sm + 1, t0)
        a(f"buffer_store_dwordx2 {v(sm,2)}, v{t1}, s[{SWS}:{SWS+3}], s{sT0} offen")
    else:
        a(f"""
        buffer_store_dwordx4 {v(o,4)}, v{rm}, s[{SR}:{SR+3}], 0 offen
        buffer_store_dwordx4 {v(o+4,4)}, v{rm}, s[{SR}:{SR+3}], 0 offen offset:32
        """)
    a.label(f"L_{L}_end")
    a("s_endpgm")
    return name, V.hi, 256, 256, 4 * D * 4096
```

```python
from asmlib import *
from k1 import HF, GF, WS_SIZE, EPS, srd, half_sum
from k35 import ST, tr_addr
import math

NSLOT = 7
SLOT = 20480


def gen_k4(a):
    name = "ffn1_kernel"
    V = Regs(1, 256, "v")
    a.raw(f".globl {name}\n.p2align 8\n.type {name},@function")
    a.label(name)
    SW, SWS = 12, 16
    sWave, sRb, sCg, sAo, sWo, sDm, sC, sRd, sT0, sT1, sA, sB, sIss = range(24, 37)
    a(f"""
    s_cmp_ge_u32 s2, 240
    s_cbranch_scc1 L_k4_end
    s_load_dwordx4 s[4:7], s[0:1], 32
    s_load_dwordx2 s[8:9], s[0:1], 72
    """)
    lane = V.alloc(); t0 = V.alloc(); t1 = V.alloc(); l16 = V.alloc()
    wd = [V.alloc() for _ in range(3)]
    ra = V.alloc(); rw = V.alloc(); ca = V.alloc(); cw = V.alloc()
    rs = V.alloc(2, 2); nmr = V.alloc(2, 2)
    acc = [V.alloc(16, 4) for _ in range(6)]
    wf = [V.alloc(24, 4) for _ in range(2)]
    ar = [V.alloc(4, 4) for _ in range(2)]
    an = [V.alloc(4, 4) for _ in range(2)]
    un = V.alloc(8, 4)
    stt = V.alloc(16, 4)
    a(f"""
    v_lshrrev_b32 v{t0}, 6, v0
    v_and_b32 v{lane}, 63, v0
    s_and_b32 s{sT0}, s2, 7
    v_readfirstlane_b32 s{sWave}, v{t0}
    s_lshr_b32 s{sCg}, s2, 3
    s_lshl_b32 s{sRb}, s{sT0}, 1
    s_cmp_ge_u32 s{sCg}, 15
    s_addc_u32 s{sRb}, s{sRb}, 0
    s_cmp_ge_u32 s{sCg}, 15
    s_cselect_b32 s{sT0}, 15, 0
    s_sub_u32 s{sCg}, s{sCg}, s{sT0}
    v_lshlrev_b32 v{l16}, 4, v{lane}
    v_lshrrev_b32 v{t0}, 2, v{lane}
    v_and_b32 v{t1}, 3, v{lane}
    v_mul_u32_u24 v{t0}, 2752, v{t0}
    v_lshl_add_u32 v{wd[0]}, v{t1}, 4, v{t0}
    v_add_u32 v{wd[1]}, 64, v{wd[0]}
    v_add_u32 v{wd[2]}, 128, v{wd[0]}
    s_lshl_b32 s{sT0}, s{sRb}, 2
    s_add_u32 s{sT0}, s{sT0}, s{sWave}
    s_lshl_b32 s{sAo}, s{sT0}, 15
    s_add_u32 s{sAo}, s{sAo}, {hex(HF)}
    s_lshl_b32 s{sT1}, s{sT0}, 12
    s_add_u32 s{sT1}, s{sT1}, {hex(ST)}
    s_lshr_b32 s{sT0}, s{sWave}, 1
    s_mul_i32 s{sWo}, s{sT0}, {16*2752}
    s_mul_i32 s{sT0}, s{sCg}, 192
    s_add_u32 s{sWo}, s{sWo}, s{sT0}
    s_lshl_b32 s{sA}, s{sWave}, 11
    s_mul_i32 s{sB}, s{sWave}, 3072
    s_add_u32 s{sB}, s{sB}, 8192
    s_mov_b32 s{sDm}, 0
    v_and_b32 v{t0}, 0x1ff, v{l16}
    v_lshrrev_b32 v{t1}, 5, v{lane}
    v_lshl_add_u32 v{t0}, v{t1}, 11, v{t0}
    s_bitcmp1_b32 s{sWave}, 0
    s_waitcnt lgkmcnt(0)
    s_cselect_b32 s{SW}, s6, s4
    s_cselect_b32 s{SW+1}, s7, s5
    s_mov_b32 s{SW+2}, {hex(512*2752)}
    s_mov_b32 s{SW+3}, 0x00020000
    """)
    srd(a, SWS, 8, WS_SIZE)
    for i in range(4):
        a(f"buffer_load_dwordx4 {v(stt+4*i,4)}, v{t0}, s[{SWS}:{SWS+3}], s{sT1} offen offset:{i*512}")

    def dma_chunk():
        a(f"""
        s_add_u32 m0, s{sDm}, s{sA}
        s_add_u32 s{sT1}, s{sDm}, s{sB}
        buffer_load_dwordx4 v{l16}, s[{SWS}:{SWS+3}], s{sAo} offen lds
        buffer_load_dwordx4 v{l16}, s[{SWS}:{SWS+3}], s{sAo} offen offset:1024 lds
        s_mov_b32 m0, s{sT1}
        s_add_u32 s{sAo}, s{sAo}, 2048
        buffer_load_dwordx4 v{wd[0]}, s[{SW}:{SW+3}], s{sWo} offen lds
        s_add_u32 m0, s{sT1}, 1024
        s_add_u32 s{sDm}, s{sDm}, {SLOT}
        buffer_load_dwordx4 v{wd[1]}, s[{SW}:{SW+3}], s{sWo} offen lds
        s_add_u32 m0, s{sT1}, 2048
        s_cmp_ge_u32 s{sDm}, {NSLOT*SLOT}
        buffer_load_dwordx4 v{wd[2]}, s[{SW}:{SW+3}], s{sWo} offen lds
        s_cselect_b32 s{sDm}, 0, s{sDm}
        s_add_u32 s{sWo}, s{sWo}, {32*2752}
        """)

    a(f"s_mov_b32 s{sC}, 0")
    a.label("L_k4_pre")
    dma_chunk()
    a(f"""
    s_add_u32 s{sC}, s{sC}, 1
    s_cmp_lt_u32 s{sC}, {NSLOT}
    s_cbranch_scc1 L_k4_pre
    """)
    tr_addr(a, rw, lane, t0, t1)
    a(f"""
    v_add_u32 v{rw}, 8192, v{rw}
    v_add_u32 v{ra}, s{sA}, v{l16}
    v_mov_b32 v{ca}, v{ra}
    v_mov_b32 v{cw}, v{rw}
    """)
    for r in range(96):
        a(f"v_mov_b32 v{acc[0]+r}, 0")
    a(f"s_waitcnt vmcnt({5*NSLOT})")
    for i in range(0, 8, 2):
        a(f"v_pk_add_f32 {v(stt+i,2)}, {v(stt+i,2)}, {v(stt+8+i,2)}")
    a(f"""
    v_pk_add_f32 {v(stt,2)}, {v(stt,2)}, {v(stt+4,2)}
    v_pk_add_f32 {v(stt+2,2)}, {v(stt+2,2)}, {v(stt+6,2)}
    s_nop 0
    v_pk_add_f32 {v(stt,2)}, {v(stt,2)}, {v(stt+2,2)}
    """)
    half_sum(a, stt, t0)
    half_sum(a, stt + 1, t0)
    a(f"""
    v_mul_f32 v{t0}, {hexf(1.0/512)}, v{stt}
    v_mul_f32 v{t1}, {hexf(1.0/512)}, v{stt+1}
    v_fma_f32 v{t1}, -v{t0}, v{t0}, v{t1}
    v_max_f32 v{t1}, 0, v{t1}
    v_add_f32 v{t1}, {hexf(EPS)}, v{t1}
    v_rsq_f32 v{rs}, v{t1}
    s_mov_b32 s{sC}, 0
    s_mov_b32 s{sRd}, 0
    v_mul_f32 v{nmr}, v{t0}, v{rs}
    v_sub_f32 v{nmr}, 0, v{nmr}
    """)

    def read_a(ks2, dst):
        a(f"ds_read_b128 {v(dst,4)}, v{ca} offset:{ks2*1024}")

    def read_w(ks2, f):
        for j in range(6):
            for jj in range(2):
                a(f"ds_read_b64_tr_b16 {v(f+4*j+2*jj,2)}, v{cw} offset:{ks2*6144+j*1024+jj*256}")

    def norm_ops(src, dst):
        ops = []
        for r in range(4):
            ops.append(f"v_lshlrev_b32 v{un+2*r}, 16, v{src+r}")
            ops.append(f"v_and_b32 v{un+2*r+1}, 0xffff0000, v{src+r}")
        for r in range(4):
            ops.append(f"v_pk_fma_f32 {v(un+2*r,2)}, {v(un+2*r,2)}, {v(rs,2)}, {v(nmr,2)} op_sel_hi:[1,0,0]")
        for r in range(4):
            ops.append(f"v_cvt_pk_bf16_f32 v{dst+r}, v{un+2*r}, v{un+2*r+1}")
        return ops

    def compute(f, b, ops):
        n = len(ops)
        k = 0
        for j in range(6):
            a(f"v_mfma_f32_32x32x16_bf16 {v(acc[j],16)}, {v(f+4*j,4)}, {v(b,4)}, {v(acc[j],16)}")
            take = (n * (j + 1)) // 5 - (n * j) // 5 if j < 5 else 0
            for _ in range(take):
                a(ops[k]); k += 1
        assert k == n

    a(f"""
    s_waitcnt vmcnt({5*(NSLOT-1)})
    s_barrier
    """)
    read_a(0, ar[0])
    read_a(1, ar[1])
    read_w(0, wf[0])
    a("s_waitcnt lgkmcnt(13)")
    for o in norm_ops(ar[0], an[0]):
        a(o)
    a.label("L_k4_loop")
    read_w(1, wf[1])
    a("s_waitcnt lgkmcnt(12)")
    compute(wf[0], an[0], norm_ops(ar[1], an[1]))
    a(f"""
    s_add_u32 s{sRd}, s{sRd}, {SLOT}
    s_cmp_ge_u32 s{sRd}, {NSLOT*SLOT}
    s_cselect_b32 s{sRd}, 0, s{sRd}
    s_cmp_ge_u32 s{sC}, {16-NSLOT+1}
    s_cbranch_scc1 L_k4_tailwait
    s_waitcnt vmcnt({5*(NSLOT-2)}) lgkmcnt(0)
    """)
    a.label("L_k4_back")
    a(f"""
    v_add_u32 v{ca}, s{sRd}, v{ra}
    v_add_u32 v{cw}, s{sRd}, v{rw}
    s_barrier
    """)
    read_a(0, ar[0])
    read_a(1, ar[1])
    read_w(0, wf[0])
    a(f"""
    s_cmp_ge_u32 s{sC}, {16-NSLOT}
    s_cbranch_scc1 L_k4_nodma
    """)
    dma_chunk()
    a.label("L_k4_nodma")
    ops = norm_ops(ar[0], an[0])
    a(f"v_mfma_f32_32x32x16_bf16 {v(acc[0],16)}, {v(wf[1],4)}, {v(an[1],4)}, {v(acc[0],16)}")
    a(f"v_mfma_f32_32x32x16_bf16 {v(acc[1],16)}, {v(wf[1]+4,4)}, {v(an[1],4)}, {v(acc[1],16)}")
    a("s_waitcnt lgkmcnt(13)")
    k = 0
    for j in range(2, 6):
        a(f"v_mfma_f32_32x32x16_bf16 {v(acc[j],16)}, {v(wf[1]+4*j,4)}, {v(an[1],4)}, {v(acc[j],16)}")
        for _ in range(4):
            a(ops[k]); k += 1
    a(f"""
    s_add_u32 s{sC}, s{sC}, 1
    s_cmp_lt_u32 s{sC}, 16
    s_cbranch_scc1 L_k4_loop
    """)
    c0 = -2.0 * math.sqrt(2.0 / math.pi) * math.log2(math.e)
    c1 = c0 * 0.044715
    kc = wf[0]
    a(f"""
    s_waitcnt lgkmcnt(0)
    v_mov_b32 v{kc}, {hexf(c1)}
    v_mov_b32 v{kc+1}, {hexf(c0)}
    v_mov_b32 v{kc+2}, 1.0
    s_lshl_b32 s{sT0}, s{sRb}, 2
    s_add_u32 s{sT0}, s{sT0}, s{sWave}
    s_mul_i32 s{sT0}, s{sT0}, 86
    s_mul_i32 s{sT1}, s{sCg}, 6
    s_add_u32 s{sT0}, s{sT0}, s{sT1}
    s_lshl_b32 s{sT0}, s{sT0}, 10
    s_add_u32 s{sT0}, s{sT0}, {hex(GF)}
    s_mov_b32 s{sC}, 0
    s_cmp_eq_u32 s{sCg}, 14
    s_cselect_b32 s{sIss}, 1, 3
    """)
    z = wf[1]
    o = wf[0] + 8
    g = acc[0]; u = acc[3]
    a.label("L_k4_epi")
    for r in range(0, 16, 2):
        a(f"v_pk_mul_f32 {v(z+r,2)}, {v(g+r,2)}, {v(g+r,2)}")
    for r in range(0, 16, 2):
        a(f"v_pk_fma_f32 {v(z+r,2)}, {v(z+r,2)}, {v(kc,2)}, {v(kc,2)} op_sel:[0,0,1] op_sel_hi:[1,0,1]")
    for r in range(0, 16, 2):
        a(f"v_pk_mul_f32 {v(z+r,2)}, {v(z+r,2)}, {v(g+r,2)}")
    for r in range(16):
        a(f"v_exp_f32 v{z+r}, v{z+r}")
    for r in range(0, 16, 2):
        a(f"v_pk_mul_f32 {v(g+r,2)}, {v(g+r,2)}, {v(u+r,2)}")
    for r in range(0, 16, 2):
        a(f"v_pk_add_f32 {v(z+r,2)}, {v(z+r,2)}, {v(kc+2,2)} op_sel_hi:[1,0]")
    for r in range(16):
        a(f"v_rcp_f32 v{z+r}, v{z+r}")
    a("s_nop 0")
    for r in range(0, 16, 2):
        a(f"v_pk_mul_f32 {v(g+r,2)}, {v(g+r,2)}, {v(z+r,2)}")
    for r in range(8):
        a(f"v_cvt_pk_bf16_f32 v{o+r}, v{g+2*r}, v{g+2*r+1}")
    a(f"""
    buffer_store_dwordx4 {v(o,4)}, v{l16}, s[{SWS}:{SWS+3}], s{sT0} offen
    buffer_store_dwordx4 {v(o+4,4)}, v{l16}, s[{SWS}:{SWS+3}], s{sT0} offen offset:1024
    s_add_u32 s{sT0}, s{sT0}, 2048
    s_add_u32 s{sC}, s{sC}, 1
    s_cmp_ge_u32 s{sC}, s{sIss}
    s_cbranch_scc1 L_k4_end
    """)
    for base in (acc[0], acc[3]):
        for r in range(0, 32, 2):
            a(f"v_pk_mov_b32 {v(base+r,2)}, {v(base+16+r,2)}, {v(base+16+r,2)} op_sel:[0,1]")
    a("s_branch L_k4_epi")
    a.label("L_k4_end")
    a("s_endpgm")
    a.label("L_k4_tailwait")
    for c in range(16 - NSLOT + 1, 14):
        a(f"""
        s_cmp_eq_u32 s{sC}, {c}
        s_cbranch_scc1 L_k4_tw{c}
        """)
    a("""
    s_waitcnt vmcnt(0) lgkmcnt(0)
    s_branch L_k4_back
    """)
    for c in range(16 - NSLOT + 1, 14):
        a.label(f"L_k4_tw{c}")
        a(f"""
        s_waitcnt vmcnt({5*(14-c)}) lgkmcnt(0)
        s_branch L_k4_back
        """)
    return name, V.hi, 240, 256, NSLOT * SLOT
```

```python
import sys
sys.path.insert(0, "gen")
from asmlib import *
from k1 import gen_k1
from k2 import gen_k2
from k35 import gen_splitk
from k4 import gen_k4

HEADER = """; Kernarg layout for this problem (80 bytes, ptrs only, base s[0:1]):
"""


def build(extra_empty=0):
    a = Asm()
    ks = [gen_k1(a), gen_k2(a), gen_splitk(a, "wo"), gen_k4(a), gen_splitk(a, "down")]
    if extra_empty:
        a.raw(".globl empty_kernel\n.p2align 8\n.type empty_kernel,@function")
        a.label("empty_kernel")
        a("s_endpgm")
    out = HEADER
    for name, vg, grid, block, lds in ks:
        out += f"; @launch kernel={name} grid=({grid},1,1) block=({block},1,1) lds={lds}\n"
    for i in range(extra_empty):
        out += "; @launch kernel=empty_kernel grid=(256,1,1) block=(256,1,1) lds=0\n"
    out += '.amdgcn_target "amdgcn-amd-amdhsa--gfx950"\n.text\n'
    out += a.text()
    out += '.section .rodata,"a"\n'
    for name, vg, grid, block, lds in ks:
        out += kernel_desc(name, vg, 96 if STAMP else 64)
    if extra_empty:
        out += kernel_desc("empty_kernel", 8, 16)
    return out


if __name__ == "__main__":
    path = sys.argv[1] if len(sys.argv) > 1 else "sequential_preLN__softmax_full_mha__geglu_ffn__prompt.s"
    ee = int(sys.argv[2]) if len(sys.argv) > 2 else 0
    open(path, "w").write(build(ee))
```

```python
import os, re
WARM = os.environ.get("WARM", "1") == "1"


def isize(l):
    op = l.split()[0]
    if op.startswith(("buffer_", "ds_", "global_", "v_mfma", "v_pk_", "v_dot", "s_load", "s_memtime", "s_memreal")):
        return 8
    if op.startswith("s_"):
        return 8 if re.search(r"0x[0-9a-f]+|\b\d{3,}\b", l) and not op.startswith(("s_waitcnt", "s_cbranch", "s_branch", "s_nop")) else 4
    return 8


class Asm:
    def __init__(self):
        self.lines = []
        self.uid = 0

    def __call__(self, s):
        for l in s.strip("\n").split("\n"):
            l = l.strip()
            if l:
                if self.pad_tag is not None:
                    if self.pad_bytes >= self.pad_every:
                        self.pad_here()
                    self.pad_bytes += isize(l)
                self.lines.append("    " + l)

    pad_tag = None

    def pads_begin(self, tag, every=440):
        self.pad_tag = tag
        self.pad_every = every
        self.pad_n = 0
        self.pad_bytes = 0
        self.pad_here()

    def pad_here(self):
        self.lines.append(f"@PAD {self.pad_tag} {self.pad_n}")
        self.pad_n += 1
        self.pad_bytes = 4

    def pads_end(self, nchain):
        tag, n = self.pad_tag, self.pad_n
        out = []
        for l in self.lines:
            if l.startswith(f"@PAD {tag} "):
                i = int(l.split()[2])
                if not WARM:
                    continue
                tgt = f"L_{tag}_pad{i+nchain}" if i + nchain < n else f"L_{tag}_wret"
                out.append(f"L_{tag}_pad{i}:")
                out.append(f"    s_cbranch_execz {tgt}")
            elif l.startswith(f"@WARM {tag} "):
                sreg = l.split()[2]
                if not WARM:
                    continue
                out.append("    s_mov_b64 exec, 0")
                for c in range(min(nchain, n)):
                    out.append(f"    s_cmp_eq_u32 {sreg}, {c}")
                    out.append(f"    s_cbranch_scc1 L_{tag}_pad{c}")
                out.append(f"L_{tag}_wret:")
                out.append("    s_mov_b64 exec, -1")
            else:
                out.append(l)
        self.lines = out
        self.pad_tag = None

    def warm(self, tag, sreg):
        self.lines.append(f"@WARM {tag} s{sreg}")

    def label(self, name):
        self.lines.append(name + ":")

    def raw(self, s):
        self.lines.append(s)

    def newlabel(self, base):
        self.uid += 1
        return f"L_{base}_{self.uid}"

    def text(self):
        return "\n".join(self.lines) + "\n"


class Regs:
    def __init__(self, start, limit, kind):
        self.n = start
        self.limit = limit
        self.kind = kind
        self.hi = start

    def alloc(self, cnt=1, align=1):
        self.n = (self.n + align - 1) // align * align
        r = self.n
        self.n += cnt
        assert self.n <= self.limit, f"out of {self.kind} regs"
        self.hi = max(self.hi, self.n)
        return r

    def mark(self):
        return self.n

    def release(self, m):
        self.n = m


def v(r, n=1):
    return f"v{r}" if n == 1 else f"v[{r}:{r+n-1}]"


def s(r, n=1):
    return f"s{r}" if n == 1 else f"s[{r}:{r+n-1}]"


def kernel_desc(name, vgpr, sgpr=96):
    vg = (vgpr + 7) // 8 * 8
    acc = (vg + 3) // 4 * 4
    return f""".p2align 6
.amdhsa_kernel {name}
  .amdhsa_next_free_vgpr {vg}
  .amdhsa_next_free_sgpr {sgpr}
  .amdhsa_accum_offset {acc}
  .amdhsa_group_segment_fixed_size 0
  .amdhsa_kernarg_size 80
  .amdhsa_user_sgpr_count 2
  .amdhsa_user_sgpr_kernarg_segment_ptr 1
  .amdhsa_system_sgpr_workgroup_id_x 1
.end_amdhsa_kernel
"""


def f32bits(x):
    import struct
    return struct.unpack("<I", struct.pack("<f", x))[0]


def hexf(x):
    return "0x%08x" % f32bits(x)


import os
STAMP = os.environ.get("STAMP", "0") == "1"
DBGOFF = 32 << 20


def stamp(a, i):
    if STAMP:
        a(f"s_memtime s[{64+2*i}:{65+2*i}]")


def stamp_real(a, i):
    if STAMP:
        a(f"s_memrealtime s[{64+2*i}:{65+2*i}]")


def stamp_flush(a, kidx, wsptr, swave, nw):
    if not STAMP:
        return
    a(f"""
    s_waitcnt vmcnt(0) lgkmcnt(0)
    s_memtime s[76:77]
    s_memrealtime s[78:79]
    s_mov_b32 s80, s{wsptr}
    s_mov_b32 s81, s{wsptr+1}
    s_mov_b32 s82, 0x4000000
    s_mov_b32 s83, 0x00020000
    s_add_u32 s84, s2, {kidx*256}
    s_lshl_b32 s84, s84, 3
    s_add_u32 s84, s84, s{swave}
    s_lshl_b32 s84, s84, 5
    s_add_u32 s84, s84, {hex(DBGOFF)}
    s_waitcnt lgkmcnt(0)
    v_mov_b32 v8, s64
    v_mov_b32 v9, s66
    v_mov_b32 v10, s68
    v_mov_b32 v11, s70
    v_mov_b32 v12, s72
    v_mov_b32 v13, s74
    v_mov_b32 v14, s76
    v_mov_b32 v15, s78
    v_mov_b32 v1, 0
    buffer_store_dwordx4 v[8:11], v1, s[80:83], s84 offen
    buffer_store_dwordx4 v[12:15], v1, s[80:83], s84 offen offset:16
    """)


def trace_init(a, vt):
    if STAMP:
        a(f"v_mov_b32 v{vt}, 0")


def trace(a, vt, sidx):
    if STAMP:
        a(f"""
        s_memtime s[90:91]
        s_waitcnt lgkmcnt(0)
        s_mov_b32 s92, m0
        s_mov_b32 m0, s{sidx}
        s_nop 0
        v_writelane_b32 v{vt}, s90, m0
        s_mov_b32 m0, s92
        """)


def trace_flush(a, vt, kidx, wsptr, swave, wsel, lane):
    if STAMP:
        lab = a.newlabel("tf")
        a(f"""
        s_cmp_lg_u32 s{swave}, {wsel}
        s_cbranch_scc1 {lab}
        s_mov_b32 s80, s{wsptr}
        s_mov_b32 s81, s{wsptr+1}
        s_mov_b32 s82, 0x4000000
        s_mov_b32 s83, 0x00020000
        s_add_u32 s84, s2, {kidx*256}
        s_lshl_b32 s84, s84, 8
        s_add_u32 s84, s84, {hex(DBGOFF + (1 << 20))}
        v_lshlrev_b32 v{lane}, 2, v{lane}
        s_nop 1
        buffer_store_dword v{vt}, v{lane}, s[80:83], s84 offen
        """)
        a.label(lab)
```

```python
from asmlib import *
import math, os

QF = 0
KF = 2 << 20
VF = 4 << 20
OF = 6 << 20
HF = 8 << 20
GF = 10 << 20
WS_SIZE = 16 << 20

EPS = 1e-5
QSCALE = 0.25 * math.log2(math.e)


def srd(a, dst, ptr, nbytes):
    a(f"""
    s_mov_b32 s{dst}, s{ptr}
    s_mov_b32 s{dst+1}, s{ptr+1}
    s_mov_b32 s{dst+2}, {hex(nbytes)}
    s_mov_b32 s{dst+3}, 0x00020000
    """)


def half_sum(a, r, t):
    a(f"""
    v_mov_b32 v{t}, v{r}
    s_nop 1
    v_permlane32_swap_b32 v{r}, v{t}
    s_nop 1
    v_add_f32 v{r}, v{r}, v{t}
    """)


def gen_k1(a):
    name = "qkv_kernel"
    V = Regs(1, 256, "v")
    a.raw(f".globl {name}\n.p2align 8\n.type {name},@function")
    a.label(name)
    SX, SW, SWS = 12, 16, 20
    sWave, sRb, sCg, sTt, sCh = 24, 25, 26, 27, 28
    sXo, sWo, sDm, sC, sRd, sOne, sA, sB, sT0, sT1 = 29, 30, 31, 32, 33, 34, 35, 36, 37, 38
    sWb, sCk, sIs, sRk = 40, 41, 42, 43
    WR = 0x10000
    WSL = 24576
    NT = os.environ.get("K1NT", "")
    MAP = os.environ.get("K1MAP", "84")
    a(f"""
    s_cmp_ge_u32 s2, 256
    s_cbranch_scc1 L_k1_end
    s_load_dwordx4 s[4:7], s[0:1], 0
    s_load_dwordx2 s[8:9], s[0:1], 72
    """)
    stamp(a, 0); stamp_real(a, 5)
    lane = V.alloc(); t0 = V.alloc(); t1 = V.alloc(); t2 = V.alloc()
    xd = V.alloc(); wd0 = V.alloc(); wd1 = V.alloc(); xw = V.alloc()
    xa = [V.alloc() for _ in range(4)]
    wa = V.alloc()
    cx = [V.alloc() for _ in range(4)]
    cw = V.alloc()
    X = V.alloc(64, 4)
    a(f"""
    v_lshrrev_b32 v{t0}, 6, v0
    v_and_b32 v{lane}, 63, v0
    s_and_b32 s{sT0}, s2, 7
    v_readfirstlane_b32 s{sWave}, v{t0}
    s_lshr_b32 s{sT1}, s2, 3
    """)
    if MAP == "84":
        a(f"""
        s_and_b32 s{sRb}, s{sT0}, 3
        s_lshl_b32 s{sRb}, s{sRb}, 3
        s_and_b32 s{sCg}, s{sT1}, 7
        s_add_u32 s{sRb}, s{sRb}, s{sCg}
        s_lshr_b32 s{sCg}, s{sT0}, 2
        s_lshl_b32 s{sCg}, s{sCg}, 2
        s_lshr_b32 s{sT1}, s{sT1}, 3
        s_add_u32 s{sCg}, s{sCg}, s{sT1}
        s_and_b32 s{sCk}, s{sRb}, 7
        """)
    else:
        a(f"""
        s_lshl_b32 s{sRb}, s{sT0}, 2
        s_and_b32 s{sCg}, s{sT1}, 3
        s_add_u32 s{sRb}, s{sRb}, s{sCg}
        s_lshl_b32 s{sCk}, s{sCg}, 1
        s_lshr_b32 s{sCg}, s{sT1}, 2
        """)
    a(f"""
    v_lshrrev_b32 v{t0}, 3, v{lane}
    v_and_b32 v{t1}, 7, v{lane}
    v_lshlrev_b32 v{xd}, 10, v{t0}
    v_lshl_add_u32 v{xd}, v{t1}, 4, v{xd}
    s_lshl_b32 s{sXo}, s{sRb}, 16
    s_lshl_b32 s{sT0}, s{sWave}, 14
    s_add_u32 s{sXo}, s{sXo}, s{sT0}
    s_add_u32 s{sA}, s{sXo}, 8192
    s_waitcnt lgkmcnt(0)
    """)
    srd(a, SX, 4, 2048 * 512 * 2)
    stamp(a, 1)
    for gi in range(2):
        for i in range(8):
            a(f"buffer_load_dwordx4 {v(X+32*gi+4*i,4)}, v{xd}, s[{SX}:{SX+3}], s{sA if gi else sXo} offen offset:{i*128} {NT}")
    srd(a, SW, 6, 512 * 1536 * 2)
    srd(a, SWS, 8, WS_SIZE)
    a(f"""
    s_and_b32 s{sTt}, s{sWave}, 1
    s_lshr_b32 s{sCh}, s{sWave}, 1
    s_lshl_b32 s{sWb}, s{sCg}, 7
    s_mov_b32 s{sRk}, s{sCk}
    s_mov_b32 s{sDm}, 0
    s_mul_i32 s{sB}, s{sWave}, 6144
    s_add_u32 s{sB}, s{sB}, {WR}
    s_lshl_b32 s{sT0}, s{sWave}, 4
    v_lshrrev_b32 v{t2}, 2, v{lane}
    v_add_u32 v{t2}, s{sT0}, v{t2}
    v_mul_u32_u24 v{t2}, 3072, v{t2}
    v_and_b32 v{wd1}, 3, v{lane}
    v_lshl_add_u32 v{wd0}, v{wd1}, 4, v{t2}
    v_add_u32 v{wd1}, 64, v{wd0}
    s_mov_b32 s{sIs}, 0
    """)

    def dma_b():
        return f"""
        s_cmp_lt_u32 s{sIs}, 8
        s_cselect_b32 s{SW+2}, {hex(512*3072)}, 0
        s_mul_i32 s{sWo}, s{sCk}, {64*3072}
        s_add_u32 m0, s{sDm}, s{sB}
        s_add_u32 s{sWo}, s{sWo}, s{sWb}
        s_add_u32 s{sCk}, s{sCk}, 1
        buffer_load_dwordx4 v{wd0}, s[{SW}:{SW+3}], s{sWo} offen {NT} lds
        buffer_load_dwordx4 v{wd0}, s[{SW}:{SW+3}], s{sWo} offen offset:1024 {NT} lds
        buffer_load_dwordx4 v{wd0}, s[{SW}:{SW+3}], s{sWo} offen offset:2048 {NT} lds
        s_and_b32 s{sCk}, s{sCk}, 7
        """

    def dma_c():
        return f"""
        s_add_u32 m0, m0, 3072
        s_add_u32 s{sDm}, s{sDm}, {WSL}
        buffer_load_dwordx4 v{wd1}, s[{SW}:{SW+3}], s{sWo} offen {NT} lds
        buffer_load_dwordx4 v{wd1}, s[{SW}:{SW+3}], s{sWo} offen offset:1024 {NT} lds
        buffer_load_dwordx4 v{wd1}, s[{SW}:{SW+3}], s{sWo} offen offset:2048 {NT} lds
        s_cmp_ge_u32 s{sDm}, {4*WSL}
        s_cselect_b32 s{sDm}, 0, s{sDm}
        s_add_u32 s{sIs}, s{sIs}, 1
        """

    a(f"""
    v_xor_b32 v{t2}, v{t0}, v{t1}
    v_lshlrev_b32 v{t2}, 4, v{t2}
    v_lshl_add_u32 v{t2}, v{t1}, 9, v{t2}
    s_lshl_b32 s{sT0}, s{sCh}, 15
    s_lshl_b32 s{sT1}, s{sTt}, 8
    s_add_u32 s{sT0}, s{sT0}, s{sT1}
    v_add_u32 v{xw}, s{sT0}, v{t2}
    v_and_b32 v{t0}, 31, v{lane}
    v_lshrrev_b32 v{t2}, 5, v{lane}
    v_xor_b32 v{t1}, v{t0}, v{t2}
    v_lshlrev_b32 v{t1}, 4, v{t1}
    v_lshl_add_u32 v{t1}, v{t2}, 9, v{t1}
    s_lshl_b32 s{sT0}, s{sTt}, 15
    v_add_u32 v{xa[0]}, s{sT0}, v{t1}
    v_xor_b32 v{xa[1]}, 32, v{xa[0]}
    v_xor_b32 v{xa[2]}, 64, v{xa[0]}
    v_xor_b32 v{xa[3]}, 96, v{xa[0]}
    s_mul_i32 s{sT0}, s{sCh}, 3072
    s_add_u32 s{sT0}, s{sT0}, {WR}
    v_lshlrev_b32 v{t0}, 9, v{t2}
    v_bfe_u32 v{t1}, v{lane}, 2, 2
    v_lshl_add_u32 v{t0}, v{t1}, 6, v{t0}
    v_bfe_u32 v{t1}, v{lane}, 4, 1
    v_lshl_add_u32 v{t0}, v{t1}, 5, v{t0}
    v_and_b32 v{t1}, 3, v{lane}
    v_lshl_add_u32 v{t0}, v{t1}, 3, v{t0}
    v_add_u32 v{wa}, s{sT0}, v{t0}
    s_mov_b32 s{sOne}, 0x3f803f80
    s_lshl_b32 s{sT0}, s{sRk}, 12
    """)
    acc = [V.alloc(16, 4) for _ in range(3)]
    fr = [V.alloc(16, 4) for _ in range(2)]
    st = V.alloc(4, 2)
    rs = V.alloc(2, 2); nmr = V.alloc(2, 2)
    un = V.alloc(8, 2)
    for r in range(48):
        a(f"v_mov_b32 v{acc[0]+r}, 0")
    for i in range(4):
        a(f"v_add_u32 v{cx[i]}, s{sT0}, v{xa[i]}")
    a(f"v_mov_b32 v{cw}, v{wa}")
    a(dma_b()); a(dma_c())

    def ln_group(gi, inter):
        B = X + 32 * gi
        for r in range(4):
            a(f"v_mov_b32 v{st+r}, 0")
        for r in range(32):
            a(f"v_dot2_f32_bf16 v{st+(r&1)*2}, v{B+r}, s{sOne}, v{st+(r&1)*2}")
            a(f"v_dot2_f32_bf16 v{st+1+(r&1)*2}, v{B+r}, v{B+r}, v{st+1+(r&1)*2}")
        a(inter[0])
        a(f"""
        v_add_f32 v{st}, v{st}, v{st+2}
        v_add_f32 v{st+1}, v{st+1}, v{st+3}
        s_nop 0
        v_add_f32_dpp v{st}, v{st}, v{st} quad_perm:[1,0,3,2] row_mask:0xf bank_mask:0xf
        v_add_f32_dpp v{st+1}, v{st+1}, v{st+1} quad_perm:[1,0,3,2] row_mask:0xf bank_mask:0xf
        s_nop 0
        v_add_f32_dpp v{st}, v{st}, v{st} quad_perm:[2,3,0,1] row_mask:0xf bank_mask:0xf
        v_add_f32_dpp v{st+1}, v{st+1}, v{st+1} quad_perm:[2,3,0,1] row_mask:0xf bank_mask:0xf
        s_nop 0
        v_add_f32_dpp v{st}, v{st}, v{st} row_half_mirror row_mask:0xf bank_mask:0xf
        v_add_f32_dpp v{st+1}, v{st+1}, v{st+1} row_half_mirror row_mask:0xf bank_mask:0xf
        v_mul_f32 v{st}, {hexf(1.0/512)}, v{st}
        v_mul_f32 v{st+1}, {hexf(1.0/512)}, v{st+1}
        v_fma_f32 v{st+1}, -v{st}, v{st}, v{st+1}
        v_max_f32 v{st+1}, 0, v{st+1}
        v_add_f32 v{st+1}, {hexf(EPS)}, v{st+1}
        v_rsq_f32 v{rs}, v{st+1}
        s_nop 0
        v_mul_f32 v{nmr}, v{st}, v{rs}
        v_sub_f32 v{nmr}, 0, v{nmr}
        """)
        for i in range(8):
            for r in range(4):
                a(f"v_lshlrev_b32 v{un+2*r}, 16, v{B+4*i+r}")
                a(f"v_and_b32 v{un+2*r+1}, 0xffff0000, v{B+4*i+r}")
            for r in range(4):
                a(f"v_pk_fma_f32 {v(un+2*r,2)}, {v(un+2*r,2)}, {v(rs,2)}, {v(nmr,2)} op_sel_hi:[1,0,0]")
            for r in range(4):
                a(f"v_cvt_pk_bf16_f32 v{B+4*i+r}, v{un+2*r}, v{un+2*r+1}")
            a(f"ds_write_b128 v{xw}, {v(B+4*i,4)} offset:{i*4096+gi*128}")
            if i == 3:
                a(inter[1])

    a("s_waitcnt vmcnt(14)")
    stamp(a, 2)
    ln_group(0, (dma_b(), dma_c()))
    a("s_waitcnt vmcnt(12)")
    ln_group(1, (dma_b(), dma_c()))

    def reads(s4, f):
        a(f"ds_read_b128 {v(f,4)}, v{cx[s4]} offset:{s4*1024}")
        for seg in range(3):
            for jj in range(2):
                a(f"ds_read_b64_tr_b16 {v(f+4+4*seg+2*jj,2)}, v{cw} offset:{s4*6144+seg*1024+jj*256}")

    def compute(f):
        a(f"v_mfma_f32_32x32x16_bf16 {v(acc[0],16)}, {v(f+4,4)}, {v(f,4)}, {v(acc[0],16)}")
        a(f"v_mfma_f32_32x32x16_bf16 {v(acc[1],16)}, {v(f+8,4)}, {v(f,4)}, {v(acc[1],16)}")
        a(f"v_mfma_f32_32x32x16_bf16 {v(acc[2],16)}, {v(f,4)}, {v(f+12,4)}, {v(acc[2],16)}")

    a(f"""
    s_mov_b32 s{sC}, 0
    s_mov_b32 s{sRd}, 0
    s_waitcnt vmcnt(12) lgkmcnt(0)
    s_barrier
    """)
    stamp(a, 3)
    if STAMP: a("s_waitcnt lgkmcnt(0)")
    reads(0, fr[0])
    a.label("L_k1_loop")
    reads(1, fr[1])
    a("s_waitcnt lgkmcnt(7)")
    compute(fr[0])
    a(dma_b())
    reads(2, fr[0])
    a("s_waitcnt lgkmcnt(7)")
    compute(fr[1])
    a(dma_c())
    reads(3, fr[1])
    a("s_waitcnt lgkmcnt(7)")
    compute(fr[0])
    a(f"""
    s_add_u32 s{sRd}, s{sRd}, {WSL}
    s_cmp_ge_u32 s{sRd}, {4*WSL}
    s_cselect_b32 s{sRd}, 0, s{sRd}
    s_add_u32 s{sRk}, s{sRk}, 1
    s_and_b32 s{sRk}, s{sRk}, 7
    s_lshl_b32 s{sT0}, s{sRk}, 12
    """)
    for i in range(4):
        a(f"v_add_u32 v{cx[i]}, s{sT0}, v{xa[i]}")
    a(f"v_add_u32 v{cw}, s{sRd}, v{wa}")
    a(f"""
    s_waitcnt vmcnt(12) lgkmcnt(0)
    s_barrier
    """)
    reads(0, fr[0])
    compute(fr[1])
    a(f"""
    s_add_u32 s{sC}, s{sC}, 1
    s_cmp_lt_u32 s{sC}, 8
    s_cbranch_scc1 L_k1_loop
    """)
    stamp(a, 4)
    l16 = V.alloc(); vv = V.alloc()
    a(f"""
    v_lshlrev_b32 v{l16}, 4, v{lane}
    v_lshrrev_b32 v{t2}, 5, v{lane}
    v_bfe_u32 v{t0}, v{lane}, 4, 1
    v_lshlrev_b32 v{vv}, 16, v{t0}
    v_lshl_add_u32 v{vv}, v{t2}, 8, v{vv}
    v_and_b32 v{t0}, 3, v{lane}
    v_lshl_add_u32 v{vv}, v{t0}, 4, v{vv}
    v_bfe_u32 v{t0}, v{lane}, 2, 1
    v_lshl_add_u32 v{vv}, v{t0}, 7, v{vv}
    v_bfe_u32 v{t0}, v{lane}, 3, 1
    v_lshl_add_u32 v{vv}, v{t0}, 6, v{vv}
    s_lshl_b32 s{sT0}, s{sCg}, 2
    s_lshl_b32 s{sT1}, s{sCh}, 1
    s_add_u32 s{sT0}, s{sT0}, s{sT1}
    s_lshl_b32 s{sT0}, s{sT0}, 6
    s_lshl_b32 s{sT1}, s{sRb}, 1
    s_add_u32 s{sT0}, s{sT0}, s{sT1}
    s_add_u32 s{sT0}, s{sT0}, s{sTt}
    s_lshl_b32 s{sT0}, s{sT0}, 10
    s_mov_b32 s{sOne}, {hexf(QSCALE)}
    """)
    o = X
    for r in range(8):
        a(f"v_cvt_pk_bf16_f32 v{o+8+r}, v{acc[1]+2*r}, v{acc[1]+2*r+1}")
    a(f"""
    s_add_u32 s{sA}, s{sT0}, {hex(KF)}
    s_add_u32 s{sB}, s{sT0}, {hex(KF+65536)}
    s_add_u32 s{sT1}, s{sT0}, {hex(VF)}
    buffer_store_dwordx4 {v(o+8,4)}, v{l16}, s[{SWS}:{SWS+3}], s{sA} offen
    buffer_store_dwordx4 {v(o+12,4)}, v{l16}, s[{SWS}:{SWS+3}], s{sB} offen
    """)
    for r in range(8):
        a(f"v_cvt_pk_bf16_f32 v{o+16+r}, v{acc[2]+2*r}, v{acc[2]+2*r+1}")
    a(f"""
    buffer_store_dwordx4 {v(o+16,4)}, v{vv}, s[{SWS}:{SWS+3}], s{sT1} offen
    buffer_store_dwordx4 {v(o+20,4)}, v{vv}, s[{SWS}:{SWS+3}], s{sT1} offen offset:512
    s_add_u32 s{sB}, s{sT0}, {hex(QF+65536)}
    """)
    for r in range(16):
        a(f"v_mul_f32 v{acc[0]+r}, s{sOne}, v{acc[0]+r}")
    for r in range(8):
        a(f"v_cvt_pk_bf16_f32 v{o+r}, v{acc[0]+2*r}, v{acc[0]+2*r+1}")
    assert QF == 0
    a(f"""
    buffer_store_dwordx4 {v(o,4)}, v{l16}, s[{SWS}:{SWS+3}], s{sT0} offen
    buffer_store_dwordx4 {v(o+4,4)}, v{l16}, s[{SWS}:{SWS+3}], s{sB} offen
    """)
    stamp_flush(a, 0, 8, sWave, 4)
    a.label("L_k1_end")
    a("s_endpgm")
    return name, V.hi, 256, 256, WR + 4 * WSL
```

```python
from asmlib import *
import os
from k1 import QF, KF, VF, OF, WS_SIZE, srd
from k35 import tr_addr, CS, CSM, MAP5

ONES = 0x20000
XCH = 0x21000
FLAG = XCH + 8 * 9 * 256
MXS = FLAG + 64
LDS_K2 = MXS + 8 * 2 * 256


def gen_k2(a):
    name = "attn_kernel"
    V = Regs(1, 256, "v")
    a.raw(f".globl {name}\n.p2align 8\n.type {name},@function")
    a.label(name)
    SWS = 12
    sWave, sHead, sQb, sQp, sKh, sIt, sT0, sT1, sG, sPass = 16, 17, 18, 19, 20, 21, 22, 23, 24, 25
    a(f"""
    s_cmp_ge_u32 s2, 256
    s_cbranch_scc1 L_k2_end
    s_load_dwordx2 s[8:9], s[0:1], 72
    s_load_dwordx16 s[32:47], s[0:1], 0
    """)
    stamp(a, 0); stamp_real(a, 5)
    lane = V.alloc(); t0 = V.alloc(); t1 = V.alloc(); l16 = V.alloc()
    ka = V.alloc(); va = V.alloc(); vs = V.alloc(); ka0 = V.alloc(); va0 = V.alloc()
    one = V.alloc(2, 2)
    Q = [V.alloc(4, 4) for _ in range(2)]
    M = [V.alloc(16, 4) for _ in range(2)]
    S = [V.alloc(16, 4) for _ in range(2)]
    O = [V.alloc(16, 4) for _ in range(2)]
    P = V.alloc(8, 4)
    Kf = [V.alloc(4, 4) for _ in range(2)]
    Vf = [V.alloc(8, 4) for _ in range(2)]
    a(f"""
    v_lshrrev_b32 v{t0}, 6, v0
    v_and_b32 v{lane}, 63, v0
    s_and_b32 s{sT0}, s2, 7
    v_readfirstlane_b32 s{sWave}, v{t0}
    s_lshr_b32 s{sT1}, s2, 3
    s_lshl_b32 s{sHead}, s{sT0}, 2
    s_and_b32 s{sT0}, s{sT1}, 3
    s_add_u32 s{sHead}, s{sHead}, s{sT0}
    s_lshr_b32 s{sQb}, s{sT1}, 2
    v_lshlrev_b32 v{l16}, 4, v{lane}
    s_and_b32 s{sQp}, s{sWave}, 3
    s_lshr_b32 s{sKh}, s{sWave}, 2
    """)
    a(f"""
    s_cmp_eq_u32 s{sWave}, 8
    s_cbranch_scc1 L_k2_svc
    s_lshl_b32 s{sT0}, s{sHead}, 16
    s_lshl_b32 s{sIt}, s{sQb}, 13
    s_add_u32 s{sT0}, s{sT0}, s{sIt}
    s_lshl_b32 s{sIt}, s{sQp}, 11
    s_add_u32 s{sT0}, s{sT0}, s{sIt}
    s_movk_i32 s{sG}, 0x43
    s_waitcnt lgkmcnt(0)
    """)
    assert QF == 0 and VF == KF + (2 << 20)
    srd(a, SWS, 8, WS_SIZE)
    stamp(a, 1)
    a(f"""
    buffer_load_dwordx4 {v(Q[0],4)}, v{l16}, s[{SWS}:{SWS+3}], s{sT0} offen
    buffer_load_dwordx4 {v(Q[1],4)}, v{l16}, s[{SWS}:{SWS+3}], s{sT0} offen offset:1024
    """)
    a.warm("k2", sWave)
    initzero = "\n".join([f"v_mov_b32 v{O[q]+r}, 0" for q in range(2) for r in range(16)] +
                         [f"v_mov_b32 v{P+4+r}, 0" for r in range(4)] + [f"v_mov_b32 v{Vf[1]+4+r}, 0" for r in range(4)])
    a(f"""
    v_mov_b32 v{one}, 0x3f803f80
    v_mov_b32 v{one+1}, 0x3f803f80
    v_lshlrev_b32 v{t0}, 3, v0
    v_add_u32 v{t0}, {hex(ONES)}, v{t0}
    ds_write_b64 v{t0}, {v(one,2)}
    s_lshl_b32 s{sT0}, s{sKh}, 15
    v_add_u32 v{ka0}, s{sT0}, v{l16}
    v_and_b32 v{t0}, 15, v{lane}
    v_lshlrev_b32 v{t0}, 4, v{t0}
    v_lshrrev_b32 v{t1}, 5, v{lane}
    v_lshl_add_u32 v{t1}, v{t1}, 8, v{t0}
    s_add_u32 s{sT0}, s{sT0}, 0x10000
    v_add_u32 v{t1}, s{sT0}, v{t1}
    v_add_u32 v{t0}, {hex(ONES-1024)}, v{t0}
    v_and_b32 v{vs}, 16, v{lane}
    v_cmp_eq_u32 vcc, 0, v{vs}
    v_mov_b32 v{vs}, 0x1000
    s_mov_b32 s{sPass}, 0
    v_cndmask_b32 v{va0}, v{t0}, v{t1}, vcc
    v_cndmask_b32 v{vs}, 0, v{vs}, vcc
    {initzero}
    s_waitcnt vmcnt(0) lgkmcnt(0)
    """)
    a.pads_begin("k2")
    a(f"""
    s_barrier
    ds_read_b128 {v(Kf[1],4)}, v{l16}
    s_waitcnt lgkmcnt(0)
    v_mfma_f32_32x32x16_bf16 {v(S[0],16)}, {v(Kf[1],4)}, {v(Q[0],4)}, 0
    v_mfma_f32_32x32x16_bf16 {v(S[1],16)}, {v(Kf[1],4)}, {v(Q[1],4)}, 0
    s_nop 7
    s_nop 3
    """)

    def max16(dst, src):
        a(f"v_max3_f32 v{dst}, v{src}, v{src+1}, v{src+2}")
        for i in range(3, 15, 2):
            a(f"v_max3_f32 v{dst}, v{dst}, v{src+i}, v{src+i+1}")
        a(f"v_max_f32 v{dst}, v{dst}, v{src+15}")

    def half_max(r, t):
        a(f"""
        v_mov_b32 v{t}, v{r}
        s_nop 1
        v_permlane32_swap_b32 v{r}, v{t}
        s_nop 1
        v_max_f32 v{r}, v{r}, v{t}
        """)

    mx = [V.alloc(), V.alloc()]
    max16(mx[0], S[0])
    max16(mx[1], S[1])
    half_max(mx[0], t0)
    half_max(mx[1], t1)
    a.label("L_k2_start")
    for q in range(2):
        a(f"v_sub_f32 v{M[q]}, 0, v{mx[q]}")
        for r in range(1, 16):
            a(f"v_sub_f32 v{M[q]+r}, 0, v{mx[q]}")
    a(f"""
    v_mov_b32 v{ka}, v{ka0}
    v_mov_b32 v{va}, v{va0}
    v_add_u32 v{t0}, 1024, v{va0}
    ds_read_b128 {v(Kf[0],4)}, v{ka}
    """)
    a(f"""
    v_lshrrev_b32 v{t1}, 2, v{vs}
    v_sub_u32 v{t0}, v{t0}, v{t1}
    s_nop 0
    ds_read_b128 {v(Vf[0],4)}, v{t0}
    ds_read_b128 {v(Vf[0]+4,4)}, v{t0} offset:512
    """)
    a(f"""
    s_mov_b32 s{sIt}, 0
    s_waitcnt lgkmcnt(0)
    v_mfma_f32_32x32x16_bf16 {v(S[0],16)}, {v(Kf[0],4)}, {v(Q[0],4)}, {v(M[0],16)}
    s_nop 7
    s_nop 3
    """)
    stamp(a, 2)
    if STAMP: a("s_waitcnt lgkmcnt(0)")
    a.raw(".p2align 6")
    a.label("L_k2_loop")
    for u in range(8):
        t = u >> 1
        q = u & 1
        Sx = S[q]
        e = lambda i: a(f"v_exp_f32 v{Sx+i}, v{Sx+i}")
        c = lambda j: a(f"v_cvt_pk_bf16_f32 v{P+j}, v{Sx+2*j}, v{Sx+2*j+1}")
        tp = (u - 1) >> 1
        qp = (u - 1) & 1
        tn = (u + 1) >> 1
        qn = (u + 1) & 1
        e(0); e(1)
        a(f"v_mfma_f32_32x32x16_bf16 {v(O[qp],16)}, {v(Vf[tp&1]+4,4)}, {v(P+4,4)}, {v(O[qp],16)}")
        if q == 0:
            if t == 3:
                a(f"""
                s_bitcmp1_b32 s{sG}, s{sIt}
                s_cbranch_scc0 L_k2_syncback
                s_barrier
                """)
                a.label("L_k2_syncback")
            a(f"""
            ds_read_b128 {v(Kf[(t+1)&1],4)}, v{ka} offset:{(t+1)*1024}
            ds_read_b128 {v(Vf[(t+1)&1],4)}, v{va} offset:{(t+1)*1024}
            ds_read_b128 {v(Vf[(t+1)&1]+4,4)}, v{va} offset:{(t+1)*1024+512}
            """)
        e(2); e(3); c(0); c(1); e(4); e(5)
        if q == 1:
            a("s_waitcnt lgkmcnt(0)")
        a(f"v_mfma_f32_32x32x16_bf16 {v(S[qn],16)}, {v(Kf[tn&1],4)}, {v(Q[qn],4)}, {v(M[qn],16)}")
        e(6); e(7); c(2); c(3); e(8); e(9); e(10)
        a(f"v_mfma_f32_32x32x16_bf16 {v(O[q],16)}, {v(Vf[t&1],4)}, {v(P,4)}, {v(O[q],16)}")
        e(11); c(4); c(5); e(12); e(13)
        if u == 7:
            a(f"""
            v_add_u32 v{ka}, 0x1000, v{ka}
            v_add_u32 v{va}, v{vs}, v{va}
            s_add_u32 s{sIt}, s{sIt}, 1
            s_cmp_lt_u32 s{sIt}, 8
            """)
        e(14); e(15); c(6); c(7)
    a("s_cbranch_scc1 L_k2_loop")
    stamp(a, 3)
    a(f"""
    s_nop 1
    v_mfma_f32_32x32x16_bf16 {v(O[1],16)}, {v(Vf[1]+4,4)}, {v(P+4,4)}, {v(O[1],16)}
    """)
    xw = V.alloc(); xr = V.alloc(); fl = V.alloc()
    R = S[0]
    a(f"""
    s_mul_i32 s{sT0}, s{sWave}, {9*256}
    s_add_u32 s{sT0}, s{sT0}, {hex(XCH)}
    s_xor_b32 s{sT1}, s{sWave}, 4
    s_mul_i32 s{sT1}, s{sT1}, {9*256}
    s_add_u32 s{sT1}, s{sT1}, {hex(XCH)}
    v_add_u32 v{xw}, s{sT0}, v{l16}
    v_add_u32 v{xr}, s{sT1}, v{l16}
    v_lshl_add_u32 v{t0}, v{lane}, 2, s{sT0}
    v_lshl_add_u32 v{t1}, v{lane}, 2, s{sT1}
    s_lshl_b32 s{sT0}, s{sWave}, 2
    s_add_u32 s{sT0}, s{sT0}, {hex(FLAG)}
    v_mov_b32 v{fl}, s{sT0}
    s_mov_b32 s{sT1}, 0x5f800000
    s_nop 2
    v_cmp_nlt_f32 vcc, v{O[0]+8}, s{sT1}
    s_mov_b64 s[26:27], vcc
    v_cmp_nlt_f32 vcc, v{O[1]+8}, s{sT1}
    s_or_b64 s[26:27], s[26:27], vcc
    s_cselect_b32 s{sT0}, 1, 0
    v_mov_b32 v{one}, s{sT0}
    ds_write_b32 v{fl}, v{one}
    s_cmp_eq_u32 s{sKh}, 0
    s_cbranch_scc1 L_k2_x0
    """)
    a(f"""
    ds_write_b128 v{xw}, {v(O[0],4)}
    ds_write_b128 v{xw}, {v(O[0]+4,4)} offset:1024
    ds_write_b32 v{t0}, v{O[0]+8} offset:2048
    s_nop 1
    """)
    for r in range(9):
        a(f"v_mov_b32 v{P if False else M[0]+r}, v{O[1]+r}")
    a("s_branch L_k2_x1")
    a.label("L_k2_x0")
    a(f"""
    ds_write_b128 v{xw}, {v(O[1],4)}
    ds_write_b128 v{xw}, {v(O[1]+4,4)} offset:1024
    ds_write_b32 v{t0}, v{O[1]+8} offset:2048
    """)
    for r in range(9):
        a(f"v_mov_b32 v{M[0]+r}, v{O[0]+r}")
    a.label("L_k2_x1")
    F = S[1]
    a(f"""
    v_mov_b32 v{fl}, {hex(FLAG)}
    s_waitcnt lgkmcnt(0)
    s_barrier
    ds_read_b128 {v(F,4)}, v{fl}
    ds_read_b128 {v(F+4,4)}, v{fl} offset:16
    ds_read_b128 {v(R,4)}, v{xr}
    ds_read_b128 {v(R+4,4)}, v{xr} offset:1024
    ds_read_b32 v{R+8}, v{t1} offset:2048
    s_lshl_b32 s{sT0}, s{sQb}, 3
    s_lshl_b32 s{sT1}, s{sQp}, 1
    s_add_u32 s{sT0}, s{sT0}, s{sT1}
    s_add_u32 s{sT0}, s{sT0}, s{sKh}
    s_lshl_b32 s{sT0}, s{sT0}, 5
    s_add_u32 s{sT0}, s{sT0}, s{sHead}
    s_lshl_b32 s{sT0}, s{sT0}, 10
    s_add_u32 s{sT0}, s{sT0}, {hex(OF)}
    s_waitcnt lgkmcnt(3)
    v_or3_b32 v{F}, v{F}, v{F+1}, v{F+2}
    v_or3_b32 v{F+3}, v{F+3}, v{F+4}, v{F+5}
    v_or3_b32 v{F}, v{F}, v{F+6}, v{F+7}
    v_or_b32 v{F}, v{F}, v{F+3}
    s_nop 0
    v_readfirstlane_b32 s{sT1}, v{F}
    s_waitcnt lgkmcnt(0)
    v_add_f32 v{R+8}, v{R+8}, v{M[0]+8}
    v_rcp_f32 v{R+8}, v{R+8}
    s_andn2_b32 s{sT1}, s{sT1}, s{sPass}
    s_cbranch_scc1 L_k2_fallback
    """)
    for r in range(8):
        a(f"v_add_f32 v{R+r}, v{R+r}, v{M[0]+r}")
    for r in range(8):
        a(f"v_mul_f32 v{R+r}, v{R+r}, v{R+8}")
    for r in range(4):
        a(f"v_cvt_pk_bf16_f32 v{P+r}, v{R+2*r}, v{R+2*r+1}")
    a(f"buffer_store_dwordx4 {v(P,4)}, v{l16}, s[{SWS}:{SWS+3}], s{sT0} offen")
    a.pads_end(8)
    stamp(a, 4)
    stamp_flush(a, 1, 8, sWave, 8)
    a.label("L_k2_end")
    a("s_endpgm")

    a.label("L_k2_svc")
    PS = 48
    sKV, sJ, sX, sM = 28, 29, 30, 31
    pa = S[0]; pd = S[1]
    a(f"""
    s_lshl_b32 s{sKV}, s{sHead}, 16
    s_add_u32 s{sKV}, s{sKV}, {hex(KF)}
    s_mov_b32 s{sM}, 0
    s_mov_b32 s{sIt}, 0
    s_waitcnt lgkmcnt(0)
    """)
    srd(a, SWS, 8, WS_SIZE)
    a.label("L_k2_grp")
    for part in range(4):
        lo = (part >> 1) * 0x10000 + (part & 1) * 0x8000
        go = (part >> 1) * (2 << 20) + (part & 1) * 0x8000
        a(f"""
        s_add_u32 m0, s{sM}, {hex(lo)}
        s_add_u32 s{sT0}, s{sKV}, {hex(go)}
        """)
        for i in range(4):
            a(f"buffer_load_dwordx4 v{l16}, s[{SWS}:{SWS+3}], s{sT0} offen offset:{i*1024} lds")
    a(f"""
    s_add_u32 s{sM}, s{sM}, 4096
    s_add_u32 s{sKV}, s{sKV}, 4096
    s_add_u32 s{sIt}, s{sIt}, 1
    s_waitcnt vmcnt(32)
    s_cmp_lg_u32 s{sIt}, 2
    s_cbranch_scc1 L_k2_g1
    s_waitcnt vmcnt(16)
    s_barrier
    """)
    a.label("L_k2_g1")
    a(f"""
    s_cmp_lg_u32 s{sIt}, 6
    s_cbranch_scc1 L_k2_g2
    s_barrier
    """)
    a.label("L_k2_g2")
    a(f"""
    s_cmp_lt_u32 s{sIt}, 8
    s_cbranch_scc1 L_k2_grp
    s_lshr_b32 s{sJ}, s2, 3
    s_and_b32 s{sX}, s2, 7
    s_mov_b32 s{PS+3}, 0x00020000
    v_lshlrev_b32 v{pa}, 7, v{lane}
    s_waitcnt vmcnt(0)
    s_barrier
    """)
    k = [0]

    def touch(areg, soff, off=0):
        a(f"buffer_load_dword v{pd+k[0]}, v{areg}, s[{PS}:{PS+3}], {soff} offen" + (f" offset:{off}" if off else ""))
        k[0] += 1

    def setp(p, n):
        a(f"""
        s_mov_b32 s{PS}, s{p}
        s_mov_b32 s{PS+1}, s{p+1}
        s_mov_b32 s{PS+2}, {hex(n)}
        """)
    if os.environ.get("PF", "1") == "1":
        setp(36, 512 * 1024)
        a(f"""
        s_lshl_b32 s{sT0}, s{sJ}, 14
        s_add_u32 s{sT1}, s{sT0}, 8192
        """)
        touch(pa, f"s{sT0}"); touch(pa, f"s{sT1}")
        setp(32, 2048 * 1024)
        a(f"""
        s_lshl_b32 s{sT0}, s{sX}, 5
        s_add_u32 s{sT0}, s{sT0}, s{sJ}
        s_lshl_b32 s{sT0}, s{sT0}, 13
        """)
        touch(pa, f"s{sT0}")
        a(f"""
        v_lshrrev_b32 v{pa+1}, 3, v{lane}
        v_mul_u32_u24 v{pa+1}, 2752, v{pa+1}
        v_and_b32 v{pa+2}, 7, v{lane}
        v_min_u32 v{pa+2}, 6, v{pa+2}
        v_lshl_add_u32 v{pa+1}, v{pa+2}, 7, v{pa+1}
        s_mul_i32 s{sT0}, s{sJ}, {16*2752}
        s_lshr_b32 s{sT1}, s{sX}, 1
        s_mul_i32 s{sT1}, s{sT1}, 768
        s_add_u32 s{sT0}, s{sT0}, s{sT1}
        v_add_u32 v{pa+1}, s{sT0}, v{pa+1}
        v_add_u32 v{pa+2}, {8*2752}, v{pa+1}
        """)
        for p in (40, 42):
            setp(p, 512 * 2752)
            touch(pa + 1, 0); touch(pa + 2, 0)
        setp(44, 1376 * 1024)
        if MAP5 == "48":
            a(f"""
            s_mul_i32 s{sT0}, s{sJ}, {43*1024}
            v_add_u32 v{pa+3}, s{sT0}, v{pa}
            """)
            for i in range(6):
                touch(pa + 3, 0)
                if i < 5:
                    a(f"v_add_u32 v{pa+3}, 8192, v{pa+3}")
        else:
            a(f"""
            v_lshrrev_b32 v{pa+3}, 2, v{lane}
            v_lshlrev_b32 v{pa+3}, 10, v{pa+3}
            v_and_b32 v{pa+4}, 3, v{lane}
            v_lshl_add_u32 v{pa+3}, v{pa+4}, 7, v{pa+3}
            s_mul_i32 s{sT0}, s{sJ}, {43*1024}
            s_lshr_b32 s{sT1}, s{sX}, 2
            s_lshl_b32 s{sT1}, s{sT1}, 9
            s_add_u32 s{sT0}, s{sT0}, s{sT1}
            v_add_u32 v{pa+3}, s{sT0}, v{pa+3}
            """)
            for i in range(3):
                touch(pa + 3, 0)
                if i < 2:
                    a(f"v_add_u32 v{pa+3}, 16384, v{pa+3}")
    cs = O[0]; wf = M[0]; on = Q[0]; wd = ka; rw = va
    a(f"""
    s_cmp_ge_u32 s2, 86
    s_cbranch_scc1 L_k2_end
    s_cmp_lt_u32 s2, 43
    s_cselect_b32 s{PS}, s40, s42
    s_cselect_b32 s{PS+1}, s41, s43
    s_cselect_b32 s{sT0}, 0, 43
    s_mov_b32 s{PS+2}, {hex(512*2752)}
    s_sub_u32 s{sJ}, s2, s{sT0}
    s_lshl_b32 s{sKV}, s{sJ}, 6
    v_lshrrev_b32 v{t0}, 2, v{lane}
    v_and_b32 v{t1}, 3, v{lane}
    v_mul_u32_u24 v{t0}, 2752, v{t0}
    v_lshl_add_u32 v{wd}, v{t1}, 4, v{t0}
    s_mov_b32 s{sIt}, 0
    """)
    tr_addr(a, rw, lane, t0, t1)
    a(f"v_add_u32 v{rw}, {hex(XCH)}, v{rw}")
    for r in range(4):
        a(f"v_mov_b32 v{on+r}, 0x3f803f80")
    for r in range(16):
        a(f"v_mov_b32 v{cs+r}, 0")
    a.label("L_k2_csb")
    a(f"""
    s_mov_b32 m0, {hex(XCH)}
    s_mov_b32 s{sM}, 0
    """)
    a.label("L_k2_csd")
    a(f"""
    buffer_load_dwordx4 v{wd}, s[{PS}:{PS+3}], s{sKV} offen lds
    s_add_u32 m0, m0, 1024
    s_add_u32 s{sKV}, s{sKV}, {16*2752}
    s_add_u32 s{sM}, s{sM}, 1
    s_cmp_lt_u32 s{sM}, 16
    s_cbranch_scc1 L_k2_csd
    v_mov_b32 v{t0}, v{rw}
    s_mov_b32 s{sM}, 0
    s_waitcnt vmcnt(0)
    """)
    a.label("L_k2_csm")
    for i in range(4):
        a(f"""
        ds_read_b64_tr_b16 {v(wf+4*i,2)}, v{t0} offset:{i*1024}
        ds_read_b64_tr_b16 {v(wf+4*i+2,2)}, v{t0} offset:{i*1024+256}
        """)
    a(f"""
    v_add_u32 v{t0}, 4096, v{t0}
    s_add_u32 s{sM}, s{sM}, 1
    s_cmp_lt_u32 s{sM}, 4
    s_waitcnt lgkmcnt(0)
    """)
    for i in range(4):
        a(f"v_mfma_f32_32x32x16_bf16 {v(cs,16)}, {v(wf+4*i,4)}, {v(on,4)}, {v(cs,16)}")
    a(f"""
    s_cbranch_scc1 L_k2_csm
    s_add_u32 s{sIt}, s{sIt}, 1
    s_cmp_lt_u32 s{sIt}, 2
    s_cbranch_scc1 L_k2_csb
    s_cmp_lt_u32 s2, 43
    s_cselect_b32 s{sT0}, 0, {CSM}
    s_lshl_b32 s{sJ}, s{sJ}, 7
    s_add_u32 s{sT0}, s{sT0}, s{sJ}
    s_add_u32 s{sT0}, s{sT0}, {hex(CS)}
    v_and_b32 v{t0}, 32, v{lane}
    s_mov_b32 s26, 1
    s_mov_b32 s27, 1
    s_mov_b64 exec, s[26:27]
    s_nop 3
    buffer_store_dwordx4 {v(cs,4)}, v{t0}, s[{SWS}:{SWS+3}], s{sT0} offen
    buffer_store_dwordx4 {v(cs+4,4)}, v{t0}, s[{SWS}:{SWS+3}], s{sT0} offen offset:16
    buffer_store_dwordx4 {v(cs+8,4)}, v{t0}, s[{SWS}:{SWS+3}], s{sT0} offen offset:64
    buffer_store_dwordx4 {v(cs+12,4)}, v{t0}, s[{SWS}:{SWS+3}], s{sT0} offen offset:80
    s_endpgm
    """)

    a.label("L_k2_fallback")
    a(f"""
    s_mov_b32 s{sPass}, 1
    s_mov_b32 s{sG}, 0
    v_mov_b32 v{ka}, v{ka0}
    v_mov_b32 v{mx[0]}, 0xff800000
    v_mov_b32 v{mx[1]}, 0xff800000
    s_mov_b32 s{sIt}, 0
    """)
    a.label("L_k2_fbloop")
    a(f"""
    ds_read_b128 {v(Kf[0],4)}, v{ka}
    v_add_u32 v{ka}, 1024, v{ka}
    s_waitcnt lgkmcnt(0)
    v_mfma_f32_32x32x16_bf16 {v(S[0],16)}, {v(Kf[0],4)}, {v(Q[0],4)}, 0
    v_mfma_f32_32x32x16_bf16 {v(S[1],16)}, {v(Kf[0],4)}, {v(Q[1],4)}, 0
    s_nop 7
    s_nop 3
    """)
    for q in range(2):
        for i in range(0, 16, 2):
            a(f"v_max3_f32 v{mx[q]}, v{mx[q]}, v{S[q]+i}, v{S[q]+i+1}")
    a(f"""
    s_add_u32 s{sIt}, s{sIt}, 1
    s_cmp_lt_u32 s{sIt}, 32
    s_cbranch_scc1 L_k2_fbloop
    """)
    half_max(mx[0], t0)
    half_max(mx[1], t1)
    a(f"""
    s_lshl_b32 s{sT0}, s{sWave}, 9
    s_add_u32 s{sT0}, s{sT0}, {hex(MXS)}
    s_xor_b32 s{sT1}, s{sWave}, 4
    s_lshl_b32 s{sT1}, s{sT1}, 9
    s_add_u32 s{sT1}, s{sT1}, {hex(MXS)}
    v_lshl_add_u32 v{t0}, v{lane}, 2, s{sT0}
    v_lshl_add_u32 v{t1}, v{lane}, 2, s{sT1}
    ds_write_b32 v{t0}, v{mx[0]}
    ds_write_b32 v{t0}, v{mx[1]} offset:256
    s_waitcnt lgkmcnt(0)
    s_barrier
    ds_read_b32 v{S[0]}, v{t1}
    ds_read_b32 v{S[0]+1}, v{t1} offset:256
    s_waitcnt lgkmcnt(0)
    v_max_f32 v{mx[0]}, v{mx[0]}, v{S[0]}
    v_max_f32 v{mx[1]}, v{mx[1]}, v{S[0]+1}
    {initzero}
    s_branch L_k2_start
    """)
    return name, V.hi, 256, 576, LDS_K2
```

```python
from asmlib import *
import os
from k1 import OF, HF, GF, WS_SIZE, srd, half_sum

ST = (15 << 20) + (1 << 19)

CS = (15 << 20) + (3 << 18)
CSM = 8192
MAP5 = os.environ.get('MAP5', '48')


def tr_addr(a, dst, lane, t0, t1, sigma=True):
    a(f"""
    v_lshrrev_b32 v{t0}, 5, v{lane}
    v_lshlrev_b32 v{t0}, 9, v{t0}
    v_bfe_u32 v{t1}, v{lane}, 2, 2
    v_lshl_add_u32 v{t0}, v{t1}, 6, v{t0}
    v_bfe_u32 v{t1}, v{lane}, 4, 1
    v_lshl_add_u32 v{t0}, v{t1}, 5, v{t0}
    """)
    if sigma:
        a(f"""
        v_and_b32 v{t1}, 1, v{lane}
        v_lshl_add_u32 v{t0}, v{t1}, 4, v{t0}
        v_bfe_u32 v{t1}, v{lane}, 1, 1
        v_lshl_add_u32 v{dst}, v{t1}, 3, v{t0}
        """)
    else:
        a(f"""
        v_and_b32 v{t1}, 3, v{lane}
        v_lshl_add_u32 v{dst}, v{t1}, 3, v{t0}
        """)


def gen_splitk(a, which):
    wo = which == "wo"
    name = "wo_kernel" if wo else "down_kernel"
    L = "k3" if wo else "k5"
    KS = 32 if wo else 86
    NF = KS // 4
    NCH = (KS + 3) // 4
    NS = 8
    P = int(os.environ.get('P3' if wo else 'P5', '6'))
    ROT = os.environ.get('ROT3' if wo else 'ROT5', '2')
    assert P <= NS - 2
    AOFF = OF if wo else GF
    V = Regs(1, 128, "v")
    a.raw(f".globl {name}\n.p2align 8\n.type {name},@function")
    a.label(name)
    SW, SWS, SR = 16, 20, 24
    sWave, sRb, sCg, sAo, sWo, sDm, sCk, sI, sN, sT0, sT1, sAb, sRd, sH, sW4, sWb = range(28, 44)
    a(f"""
    s_cmp_ge_u32 s2, 256
    s_cbranch_scc1 L_{L}_end
    s_load_dwordx2 s[4:5], s[0:1], {16 if wo else 48}
    s_load_dwordx2 s[6:7], s[0:1], {0 if wo else 56}
    s_load_dwordx2 s[8:9], s[0:1], 72
    """)
    stamp(a, 0); stamp_real(a, 5)
    lane = V.alloc(); t0 = V.alloc(); t1 = V.alloc(); l16 = V.alloc()
    a(f"""
    v_lshrrev_b32 v{t0}, 6, v0
    v_and_b32 v{lane}, 63, v0
    s_and_b32 s{sT0}, s2, 7
    v_readfirstlane_b32 s{sWave}, v{t0}
    s_lshr_b32 s{sT1}, s2, 3
    v_lshlrev_b32 v{l16}, 4, v{lane}
    """)
    if wo or MAP5 == '48':
        a(f"""
        s_lshl_b32 s{sRb}, s{sT0}, 2
        s_and_b32 s{sT0}, s{sT1}, 3
        s_add_u32 s{sRb}, s{sRb}, s{sT0}
        s_lshr_b32 s{sCg}, s{sT1}, 2
        s_mul_i32 s{sCk}, s{sCg if ROT == '1' else sT0}, {(1 if wo else 2) if ROT == '1' else ((2 if wo else 5) if ROT == '2' else 0)}
        """)
    else:
        a(f"""
        s_and_b32 s{sRb}, s{sT0}, 3
        s_lshl_b32 s{sRb}, s{sRb}, 3
        s_and_b32 s{sCg}, s{sT1}, 7
        s_add_u32 s{sRb}, s{sRb}, s{sCg}
        s_lshr_b32 s{sCg}, s{sT0}, 2
        s_lshl_b32 s{sCg}, s{sCg}, 2
        s_lshr_b32 s{sT1}, s{sT1}, 3
        s_add_u32 s{sCg}, s{sCg}, s{sT1}
        s_and_b32 s{sCk}, s{sRb}, 7
        s_mul_i32 s{sCk}, s{sT1 if ROT == '1' else sCk}, {5 if ROT == '1' else (2 if ROT == '2' else 0)}
        """)
    a(f"""
    s_and_b32 s{sW4}, s{sWave}, 3
    s_cmp_lt_u32 s{sWave}, 4
    s_cbranch_scc1 L_{L}_compute
    """)
    mk = V.mark()
    ad1 = V.alloc(); wd0 = V.alloc(); wd1 = V.alloc(); vt = V.alloc()
    a(f"""
    v_add_u32 v{ad1}, {KS*1024-1024}, v{l16}
    v_lshrrev_b32 v{t0}, 2, v{lane}
    v_and_b32 v{t1}, 3, v{lane}
    v_lshlrev_b32 v{t0}, 10, v{t0}
    v_lshl_add_u32 v{wd0}, v{t1}, 4, v{t0}
    v_add_u32 v{wd1}, 64, v{wd0}
    s_mul_i32 s{sAb}, s{sRb}, {2*KS*1024}
    s_lshl_b32 s{sT0}, s{sW4}, 10
    s_add_u32 s{sAb}, s{sAb}, s{sT0}
    s_add_u32 s{sAb}, s{sAb}, {hex(AOFF)}
    s_lshl_b32 s{sWb}, s{sW4}, 14
    s_lshl_b32 s{sT0}, s{sCg}, 7
    s_add_u32 s{sWb}, s{sWb}, s{sT0}
    s_lshl_b32 s{sDm}, s{sW4}, 12
    s_mov_b32 s{sI}, 0
    s_mov_b32 s{sN}, 0
    s_waitcnt lgkmcnt(0)
    """)
    srd(a, SW, 4, KS * 16 * 1024)
    srd(a, SWS, 8, WS_SIZE)
    trace_init(a, vt)

    def issue():
        a(f"""
        s_mov_b32 m0, s{sDm}
        s_add_u32 s{sDm}, s{sDm}, 0x4000
        buffer_load_dwordx4 v{l16}, s[{SWS}:{SWS+3}], s{sAo} offen lds
        buffer_load_dwordx4 v{ad1}, s[{SWS}:{SWS+3}], s{sAo} offen offset:1024 lds
        s_add_u32 m0, m0, 2048
        s_and_b32 s{sDm}, s{sDm}, {NS*0x4000-1}
        buffer_load_dwordx4 v{wd0}, s[{SW}:{SW+3}], s{sWo} offen lds
        s_add_u32 m0, m0, 1024
        s_add_u32 s{sI}, s{sI}, 1
        buffer_load_dwordx4 v{wd1}, s[{SW}:{SW+3}], s{sWo} offen lds
        """)

    def addr():
        a(f"""
        s_lshl_b32 s{sAo}, s{sCk}, 12
        s_lshl_b32 s{sWo}, s{sCk}, 16
        s_add_u32 s{sAo}, s{sAo}, s{sAb}
        s_add_u32 s{sWo}, s{sWo}, s{sWb}
        s_add_u32 s{sCk}, s{sCk}, 1
        s_cmp_ge_u32 s{sCk}, {NF}
        s_cselect_b32 s{sCk}, 0, s{sCk}
        """)

    if NCH != NF:
        a(f"""
        s_add_u32 s{sAo}, s{sAb}, {NF*4096}
        s_add_u32 s{sWo}, s{sWb}, {NF*65536}
        s_cmp_lt_u32 s{sW4}, {KS-4*NF}
        s_cbranch_scc1 L_{L}_pi
        s_add_u32 s{sDm}, s{sDm}, 0x4000
        s_add_u32 s{sI}, s{sI}, 1
        """)
    a.label(f"L_{L}_pre")
    addr()
    a.label(f"L_{L}_pi")
    issue()
    a(f"""
    s_cmp_lt_u32 s{sI}, {P}
    s_cbranch_scc1 L_{L}_pre
    """)
    a.label(f"L_{L}_ld")
    addr()
    a(f"""
    s_waitcnt vmcnt({4*(P-1)})
    s_barrier
    """)
    trace(a, vt, sN)
    if STAMP: a(f"s_add_u32 s{sN}, s{sN}, 1")
    issue()
    a(f"""
    s_cmp_lt_u32 s{sI}, {NCH}
    s_cbranch_scc1 L_{L}_ld
    """)
    for r in range(P - 1, -1, -1):
        a(f"""
        s_waitcnt vmcnt({4*r})
        s_barrier
        """)
        trace(a, vt, sN)
        if STAMP: a(f"s_add_u32 s{sN}, s{sN}, 1")
    trace_flush(a, vt, 2 if wo else 4, 8, sWave, 4, lane)
    a("s_endpgm")
    V.release(mk)
    a.label(f"L_{L}_compute")
    ra = V.alloc(); rw = V.alloc(); ca = V.alloc(); cw = V.alloc(); rm = V.alloc()
    res = V.alloc(8, 4)
    acc = V.alloc(16, 4)
    fr = [V.alloc(32, 4) for _ in range(2)]
    a(f"""
    s_and_b32 s{sT0}, s{sWave}, 1
    s_lshr_b32 s{sT1}, s{sWave}, 1
    v_and_b32 v{t0}, 31, v{lane}
    v_lshlrev_b32 v{t0}, 10, v{t0}
    v_lshrrev_b32 v{t1}, 5, v{lane}
    v_lshl_add_u32 v{rm}, v{t1}, 4, v{t0}
    s_lshl_b32 s{sH}, s{sRb}, 16
    s_lshl_b32 s{sN}, s{sT0}, 15
    s_add_u32 s{sH}, s{sH}, s{sN}
    s_lshl_b32 s{sN}, s{sCg}, 7
    s_add_u32 s{sI}, s{sH}, s{sN}
    s_lshl_b32 s{sN}, s{sT1}, 6
    s_add_u32 s{sI}, s{sI}, s{sN}
    v_add_u32 v{rm}, s{sI}, v{rm}
    s_lshl_b32 s{sN}, s{sCg}, 12
    s_add_u32 s{sH}, s{sH}, s{sN}
    s_lshl_b32 s{sN}, s{sT1}, 11
    s_add_u32 s{sH}, s{sH}, s{sN}
    s_add_u32 s{sH}, s{sH}, {hex(HF)}
    s_lshl_b32 s{sN}, s{sT0}, 10
    v_add_u32 v{ra}, s{sN}, v{l16}
    """)
    tr_addr(a, rw, lane, t0, t1)
    a(f"""
    s_lshl_b32 s{sN}, s{sT1}, 10
    s_add_u32 s{sN}, s{sN}, 2048
    v_add_u32 v{rw}, s{sN}, v{rw}
    v_mov_b32 v{ca}, v{ra}
    v_mov_b32 v{cw}, v{rw}
    s_mov_b32 s{sRd}, 0
    s_mov_b32 s{sI}, 0
    """)
    for r in range(16):
        a(f"v_mov_b32 v{acc+r}, 0")
    a("s_waitcnt lgkmcnt(0)")
    srd(a, SWS, 8, WS_SIZE)
    srd(a, SR, 6, 2048 * 1024)
    stamp(a, 1)
    a.warm(L, sWave)
    if wo:
        a(f"""
        buffer_load_dwordx4 {v(res,4)}, v{rm}, s[{SR}:{SR+3}], 0 offen
        buffer_load_dwordx4 {v(res+4,4)}, v{rm}, s[{SR}:{SR+3}], 0 offen offset:32
        """)
    else:
        a(f"""
        buffer_load_dwordx4 {v(res,4)}, v{l16}, s[{SWS}:{SWS+3}], s{sH} offen
        buffer_load_dwordx4 {v(res+4,4)}, v{l16}, s[{SWS}:{SWS+3}], s{sH} offen offset:1024
        """)

    def reads(f, n=4):
        for k in range(n):
            a(f"""
            ds_read_b128 {v(f+8*k,4)}, v{ca} offset:{k*4096}
            ds_read_b64_tr_b16 {v(f+8*k+4,2)}, v{cw} offset:{k*4096}
            ds_read_b64_tr_b16 {v(f+8*k+6,2)}, v{cw} offset:{k*4096+256}
            """)

    def adv():
        a(f"""
        s_add_u32 s{sRd}, s{sRd}, 0x4000
        s_and_b32 s{sRd}, s{sRd}, {NS*0x4000-1}
        v_add_u32 v{ca}, s{sRd}, v{ra}
        v_add_u32 v{cw}, s{sRd}, v{rw}
        """)

    def mm(f, n=4):
        for k in range(n):
            a(f"v_mfma_f32_32x32x16_bf16 {v(acc,16)}, {v(f+8*k+4,4)}, {v(f+8*k,4)}, {v(acc,16)}")

    a.pads_begin(L)
    n0 = 4 if wo else KS - 4 * NF
    a("s_barrier")
    stamp(a, 2)
    if STAMP: a("s_waitcnt lgkmcnt(0)")
    f = fr[1]

    def rd(k):
        a(f"""
        ds_read_b128 {v(f+8*k,4)}, v{ca} offset:{k*4096}
        ds_read_b64_tr_b16 {v(f+8*k+4,2)}, v{cw} offset:{k*4096}
        ds_read_b64_tr_b16 {v(f+8*k+6,2)}, v{cw} offset:{k*4096+256}
        """)

    def mf(k):
        a(f"v_mfma_f32_32x32x16_bf16 {v(acc,16)}, {v(f+8*k+4,4)}, {v(f+8*k,4)}, {v(acc,16)}")

    for k in range(n0):
        rd(k)
    adv()
    if not wo:
        a("s_barrier")
        for k in range(4):
            if k < n0:
                a("s_waitcnt lgkmcnt(3)")
                mf(k)
            rd(k)
        adv()
    a.label(f"L_{L}_loop")
    a("s_barrier")
    for k in range(4):
        a("s_waitcnt lgkmcnt(9)")
        mf(k)
        rd(k)
        if k == 0:
            a(f"""
            s_add_u32 s{sRd}, s{sRd}, 0x4000
            s_and_b32 s{sRd}, s{sRd}, {NS*0x4000-1}
            """)
        if k == 1:
            a(f"""
            s_add_u32 s{sI}, s{sI}, 1
            s_cmp_lt_u32 s{sI}, {NCH-1 if wo else NCH-2}
            """)
    a(f"""
    v_add_u32 v{ca}, s{sRd}, v{ra}
    v_add_u32 v{cw}, s{sRd}, v{rw}
    s_cbranch_scc1 L_{L}_loop
    """)
    u = fr[0]
    a("s_waitcnt vmcnt(0)")
    for k in range(4):
        a(f"s_waitcnt lgkmcnt({9-3*k})")
        a(f"v_mfma_f32_32x32x16_bf16 {v(acc,16)}, {v(fr[1]+8*k+4,4)}, {v(fr[1]+8*k,4)}, {v(acc,16)}")
        for r in range(2 * k, 2 * k + 2):
            a(f"v_lshlrev_b32 v{u+2*r}, 16, v{res+r}")
            a(f"v_and_b32 v{u+2*r+1}, 0xffff0000, v{res+r}")
    stamp(a, 3)
    if wo:
        a(f"""
        s_and_b32 s{sT0}, s{sWave}, 1
        s_lshl_b32 s{sT1}, s{sRb}, 1
        s_add_u32 s{sT0}, s{sT0}, s{sT1}
        s_lshl_b32 s{sT0}, s{sT0}, 3
        s_add_u32 s{sT0}, s{sT0}, s{sCg}
        s_lshl_b32 s{sT0}, s{sT0}, 9
        s_lshr_b32 s{sT1}, s{sWave}, 1
        s_lshl_b32 s{sT1}, s{sT1}, 3
        s_add_u32 s{sT0}, s{sT0}, s{sT1}
        s_add_u32 s{sT0}, s{sT0}, {hex(ST)}
        s_mov_b32 s{sT1}, 0x3f803f80
        """)
    else:
        a("s_nop 7")
    for r in range(0, 16, 2):
        a(f"v_pk_add_f32 {v(acc+r,2)}, {v(acc+r,2)}, {v(u+r,2)}")
    o = fr[1]
    for r in range(8):
        a(f"v_cvt_pk_bf16_f32 v{o+r}, v{acc+2*r}, v{acc+2*r+1}")
    if wo:
        a(f"""
        buffer_store_dwordx4 {v(o,4)}, v{l16}, s[{SWS}:{SWS+3}], s{sH} offen
        buffer_store_dwordx4 {v(o+4,4)}, v{l16}, s[{SWS}:{SWS+3}], s{sH} offen offset:1024
        """)
        sm = fr[0] + 16
        a(f"""
        v_mov_b32 v{sm}, 0
        v_mov_b32 v{sm+1}, 0
        """)
        for r in range(8):
            a(f"v_dot2_f32_bf16 v{sm}, v{o+r}, s{sT1}, v{sm}")
            a(f"v_dot2_f32_bf16 v{sm+1}, v{o+r}, v{o+r}, v{sm+1}")
        a(f"""
        v_and_b32 v{t1}, 0x1ff, v{l16}
        s_nop 1
        v_mov_b32 v{sm+2}, v{sm}
        v_mov_b32 v{sm+3}, v{sm+1}
        s_nop 0
        v_permlane32_swap_b32 v{sm}, v{sm+2}
        v_permlane32_swap_b32 v{sm+1}, v{sm+3}
        s_nop 0
        v_add_f32 v{sm}, v{sm}, v{sm+2}
        v_add_f32 v{sm+1}, v{sm+1}, v{sm+3}
        buffer_store_dwordx2 {v(sm,2)}, v{t1}, s[{SWS}:{SWS+3}], s{sT0} offen
        """)
    else:
        a(f"""
        buffer_store_dwordx4 {v(o,4)}, v{rm}, s[{SR}:{SR+3}], 0 offen
        buffer_store_dwordx4 {v(o+4,4)}, v{rm}, s[{SR}:{SR+3}], 0 offen offset:32
        """)
    a.pads_end(4)
    stamp(a, 4)
    stamp_flush(a, 2 if wo else 4, 8, sWave, 4)
    a.label(f"L_{L}_end")
    a("s_endpgm")
    return name, V.hi, 256, 512, NS * 0x4000
```

```python
from asmlib import *
from k1 import HF, GF, WS_SIZE, EPS, srd, half_sum
from k35 import ST, CS, CSM, tr_addr
import math, os

NS = int(os.environ.get('NS4', '7'))
P = int(os.environ.get('P4', '4'))
SLOT = 20480
NCH = 16
CSL = NS * SLOT


def gen_k4(a):
    name = "ffn1_kernel"
    V = Regs(1, 256, "v")
    a.raw(f".globl {name}\n.p2align 8\n.type {name},@function")
    a.label(name)
    SW, SWS = 12, 16
    sWave, sRb, sCg, sAo, sWo, sDm, sC, sRd, sT0, sT1, sA, sB, sIss, sW4, sCk, sAb = range(24, 40)
    assert P <= NS - 2
    a(f"""
    s_cmp_ge_u32 s2, 256
    s_cbranch_scc1 L_k4_end
    s_load_dwordx4 s[4:7], s[0:1], 32
    s_load_dwordx2 s[8:9], s[0:1], 72
    """)
    stamp(a, 0); stamp_real(a, 5)
    lane = V.alloc(); t0 = V.alloc(); t1 = V.alloc(); l16 = V.alloc()
    a(f"""
    v_lshrrev_b32 v{t0}, 6, v0
    v_and_b32 v{lane}, 63, v0
    s_and_b32 s{sT0}, s2, 7
    v_readfirstlane_b32 s{sWave}, v{t0}
    s_lshr_b32 s{sT1}, s2, 3
    s_and_b32 s{sRb}, s{sT0}, 1
    s_lshl_b32 s{sRb}, s{sRb}, 3
    s_and_b32 s{sCg}, s{sT1}, 7
    s_add_u32 s{sRb}, s{sRb}, s{sCg}
    s_lshr_b32 s{sCg}, s{sT0}, 1
    s_lshl_b32 s{sCg}, s{sCg}, 2
    s_lshr_b32 s{sT1}, s{sT1}, 3
    s_add_u32 s{sCg}, s{sCg}, s{sT1}
    s_cmp_eq_u32 s{sCg}, 15
    s_cbranch_scc1 L_k4_end
    s_lshl_b32 s{sCk}, s{sT1}, 2
    s_and_b32 s{sCk}, s{sCk}, {15 if os.environ.get('ROT4', '0') == '1' else 0}
    v_lshlrev_b32 v{l16}, 4, v{lane}
    s_and_b32 s{sW4}, s{sWave}, 3
    s_lshl_b32 s{sA}, s{sW4}, 11
    s_lshl_b32 s{sT0}, s{sRb}, 2
    s_add_u32 s{sT0}, s{sT0}, s{sW4}
    s_mov_b32 s{sC}, 0
    s_cmp_lt_u32 s{sWave}, 4
    s_cbranch_scc1 L_k4_compute
    """)
    mk = V.mark()
    wd = [V.alloc() for _ in range(3)]
    vt = V.alloc()
    a(f"""
    v_lshrrev_b32 v{t0}, 2, v{lane}
    v_and_b32 v{t1}, 3, v{lane}
    v_mul_u32_u24 v{t0}, 2752, v{t0}
    v_lshl_add_u32 v{wd[0]}, v{t1}, 4, v{t0}
    v_add_u32 v{wd[1]}, 64, v{wd[0]}
    v_add_u32 v{wd[2]}, 128, v{wd[0]}
    s_lshl_b32 s{sAb}, s{sT0}, 15
    s_add_u32 s{sAb}, s{sAb}, {hex(HF)}
    s_lshl_b32 s{sAo}, s{sCk}, 11
    s_add_u32 s{sAo}, s{sAo}, s{sAb}
    s_lshr_b32 s{sT0}, s{sW4}, 1
    s_mul_i32 s{sWo}, s{sT0}, {16*2752}
    s_mul_i32 s{sT0}, s{sCg}, 192
    s_add_u32 s{sWo}, s{sWo}, s{sT0}
    s_mul_i32 s{sT0}, s{sCk}, {32*2752}
    s_add_u32 s{sWo}, s{sWo}, s{sT0}
    s_mul_i32 s{sB}, s{sW4}, 3072
    s_add_u32 s{sB}, s{sB}, 8192
    s_mov_b32 s{sDm}, 0
    s_mov_b32 s{sIss}, 0
    s_bitcmp1_b32 s{sWave}, 0
    s_waitcnt lgkmcnt(0)
    s_cselect_b32 s{SW}, s6, s4
    s_cselect_b32 s{SW+1}, s7, s5
    s_mov_b32 s{SW+2}, {hex(512*2752)}
    s_mov_b32 s{SW+3}, 0x00020000
    """)
    srd(a, SWS, 8, WS_SIZE)
    trace_init(a, vt)

    def dma_chunk():
        a(f"""
        s_add_u32 m0, s{sDm}, s{sA}
        s_add_u32 s{sT1}, s{sDm}, s{sB}
        buffer_load_dwordx4 v{l16}, s[{SWS}:{SWS+3}], s{sAo} offen lds
        buffer_load_dwordx4 v{l16}, s[{SWS}:{SWS+3}], s{sAo} offen offset:1024 lds
        s_mov_b32 m0, s{sT1}
        s_add_u32 s{sAo}, s{sAo}, 2048
        buffer_load_dwordx4 v{wd[0]}, s[{SW}:{SW+3}], s{sWo} offen lds
        s_add_u32 m0, s{sT1}, 1024
        s_add_u32 s{sDm}, s{sDm}, {SLOT}
        buffer_load_dwordx4 v{wd[1]}, s[{SW}:{SW+3}], s{sWo} offen lds
        s_add_u32 m0, s{sT1}, 2048
        s_cmp_ge_u32 s{sDm}, {NS*SLOT}
        buffer_load_dwordx4 v{wd[2]}, s[{SW}:{SW+3}], s{sWo} offen lds
        s_cselect_b32 s{sDm}, 0, s{sDm}
        s_add_u32 s{sWo}, s{sWo}, {32*2752}
        s_cmp_ge_u32 s{sWo}, {512*2752}
        s_cselect_b32 s{sT0}, {512*2752}, 0
        s_cselect_b32 s{sAo}, s{sAb}, s{sAo}
        s_sub_u32 s{sWo}, s{sWo}, s{sT0}
        s_add_u32 s{sIss}, s{sIss}, 1
        """)

    a.label("L_k4_pre")
    dma_chunk()
    a(f"""
    s_cmp_lt_u32 s{sIss}, {P}
    s_cbranch_scc1 L_k4_pre
    """)
    a.label("L_k4_ldloop")
    a(f"""
    s_waitcnt vmcnt({5*(P-1)})
    s_barrier
    """)
    trace(a, vt, sC)
    if STAMP: a(f"s_add_u32 s{sC}, s{sC}, 1")
    dma_chunk()
    a(f"""
    s_cmp_lt_u32 s{sIss}, {NCH}
    s_cbranch_scc1 L_k4_ldloop
    """)
    for r in range(P - 1, -1, -1):
        a(f"""
        s_waitcnt vmcnt({5*r})
        s_barrier
        """)
        trace(a, vt, sC)
        if STAMP: a(f"s_add_u32 s{sC}, s{sC}, 1")
    trace_flush(a, vt, 3, 8, sWave, 4, lane)
    a("s_endpgm")
    V.release(mk)
    a.label("L_k4_compute")
    ra = V.alloc(); rw = V.alloc(); cw = V.alloc(); ca = V.alloc(); csa = V.alloc()
    acc = [V.alloc(16, 4) for _ in range(6)]
    wf = V.alloc(24, 4)
    an = [V.alloc(4, 4) for _ in range(2)]
    z = V.alloc(16, 4)
    kc = V.alloc(4, 4)
    stt = z
    a(f"""
    s_lshl_b32 s{sT1}, s{sT0}, 12
    s_add_u32 s{sT1}, s{sT1}, {hex(ST)}
    v_and_b32 v{t0}, 0x1ff, v{l16}
    v_lshrrev_b32 v{t1}, 5, v{lane}
    v_lshl_add_u32 v{t0}, v{t1}, 11, v{t0}
    v_min_u32 v{csa}, {47*16}, v{l16}
    v_cmp_lt_u32 vcc, {23*16}, v{csa}
    v_mov_b32 v{ra}, {CSM-384}
    s_mul_i32 s{sB}, s{sCg}, 384
    v_cndmask_b32 v{ra}, 0, v{ra}, vcc
    s_add_u32 s{sB}, s{sB}, {hex(CS)}
    v_add_u32 v{csa}, v{csa}, v{ra}
    s_lshl_b32 s{sRd}, s{sWave}, 10
    s_add_u32 s{sRd}, s{sRd}, {CSL}
    s_mov_b32 m0, s{sRd}
    s_waitcnt lgkmcnt(0)
    """)
    srd(a, SWS, 8, WS_SIZE)
    a(f"buffer_load_dwordx4 v{csa}, s[{SWS}:{SWS+3}], s{sB} offen lds")
    for i in range(4):
        a(f"buffer_load_dwordx4 {v(stt+4*i,4)}, v{t0}, s[{SWS}:{SWS+3}], s{sT1} offen offset:{i*512}")
    a(f"""
    v_and_b32 v{csa}, 32, v{lane}
    v_add_u32 v{csa}, s{sRd}, v{csa}
    v_add_u32 v{ra}, s{sA}, v{l16}
    """)
    tr_addr(a, rw, lane, t0, t1)
    a(f"""
    v_add_u32 v{rw}, 8192, v{rw}
    v_mov_b32 v{ca}, v{ra}
    v_mov_b32 v{cw}, v{rw}
    s_mov_b32 s{sRd}, 0
    s_mul_i32 s{sT0}, s{sT0}, 86
    s_mul_i32 s{sT1}, s{sCg}, 6
    s_add_u32 s{sT0}, s{sT0}, s{sT1}
    s_lshl_b32 s{sT0}, s{sT0}, 10
    s_add_u32 s{sT0}, s{sT0}, {hex(GF)}
    s_cmp_eq_u32 s{sCg}, 14
    s_cselect_b32 s{sIss}, 1, 3
    """)
    stamp(a, 1)
    a.warm("k4", sWave)
    a.pads_begin("k4")
    a("s_waitcnt vmcnt(4)")
    if STAMP: a("s_waitcnt lgkmcnt(0)")
    for j in range(6):
        for q in range(4):
            a(f"ds_read_b128 {v(acc[j]+4*q,4)}, v{csa} offset:{j*128+(q>>1)*64+(q&1)*16}")
    a("s_waitcnt vmcnt(0)")
    for i in range(0, 8, 2):
        a(f"v_pk_add_f32 {v(stt+i,2)}, {v(stt+i,2)}, {v(stt+8+i,2)}")
    a(f"""
    v_pk_add_f32 {v(stt,2)}, {v(stt,2)}, {v(stt+4,2)}
    v_pk_add_f32 {v(stt+2,2)}, {v(stt+2,2)}, {v(stt+6,2)}
    s_nop 0
    v_pk_add_f32 {v(stt,2)}, {v(stt,2)}, {v(stt+2,2)}
    s_nop 0
    v_mov_b32 v{stt+2}, v{stt}
    v_mov_b32 v{stt+3}, v{stt+1}
    s_nop 0
    v_permlane32_swap_b32 v{stt}, v{stt+2}
    v_permlane32_swap_b32 v{stt+1}, v{stt+3}
    s_nop 0
    v_add_f32 v{stt}, v{stt}, v{stt+2}
    v_add_f32 v{stt+1}, v{stt+1}, v{stt+3}
    v_mul_f32 v{stt+4}, {hexf(-1.0/512)}, v{stt}
    v_mul_f32 v{t1}, {hexf(1.0/512)}, v{stt+1}
    s_waitcnt lgkmcnt(0)
    """)
    for r in range(0, 96, 2):
        a(f"v_pk_mul_f32 {v(acc[0]+r,2)}, {v(acc[0]+r,2)}, {v(stt+4,2)} op_sel_hi:[1,0]")
    c0 = -2.0 * math.sqrt(2.0 / math.pi) * math.log2(math.e)
    c1 = c0 * 0.044715
    a(f"""
    v_fma_f32 v{t1}, -v{stt+4}, v{stt+4}, v{t1}
    v_max_f32 v{t1}, 0, v{t1}
    v_add_f32 v{kc+2}, {hexf(EPS)}, v{t1}
    v_rsq_f32 v{t0}, v{kc+2}
    s_nop 0
    v_mul_f32 v{t1}, v{t0}, v{t0}
    v_mul_f32 v{kc+1}, {hexf(c0)}, v{t0}
    v_mul_f32 v{t1}, v{t1}, v{t0}
    v_mul_f32 v{kc}, {hexf(c1)}, v{t1}
    """)

    def rd_a(ks2, dst):
        a(f"ds_read_b128 {v(dst,4)}, v{ca} offset:{ks2*1024}")

    def rd_w(ks2, j):
        for jj in range(2):
            a(f"ds_read_b64_tr_b16 {v(wf+4*j+2*jj,2)}, v{cw} offset:{ks2*6144+j*1024+jj*256}")

    def kstep(cur, nxt_ks2, tail=None):
        for j in range(6):
            if j % 2 == 0:
                a(f"s_waitcnt lgkmcnt({8 if j == 0 else 9})")
            a(f"v_mfma_f32_32x32x16_bf16 {v(acc[j],16)}, {v(wf+4*j,4)}, {v(an[cur],4)}, {v(acc[j],16)}")
            if j == 0:
                rd_a(nxt_ks2, an[1 - cur])
            rd_w(nxt_ks2, j)
            if tail and j in tail:
                a(tail[j])

    a("s_barrier")
    stamp(a, 2)
    if STAMP: a("s_waitcnt lgkmcnt(0)")
    rd_a(0, an[0])
    for j in range(6):
        rd_w(0, j)
    a.label("L_k4_loop")
    kstep(0, 1, {1: f"""
    s_add_u32 s{sRd}, s{sRd}, {SLOT}
    """, 2: f"""
    s_cmp_ge_u32 s{sRd}, {NS*SLOT}
    s_cselect_b32 s{sRd}, 0, s{sRd}
    """, 3: f"""
    v_add_u32 v{ca}, s{sRd}, v{ra}
    """, 5: f"""
    v_add_u32 v{cw}, s{sRd}, v{rw}
    s_barrier
    """})
    kstep(1, 0, {3: f"""
    s_add_u32 s{sC}, s{sC}, 1
    s_cmp_lt_u32 s{sC}, {NCH}
    """})
    a("s_cbranch_scc1 L_k4_loop")
    stamp(a, 3)
    a(f"""
    s_waitcnt lgkmcnt(0)
    s_nop 7
    """)
    for j in range(3):
        o = wf + 8 * j
        g = acc[j]; u = acc[3 + j]
        for r in range(0, 16, 2):
            a(f"v_pk_mul_f32 {v(z+r,2)}, {v(g+r,2)}, {v(g+r,2)}")
        for r in range(0, 16, 2):
            a(f"v_pk_fma_f32 {v(z+r,2)}, {v(z+r,2)}, {v(kc,2)}, {v(kc,2)} op_sel:[0,0,1] op_sel_hi:[1,0,1]")
        for r in range(0, 16, 2):
            a(f"v_pk_mul_f32 {v(z+r,2)}, {v(z+r,2)}, {v(g+r,2)}")
        for r in range(16):
            a(f"v_exp_f32 v{z+r}, v{z+r}")
        for r in range(0, 16, 2):
            a(f"v_pk_mul_f32 {v(g+r,2)}, {v(g+r,2)}, {v(u+r,2)}")
        for r in range(0, 16, 2):
            a(f"v_pk_fma_f32 {v(z+r,2)}, {v(z+r,2)}, {v(kc+2,2)}, {v(kc+2,2)} op_sel_hi:[1,0,0]")
        for r in range(16):
            a(f"v_rcp_f32 v{z+r}, v{z+r}")
        a("s_nop 0")
        for r in range(0, 16, 2):
            a(f"v_pk_mul_f32 {v(g+r,2)}, {v(g+r,2)}, {v(z+r,2)}")
        for r in range(8):
            a(f"v_cvt_pk_bf16_f32 v{o+r}, v{g+2*r}, v{g+2*r+1}")
        a(f"""
        buffer_store_dwordx4 {v(o,4)}, v{l16}, s[{SWS}:{SWS+3}], s{sT0} offen
        buffer_store_dwordx4 {v(o+4,4)}, v{l16}, s[{SWS}:{SWS+3}], s{sT0} offen offset:1024
        """)
        if j == 0:
            a(f"""
            s_cmp_eq_u32 s{sIss}, 1
            s_cbranch_scc1 L_k4_fin
            """)
        if j < 2:
            a(f"s_add_u32 s{sT0}, s{sT0}, 2048")
    a.pads_end(4)
    a.label("L_k4_fin")
    stamp(a, 4)
    stamp_flush(a, 3, 8, sWave, 4)
    a.label("L_k4_end")
    a("s_endpgm")
    return name, V.hi, 256, 512, CSL + 4096
```

```python
import os, re
WARMSET = set(os.environ.get("WARM", "k1,k2,k3").split(","))
PADSTEP = int(os.environ.get("PADSTEP", "512"))


def isize(l):
    op = l.split()[0]
    if op.startswith(("buffer_", "ds_", "global_", "v_mfma", "v_pk_", "v_dot", "s_load", "s_memtime", "s_memreal")):
        return 8
    if op.startswith("s_"):
        return 8 if re.search(r"0x[0-9a-f]+|\b\d{3,}\b", l) and not op.startswith(("s_waitcnt", "s_cbranch", "s_branch", "s_nop")) else 4
    return 8


class Asm:
    def __init__(self):
        self.lines = []
        self.uid = 0

    def __call__(self, s):
        for l in s.strip("\n").split("\n"):
            l = l.strip()
            if l:
                self.lines.append("    " + l)

    def pads_begin(self, tag, every=None):
        self.lines.append(f"@PADBEGIN {tag}")

    def pads_end(self, nchain):
        self.lines.append(f"@PADEND {nchain}")

    def warm(self, tag, sreg, nchain):
        if tag not in WARMSET:
            return
        self("s_mov_b64 exec, 0")
        for c in range(nchain):
            self(f"s_cmp_eq_u32 s{sreg}, {c}")
            self(f"s_cbranch_scc1 L_{tag}_pad{c}")
        self.label(f"L_{tag}_wret")
        self("s_mov_b64 exec, -1")

    def label(self, name):
        self.lines.append(name + ":")

    def raw(self, s):
        self.lines.append(s)

    def newlabel(self, base):
        self.uid += 1
        return f"L_{base}_{self.uid}"

    def text(self):
        return "\n".join(self.lines) + "\n"


class Regs:
    def __init__(self, start, limit, kind):
        self.n = start
        self.limit = limit
        self.kind = kind
        self.hi = start

    def alloc(self, cnt=1, align=1):
        self.n = (self.n + align - 1) // align * align
        r = self.n
        self.n += cnt
        assert self.n <= self.limit, f"out of {self.kind} regs"
        self.hi = max(self.hi, self.n)
        return r

    def mark(self):
        return self.n

    def release(self, m):
        self.n = m


def v(r, n=1):
    return f"v{r}" if n == 1 else f"v[{r}:{r+n-1}]"


def s(r, n=1):
    return f"s{r}" if n == 1 else f"s[{r}:{r+n-1}]"


def kernel_desc(name, vgpr, sgpr=96):
    vg = (vgpr + 7) // 8 * 8
    acc = (vg + 3) // 4 * 4
    return f""".p2align 6
.amdhsa_kernel {name}
  .amdhsa_next_free_vgpr {vg}
  .amdhsa_next_free_sgpr {sgpr}
  .amdhsa_accum_offset {acc}
  .amdhsa_group_segment_fixed_size 0
  .amdhsa_kernarg_size 80
  .amdhsa_user_sgpr_count 2
  .amdhsa_user_sgpr_kernarg_segment_ptr 1
  .amdhsa_system_sgpr_workgroup_id_x 1
.end_amdhsa_kernel
"""


def f32bits(x):
    import struct
    return struct.unpack("<I", struct.pack("<f", x))[0]


def hexf(x):
    return "0x%08x" % f32bits(x)


import os
STAMP = os.environ.get("STAMP", "0") == "1"
DBGOFF = 32 << 20


def stamp(a, i):
    if STAMP:
        a(f"s_memtime s[{64+2*i}:{65+2*i}]")


def stamp_real(a, i):
    if STAMP:
        a(f"s_memrealtime s[{64+2*i}:{65+2*i}]")


def stamp_flush(a, kidx, wsptr, swave, nw):
    if not STAMP:
        return
    a(f"""
    s_waitcnt vmcnt(0) lgkmcnt(0)
    s_memtime s[76:77]
    s_memrealtime s[78:79]
    s_mov_b32 s80, s{wsptr}
    s_mov_b32 s81, s{wsptr+1}
    s_mov_b32 s82, 0x4000000
    s_mov_b32 s83, 0x00020000
    s_add_u32 s84, s2, {kidx*256}
    s_lshl_b32 s84, s84, 3
    s_add_u32 s84, s84, s{swave}
    s_lshl_b32 s84, s84, 5
    s_add_u32 s84, s84, {hex(DBGOFF)}
    s_waitcnt lgkmcnt(0)
    v_mov_b32 v8, s64
    v_mov_b32 v9, s66
    v_mov_b32 v10, s68
    v_mov_b32 v11, s70
    v_mov_b32 v12, s72
    v_mov_b32 v13, s74
    v_mov_b32 v14, s76
    v_mov_b32 v15, s78
    v_mov_b32 v1, 0
    buffer_store_dwordx4 v[8:11], v1, s[80:83], s84 offen
    buffer_store_dwordx4 v[12:15], v1, s[80:83], s84 offen offset:16
    """)


def trace_init(a, vt):
    if STAMP:
        a(f"v_mov_b32 v{vt}, 0")


def trace(a, vt, sidx):
    if STAMP:
        a(f"""
        s_memtime s[90:91]
        s_waitcnt lgkmcnt(0)
        s_mov_b32 s92, m0
        s_mov_b32 m0, s{sidx}
        s_nop 0
        v_writelane_b32 v{vt}, s90, m0
        s_mov_b32 m0, s92
        """)


def trace_flush(a, vt, kidx, wsptr, swave, wsel, lane):
    if STAMP:
        lab = a.newlabel("tf")
        a(f"""
        s_cmp_lg_u32 s{swave}, {wsel}
        s_cbranch_scc1 {lab}
        s_mov_b32 s80, s{wsptr}
        s_mov_b32 s81, s{wsptr+1}
        s_mov_b32 s82, 0x4000000
        s_mov_b32 s83, 0x00020000
        s_add_u32 s84, s2, {kidx*256}
        s_lshl_b32 s84, s84, 8
        s_add_u32 s84, s84, {hex(DBGOFF + (1 << 20))}
        v_lshlrev_b32 v{lane}, 2, v{lane}
        s_nop 1
        buffer_store_dword v{vt}, v{lane}, s[80:83], s84 offen
        """)
        a.label(lab)
```

```python
from asmlib import *
import math, os

QF = 0
KF = 2 << 20
VF = 4 << 20
OF = 6 << 20
HF = 8 << 20
GF = 10 << 20
WS_SIZE = 16 << 20

EPS = 1e-5
QSCALE = 0.25 * math.log2(math.e)


def srd(a, dst, ptr, nbytes):
    a(f"""
    s_mov_b32 s{dst}, s{ptr}
    s_mov_b32 s{dst+1}, s{ptr+1}
    s_mov_b32 s{dst+2}, {hex(nbytes)}
    s_mov_b32 s{dst+3}, 0x00020000
    """)


def half_sum(a, r, t):
    a(f"""
    v_mov_b32 v{t}, v{r}
    s_nop 1
    v_permlane32_swap_b32 v{r}, v{t}
    s_nop 1
    v_add_f32 v{r}, v{r}, v{t}
    """)


def gen_k1(a):
    name = "qkv_kernel"
    V = Regs(1, 256, "v")
    a.raw(f".globl {name}\n.p2align 12\n.type {name},@function")
    a.label(name)
    SX, SW, SWS = 12, 16, 20
    sWave, sRb, sCg, sTt, sCh = 24, 25, 26, 27, 28
    sXo, sWo, sDm, sC, sM, sOne, sA, sB, sT0, sT1 = 29, 30, 31, 32, 33, 34, 35, 36, 37, 38
    sWb, sIs, sW4 = 40, 42, 44
    WR = 0x10000
    WSL = 12288
    NS = 8
    NCH = 16
    P = int(os.environ.get("P1", "6"))
    PRE = int(os.environ.get("PRE1", "2"))
    NT = os.environ.get("K1NT", "")
    STF = os.environ.get("ST1", "")
    a(f"""
    s_cmp_ge_u32 s2, 256
    s_cbranch_scc1 L_k1_end
    s_load_dwordx4 s[4:7], s[0:1], 0
    s_load_dwordx2 s[8:9], s[0:1], 72
    """)
    stamp(a, 0); stamp_real(a, 5)
    lane = V.alloc(); t0 = V.alloc(); t1 = V.alloc(); t2 = V.alloc()
    xd = V.alloc(); wd0 = V.alloc(); xw = V.alloc(); vt = V.alloc()
    xa = [V.alloc() for _ in range(4)]
    wa = [V.alloc() for _ in range(2)]
    X = V.alloc(32, 4)
    a(f"""
    v_lshrrev_b32 v{t0}, 6, v0
    v_and_b32 v{lane}, 63, v0
    s_and_b32 s{sT0}, s2, 7
    v_readfirstlane_b32 s{sWave}, v{t0}
    s_lshr_b32 s{sT1}, s2, 3
    s_and_b32 s{sRb}, s{sT0}, 3
    s_lshl_b32 s{sRb}, s{sRb}, 3
    s_and_b32 s{sM}, s{sT1}, 7
    s_add_u32 s{sRb}, s{sRb}, s{sM}
    s_lshr_b32 s{sCg}, s{sT0}, 2
    s_lshl_b32 s{sCg}, s{sCg}, 2
    s_lshr_b32 s{sT1}, s{sT1}, 3
    s_add_u32 s{sCg}, s{sCg}, s{sT1}
    s_lshl_b32 s{sT1}, s{sT1}, 1
    s_xor_b32 s{sM}, s{sM}, s{sT1}
    v_lshrrev_b32 v{t0}, 3, v{lane}
    v_and_b32 v{t1}, 7, v{lane}
    v_lshlrev_b32 v{xd}, 10, v{t0}
    v_lshl_add_u32 v{xd}, v{t1}, 4, v{xd}
    s_lshl_b32 s{sXo}, s{sRb}, 16
    s_lshl_b32 s{sT0}, s{sWave}, 13
    s_add_u32 s{sXo}, s{sXo}, s{sT0}
    s_lshl_b32 s{sT0}, s{sM}, 7
    s_add_u32 s{sXo}, s{sXo}, s{sT0}
    s_and_b32 s{sW4}, s{sWave}, 3
    s_and_b32 s{sTt}, s{sWave}, 1
    s_bfe_u32 s{sCh}, s{sWave}, 0x10001
    s_lshl_b32 s{sWb}, s{sCg}, 7
    s_lshl_b32 s{sT0}, s{sTt}, 6
    s_add_u32 s{sWb}, s{sWb}, s{sT0}
    s_mul_i32 s{sT0}, s{sCh}, {16*3072}
    s_add_u32 s{sWb}, s{sWb}, s{sT0}
    s_lshl_b32 s{sM}, s{sM}, 1
    s_mul_i32 s{sDm}, s{sW4}, 3072
    s_add_u32 s{sDm}, s{sDm}, {WR}
    v_lshrrev_b32 v{t2}, 2, v{lane}
    v_mul_u32_u24 v{t2}, 3072, v{t2}
    v_and_b32 v{wd0}, 3, v{lane}
    v_lshl_add_u32 v{wd0}, v{wd0}, 4, v{t2}
    s_mov_b32 s{sIs}, 0
    s_mov_b32 s{SX+2}, {hex(2048*1024)}
    s_mov_b32 s{SX+3}, 0x00020000
    s_mov_b32 s{SW+2}, {hex(512*3072)}
    s_mov_b32 s{SW+3}, 0x00020000
    s_waitcnt lgkmcnt(0)
    s_mov_b32 s{SX}, s4
    s_mov_b32 s{SX+1}, s5
    s_mov_b32 s{SW}, s6
    s_mov_b32 s{SW+1}, s7
    """)
    stamp(a, 1)

    def dma():
        return f"""
        s_xor_b32 s{sWo}, s{sIs}, s{sM}
        s_mov_b32 m0, s{sDm}
        s_mul_i32 s{sWo}, s{sWo}, {32*3072}
        s_add_u32 s{sDm}, s{sDm}, {WSL}
        s_add_u32 s{sWo}, s{sWo}, s{sWb}
        s_add_u32 s{sIs}, s{sIs}, 1
        buffer_load_dwordx4 v{wd0}, s[{SW}:{SW+3}], s{sWo} offen {NT} lds
        buffer_load_dwordx4 v{wd0}, s[{SW}:{SW+3}], s{sWo} offen offset:1024 {NT} lds
        buffer_load_dwordx4 v{wd0}, s[{SW}:{SW+3}], s{sWo} offen offset:2048 {NT} lds
        s_cmp_eq_u32 s{sIs}, {NS}
        s_cselect_b32 s{sT0}, {NS*WSL}, 0
        s_sub_u32 s{sDm}, s{sDm}, s{sT0}
        """

    def dma_if_loader(upto):
        lab = a.newlabel("k1d"); lp = a.newlabel("k1p")
        a(f"""
        s_cmp_lt_u32 s{sWave}, 4
        s_cbranch_scc1 {lab}
        """)
        a.label(lp)
        a(dma())
        a(f"""
        s_cmp_lt_u32 s{sIs}, {upto}
        s_cbranch_scc1 {lp}
        """)
        a.label(lab)

    if PRE:
        dma_if_loader(PRE)
    for i in range(8):
        if i:
            a(f"s_xor_b32 s{sT1}, s{sXo}, {i*128}")
        a(f"buffer_load_dwordx4 {v(X+4*i,4)}, v{xd}, s[{SX}:{SX+3}], s{sT1 if i else sXo} offen {NT}")
    srd(a, SWS, 8, WS_SIZE)
    acc = [V.alloc(16, 4) for _ in range(3)]
    wf = [V.alloc(12, 4) for _ in range(2)]
    xf = [V.alloc(4, 4) for _ in range(2)]
    st = V.alloc(4, 2)
    rs = V.alloc(2, 2); nmr = V.alloc(2, 2)
    un = V.alloc(8, 2)
    l16 = V.alloc(); vv = V.alloc()
    a(f"""
    v_xor_b32 v{t2}, v{t0}, v{t1}
    v_lshlrev_b32 v{t2}, 4, v{t2}
    v_lshl_add_u32 v{t2}, v{t1}, 9, v{t2}
    s_lshr_b32 s{sT0}, s{sWave}, 2
    s_lshl_b32 s{sT0}, s{sT0}, 15
    s_lshl_b32 s{sT1}, s{sW4}, 7
    s_add_u32 s{sT0}, s{sT0}, s{sT1}
    v_add_u32 v{xw}, s{sT0}, v{t2}
    s_mov_b32 s{sOne}, 0x3f803f80
    v_and_b32 v{t0}, 31, v{lane}
    v_lshrrev_b32 v{t2}, 5, v{lane}
    v_xor_b32 v{t1}, v{t0}, v{t2}
    v_lshlrev_b32 v{t1}, 4, v{t1}
    v_lshl_add_u32 v{t1}, v{t2}, 9, v{t1}
    s_lshl_b32 s{sT0}, s{sTt}, 15
    v_add_u32 v{xa[0]}, s{sT0}, v{t1}
    v_xor_b32 v{xa[1]}, 32, v{xa[0]}
    v_xor_b32 v{xa[2]}, 64, v{xa[0]}
    v_xor_b32 v{xa[3]}, 96, v{xa[0]}
    s_mul_i32 s{sT0}, s{sCh}, 3072
    s_add_u32 s{sT0}, s{sT0}, {WR}
    v_lshlrev_b32 v{t0}, 9, v{t2}
    v_bfe_u32 v{t1}, v{lane}, 2, 2
    v_lshl_add_u32 v{t0}, v{t1}, 6, v{t0}
    v_bfe_u32 v{t1}, v{lane}, 4, 1
    v_lshl_add_u32 v{t0}, v{t1}, 5, v{t0}
    v_and_b32 v{t1}, 3, v{lane}
    v_lshl_add_u32 v{t0}, v{t1}, 3, v{t0}
    v_add_u32 v{wa[0]}, s{sT0}, v{t0}
    v_add_u32 v{wa[1]}, {4*WSL}, v{wa[0]}
    v_lshlrev_b32 v{l16}, 4, v{lane}
    v_bfe_u32 v{t0}, v{lane}, 4, 1
    v_lshlrev_b32 v{vv}, 16, v{t0}
    v_lshl_add_u32 v{vv}, v{t2}, 8, v{vv}
    v_and_b32 v{t0}, 3, v{lane}
    v_lshl_add_u32 v{vv}, v{t0}, 4, v{vv}
    v_bfe_u32 v{t0}, v{lane}, 2, 1
    v_lshl_add_u32 v{vv}, v{t0}, 7, v{vv}
    v_bfe_u32 v{t0}, v{lane}, 3, 1
    v_lshl_add_u32 v{vv}, v{t0}, 6, v{vv}
    """)
    for r in range(48):
        a(f"v_mov_b32 v{acc[0]+r}, 0")
    for r in range(4):
        a(f"v_mov_b32 v{st+r}, 0")
    trace_init(a, vt)
    a.warm("k1", sWave, 8)
    a.pads_begin("k1")
    B = X
    for i in range(8):
        a(f"s_waitcnt vmcnt({7-i})")
        if i == 0:
            stamp(a, 2)
        for r in range(4 * i, 4 * i + 4):
            a(f"v_dot2_f32_bf16 v{st+(r&1)*2}, v{B+r}, s{sOne}, v{st+(r&1)*2}")
            a(f"v_dot2_f32_bf16 v{st+1+(r&1)*2}, v{B+r}, v{B+r}, v{st+1+(r&1)*2}")
    dma_if_loader(PRE + 2)
    a(f"""
    s_nop 0
    v_add_f32 v{st}, v{st}, v{st+2}
    v_add_f32 v{st+1}, v{st+1}, v{st+3}
    s_nop 0
    v_add_f32_dpp v{st}, v{st}, v{st} quad_perm:[1,0,3,2] row_mask:0xf bank_mask:0xf
    v_add_f32_dpp v{st+1}, v{st+1}, v{st+1} quad_perm:[1,0,3,2] row_mask:0xf bank_mask:0xf
    s_nop 0
    v_add_f32_dpp v{st}, v{st}, v{st} quad_perm:[2,3,0,1] row_mask:0xf bank_mask:0xf
    v_add_f32_dpp v{st+1}, v{st+1}, v{st+1} quad_perm:[2,3,0,1] row_mask:0xf bank_mask:0xf
    s_nop 0
    v_add_f32_dpp v{st}, v{st}, v{st} row_half_mirror row_mask:0xf bank_mask:0xf
    v_add_f32_dpp v{st+1}, v{st+1}, v{st+1} row_half_mirror row_mask:0xf bank_mask:0xf
    v_mul_f32 v{st}, {hexf(1.0/512)}, v{st}
    v_mul_f32 v{st+1}, {hexf(1.0/512)}, v{st+1}
    v_fma_f32 v{st+1}, -v{st}, v{st}, v{st+1}
    v_max_f32 v{st+1}, 0, v{st+1}
    v_add_f32 v{st+1}, {hexf(EPS)}, v{st+1}
    v_rsq_f32 v{rs}, v{st+1}
    s_nop 0
    v_mul_f32 v{nmr}, v{st}, v{rs}
    v_sub_f32 v{nmr}, 0, v{nmr}
    """)
    for i in range(8):
        for r in range(4):
            a(f"v_lshlrev_b32 v{un+2*r}, 16, v{B+4*i+r}")
            a(f"v_and_b32 v{un+2*r+1}, 0xffff0000, v{B+4*i+r}")
        for r in range(4):
            a(f"v_pk_fma_f32 {v(un+2*r,2)}, {v(un+2*r,2)}, {v(rs,2)}, {v(nmr,2)} op_sel_hi:[1,0,0]")
        for r in range(4):
            a(f"v_cvt_pk_bf16_f32 v{B+4*i+r}, v{un+2*r}, v{un+2*r+1}")
        a(f"ds_write_b128 v{xw}, {v(B+4*i,4)} offset:{i*4096}")
    a(f"""
    s_mov_b32 s{sC}, 0
    s_cmp_lt_u32 s{sWave}, 4
    s_cbranch_scc1 L_k1_compute
    """)
    assert PRE >= 1
    a(f"""
    s_waitcnt lgkmcnt(0)
    s_barrier
    """)
    trace(a, vt, sC)
    if STAMP: a(f"s_add_u32 s{sC}, s{sC}, 1")
    a.label("L_k1_pre")
    a(dma())
    a(f"""
    s_cmp_lt_u32 s{sIs}, {P+1}
    s_cbranch_scc1 L_k1_pre
    """)
    a.label("L_k1_ld")
    a(f"""
    s_waitcnt vmcnt({3*(P-1)})
    s_barrier
    """)
    trace(a, vt, sC)
    if STAMP: a(f"s_add_u32 s{sC}, s{sC}, 1")
    a(dma())
    a(f"""
    s_cmp_lt_u32 s{sIs}, {NCH}
    s_cbranch_scc1 L_k1_ld
    """)
    for r in range(P - 1, -1, -1):
        a(f"""
        s_waitcnt vmcnt({3*r})
        s_barrier
        """)
        trace(a, vt, sC)
        if STAMP: a(f"s_add_u32 s{sC}, s{sC}, 1")
    trace_flush(a, vt, 0, 8, sWave, 4, lane)
    a("s_endpgm")
    a.label("L_k1_compute")

    def rd_x(c, ks2):
        a(f"ds_read_b128 {v(xf[ks2],4)}, v{xa[(c&1)*2+ks2]} offset:{c*2048+ks2*1024}")

    def rd_w(c, ks2, seg):
        sl = c & 7
        for jj in range(2):
            a(f"ds_read_b64_tr_b16 {v(wf[ks2]+4*seg+2*jj,2)}, v{wa[sl>>2]} offset:{(sl&3)*WSL+ks2*6144+seg*1024+jj*256}")

    def mf(ks2, j):
        if j < 2:
            a(f"v_mfma_f32_32x32x16_bf16 {v(acc[j],16)}, {v(wf[ks2]+4*j,4)}, {v(xf[ks2],4)}, {v(acc[j],16)}")
        else:
            a(f"v_mfma_f32_32x32x16_bf16 {v(acc[j],16)}, {v(xf[ks2],4)}, {v(wf[ks2]+4*j,4)}, {v(acc[j],16)}")

    a(f"""
    s_lshl_b32 s{sT0}, s{sCg}, 2
    s_lshl_b32 s{sT1}, s{sCh}, 1
    s_add_u32 s{sT0}, s{sT0}, s{sT1}
    s_lshl_b32 s{sT0}, s{sT0}, 6
    s_lshl_b32 s{sT1}, s{sRb}, 1
    s_add_u32 s{sT0}, s{sT0}, s{sT1}
    s_add_u32 s{sT0}, s{sT0}, s{sTt}
    s_lshl_b32 s{sXo}, s{sT0}, 10
    s_mov_b32 s{sOne}, {hexf(QSCALE)}
    s_add_u32 s{sA}, s{sXo}, {hex(KF)}
    s_add_u32 s{sB}, s{sXo}, {hex(KF+65536)}
    s_add_u32 s{sT1}, s{sXo}, {hex(VF)}
    s_add_u32 s{sT0}, s{sXo}, {hex(QF+65536)}
    s_waitcnt lgkmcnt(0)
    s_barrier
    """)
    stamp(a, 3)
    if STAMP: a("s_waitcnt lgkmcnt(0)")
    for ks2 in range(2):
        for j in range(3):
            rd_w(0, ks2, j)
        rd_x(0, ks2)
    a.label("L_k1_loop")
    for c in range(8):
        if c == 7:
            a(f"""
            s_cmp_eq_u32 s{sC}, 1
            s_cbranch_scc1 L_k1_last
            """)
        a("s_barrier")
        for ks2 in range(2):
            a("s_waitcnt lgkmcnt(7)")
            for j in range(3):
                mf(ks2, j)
                rd_w(c + 1, ks2, j)
            rd_x(c + 1, ks2)
    for i in range(4):
        a(f"v_add_u32 v{xa[i]}, 0x4000, v{xa[i]}")
    a(f"""
    s_mov_b32 s{sC}, 1
    s_branch L_k1_loop
    """)
    a.label("L_k1_last")
    for ks2 in range(2):
        a(f"s_waitcnt lgkmcnt({7 if ks2 == 0 else 0})")
        for j in range(3):
            mf(ks2, j)
    stamp(a, 4)
    o = X
    a("s_nop 7\ns_nop 1")
    for r in range(16):
        a(f"v_mul_f32 v{acc[0]+r}, s{sOne}, v{acc[0]+r}")
    for r in range(8):
        a(f"v_cvt_pk_bf16_f32 v{o+8+r}, v{acc[1]+2*r}, v{acc[1]+2*r+1}")
    a(f"""
    buffer_store_dwordx4 {v(o+8,4)}, v{l16}, s[{SWS}:{SWS+3}], s{sA} offen {STF}
    buffer_store_dwordx4 {v(o+12,4)}, v{l16}, s[{SWS}:{SWS+3}], s{sB} offen {STF}
    """)
    for r in range(8):
        a(f"v_cvt_pk_bf16_f32 v{o+16+r}, v{acc[2]+2*r}, v{acc[2]+2*r+1}")
    a(f"""
    buffer_store_dwordx4 {v(o+16,4)}, v{vv}, s[{SWS}:{SWS+3}], s{sT1} offen {STF}
    buffer_store_dwordx4 {v(o+20,4)}, v{vv}, s[{SWS}:{SWS+3}], s{sT1} offen offset:512 {STF}
    """)
    for r in range(8):
        a(f"v_cvt_pk_bf16_f32 v{o+r}, v{acc[0]+2*r}, v{acc[0]+2*r+1}")
    assert QF == 0
    a(f"""
    buffer_store_dwordx4 {v(o,4)}, v{l16}, s[{SWS}:{SWS+3}], s{sXo} offen {STF}
    buffer_store_dwordx4 {v(o+4,4)}, v{l16}, s[{SWS}:{SWS+3}], s{sT0} offen {STF}
    """)
    a.pads_end(8)
    stamp_flush(a, 0, 8, sWave, 4)
    a.label("L_k1_end")
    a("s_endpgm")
    return name, V.hi, 256, 512, WR + NS * WSL
```

```python
from asmlib import *
import os
from k1 import QF, KF, VF, OF, WS_SIZE, srd
from k35 import tr_addr, CS, CSM, MAP5

ONES = 0x20000
XCH = 0x21000
FLAG = XCH + 8 * 9 * 256
MXS = FLAG + 64
LDS_K2 = MXS + 8 * 2 * 256


def gen_k2(a):
    name = "attn_kernel"
    V = Regs(1, 256, "v")
    a.raw(f".globl {name}\n.p2align 9\n.type {name},@function")
    a.label(name)
    a.pads_begin("k1")
    SWS = 12
    sWave, sHead, sQb, sQp, sKh, sIt, sT0, sT1, sG, sPass = 16, 17, 18, 19, 20, 21, 22, 23, 24, 25
    a(f"""
    s_cmp_ge_u32 s2, 256
    s_cbranch_scc1 L_k2_end
    s_load_dwordx2 s[8:9], s[0:1], 72
    s_load_dwordx16 s[32:47], s[0:1], 0
    """)
    stamp(a, 0); stamp_real(a, 5)
    lane = V.alloc(); t0 = V.alloc(); t1 = V.alloc(); l16 = V.alloc()
    ka = V.alloc(); va = V.alloc(); vs = V.alloc(); ka0 = V.alloc(); va0 = V.alloc()
    one = V.alloc(2, 2)
    Q = [V.alloc(4, 4) for _ in range(2)]
    M = [V.alloc(16, 4) for _ in range(2)]
    S = [V.alloc(16, 4) for _ in range(2)]
    O = [V.alloc(16, 4) for _ in range(2)]
    P = V.alloc(8, 4)
    Kf = [V.alloc(4, 4) for _ in range(2)]
    Vf = [V.alloc(8, 4) for _ in range(2)]
    a(f"""
    v_lshrrev_b32 v{t0}, 6, v0
    v_and_b32 v{lane}, 63, v0
    s_and_b32 s{sT0}, s2, 7
    v_readfirstlane_b32 s{sWave}, v{t0}
    s_lshr_b32 s{sT1}, s2, 3
    s_lshl_b32 s{sHead}, s{sT0}, 2
    s_and_b32 s{sT0}, s{sT1}, 3
    s_add_u32 s{sHead}, s{sHead}, s{sT0}
    s_lshr_b32 s{sQb}, s{sT1}, 2
    v_lshlrev_b32 v{l16}, 4, v{lane}
    s_and_b32 s{sQp}, s{sWave}, 3
    s_lshr_b32 s{sKh}, s{sWave}, 2
    """)
    a(f"""
    s_cmp_eq_u32 s{sWave}, 8
    s_cbranch_scc1 L_k2_svc
    s_lshl_b32 s{sT0}, s{sHead}, 16
    s_lshl_b32 s{sIt}, s{sQb}, 13
    s_add_u32 s{sT0}, s{sT0}, s{sIt}
    s_lshl_b32 s{sIt}, s{sQp}, 11
    s_add_u32 s{sT0}, s{sT0}, s{sIt}
    s_movk_i32 s{sG}, 0x43
    s_waitcnt lgkmcnt(0)
    """)
    assert QF == 0 and VF == KF + (2 << 20)
    srd(a, SWS, 8, WS_SIZE)
    stamp(a, 1)
    a(f"""
    buffer_load_dwordx4 {v(Q[0],4)}, v{l16}, s[{SWS}:{SWS+3}], s{sT0} offen
    buffer_load_dwordx4 {v(Q[1],4)}, v{l16}, s[{SWS}:{SWS+3}], s{sT0} offen offset:1024
    """)
    a.warm("k2", sWave, 8)
    initzero = "\n".join([f"v_mov_b32 v{O[q]+r}, 0" for q in range(2) for r in range(16)] +
                         [f"v_mov_b32 v{P+4+r}, 0" for r in range(4)] + [f"v_mov_b32 v{Vf[1]+4+r}, 0" for r in range(4)])
    a(f"""
    v_mov_b32 v{one}, 0x3f803f80
    v_and_b32 v{t0}, {0x16 if os.environ.get("ZROW", "1") == "1" else 0}, v0
    v_cmp_eq_u32 vcc, 0, v{t0}
    v_lshlrev_b32 v{t0}, 3, v0
    s_nop 0
    v_cndmask_b32 v{one}, 0, v{one}, vcc
    v_mov_b32 v{one+1}, v{one}
    v_add_u32 v{t0}, {hex(ONES)}, v{t0}
    ds_write_b64 v{t0}, {v(one,2)}
    s_lshl_b32 s{sT0}, s{sKh}, 15
    v_add_u32 v{ka0}, s{sT0}, v{l16}
    v_and_b32 v{t0}, 15, v{lane}
    v_lshlrev_b32 v{t0}, 4, v{t0}
    v_lshrrev_b32 v{t1}, 5, v{lane}
    v_lshl_add_u32 v{t1}, v{t1}, 8, v{t0}
    s_add_u32 s{sT0}, s{sT0}, 0x10000
    v_add_u32 v{t1}, s{sT0}, v{t1}
    v_add_u32 v{t0}, {hex(ONES-1024)}, v{t0}
    v_and_b32 v{vs}, 16, v{lane}
    v_cmp_eq_u32 vcc, 0, v{vs}
    v_mov_b32 v{vs}, 0x1000
    s_mov_b32 s{sPass}, 0
    v_cndmask_b32 v{va0}, v{t0}, v{t1}, vcc
    v_cndmask_b32 v{vs}, 0, v{vs}, vcc
    {initzero}
    s_waitcnt vmcnt(0) lgkmcnt(0)
    """)
    a(f"""
    s_barrier
    ds_read_b128 {v(Kf[1],4)}, v{l16}
    s_waitcnt lgkmcnt(0)
    v_mfma_f32_32x32x16_bf16 {v(S[0],16)}, {v(Kf[1],4)}, {v(Q[0],4)}, 0
    v_mfma_f32_32x32x16_bf16 {v(S[1],16)}, {v(Kf[1],4)}, {v(Q[1],4)}, 0
    s_nop 7
    s_nop 3
    """)

    def max16(dst, src):
        a(f"v_max3_f32 v{dst}, v{src}, v{src+1}, v{src+2}")
        for i in range(3, 15, 2):
            a(f"v_max3_f32 v{dst}, v{dst}, v{src+i}, v{src+i+1}")
        a(f"v_max_f32 v{dst}, v{dst}, v{src+15}")

    def half_max(r, t):
        a(f"""
        v_mov_b32 v{t}, v{r}
        s_nop 1
        v_permlane32_swap_b32 v{r}, v{t}
        s_nop 1
        v_max_f32 v{r}, v{r}, v{t}
        """)

    mx = [V.alloc(), V.alloc()]
    max16(mx[0], S[0])
    max16(mx[1], S[1])
    half_max(mx[0], t0)
    half_max(mx[1], t1)
    a.label("L_k2_start")
    for q in range(2):
        a(f"v_sub_f32 v{M[q]}, 0, v{mx[q]}")
        for r in range(1, 16):
            a(f"v_sub_f32 v{M[q]+r}, 0, v{mx[q]}")
    a(f"""
    v_mov_b32 v{ka}, v{ka0}
    v_mov_b32 v{va}, v{va0}
    v_add_u32 v{t0}, 1024, v{va0}
    ds_read_b128 {v(Kf[0],4)}, v{ka}
    """)
    a(f"""
    v_lshrrev_b32 v{t1}, 2, v{vs}
    v_sub_u32 v{t0}, v{t0}, v{t1}
    s_nop 0
    ds_read_b128 {v(Vf[0],4)}, v{t0}
    ds_read_b128 {v(Vf[0]+4,4)}, v{t0} offset:512
    """)
    a(f"""
    s_mov_b32 s{sIt}, 0
    s_waitcnt lgkmcnt(0)
    v_mfma_f32_32x32x16_bf16 {v(S[0],16)}, {v(Kf[0],4)}, {v(Q[0],4)}, {v(M[0],16)}
    s_nop 7
    s_nop 3
    """)
    stamp(a, 2)
    if STAMP: a("s_waitcnt lgkmcnt(0)")
    a.label("L_k2_loop")
    for u in range(8):
        t = u >> 1
        q = u & 1
        Sx = S[q]
        e = lambda i: a(f"v_exp_f32 v{Sx+i}, v{Sx+i}")
        c = lambda j: a(f"v_cvt_pk_bf16_f32 v{P+j}, v{Sx+2*j}, v{Sx+2*j+1}")
        tp = (u - 1) >> 1
        qp = (u - 1) & 1
        tn = (u + 1) >> 1
        qn = (u + 1) & 1
        e(0); e(1)
        a(f"v_mfma_f32_32x32x16_bf16 {v(O[qp],16)}, {v(Vf[tp&1]+4,4)}, {v(P+4,4)}, {v(O[qp],16)}")
        if q == 0:
            if t == 3:
                a(f"""
                s_bitcmp1_b32 s{sG}, s{sIt}
                s_cbranch_scc0 L_k2_syncback
                s_barrier
                """)
                a.label("L_k2_syncback")
            a(f"""
            ds_read_b128 {v(Kf[(t+1)&1],4)}, v{ka} offset:{(t+1)*1024}
            ds_read_b128 {v(Vf[(t+1)&1],4)}, v{va} offset:{(t+1)*1024}
            ds_read_b128 {v(Vf[(t+1)&1]+4,4)}, v{va} offset:{(t+1)*1024+512}
            """)
        e(2); e(3); c(0); c(1); e(4); e(5)
        if q == 1:
            a("s_waitcnt lgkmcnt(0)")
        a(f"v_mfma_f32_32x32x16_bf16 {v(S[qn],16)}, {v(Kf[tn&1],4)}, {v(Q[qn],4)}, {v(M[qn],16)}")
        e(6); e(7); c(2); c(3); e(8); e(9); e(10)
        a(f"v_mfma_f32_32x32x16_bf16 {v(O[q],16)}, {v(Vf[t&1],4)}, {v(P,4)}, {v(O[q],16)}")
        e(11); c(4); c(5); e(12); e(13)
        if u == 7:
            a(f"""
            v_add_u32 v{ka}, 0x1000, v{ka}
            v_add_u32 v{va}, v{vs}, v{va}
            s_add_u32 s{sIt}, s{sIt}, 1
            s_cmp_lt_u32 s{sIt}, 8
            """)
        e(14); e(15); c(6); c(7)
    a("s_cbranch_scc1 L_k2_loop")
    stamp(a, 3)
    a(f"""
    s_nop 1
    v_mfma_f32_32x32x16_bf16 {v(O[1],16)}, {v(Vf[1]+4,4)}, {v(P+4,4)}, {v(O[1],16)}
    """)
    xw = V.alloc(); xr = V.alloc(); fl = V.alloc()
    R = S[0]
    a(f"""
    s_mul_i32 s{sT0}, s{sWave}, {9*256}
    s_add_u32 s{sT0}, s{sT0}, {hex(XCH)}
    s_xor_b32 s{sT1}, s{sWave}, 4
    s_mul_i32 s{sT1}, s{sT1}, {9*256}
    s_add_u32 s{sT1}, s{sT1}, {hex(XCH)}
    v_add_u32 v{xw}, s{sT0}, v{l16}
    v_add_u32 v{xr}, s{sT1}, v{l16}
    v_lshl_add_u32 v{t0}, v{lane}, 2, s{sT0}
    v_lshl_add_u32 v{t1}, v{lane}, 2, s{sT1}
    s_lshl_b32 s{sT0}, s{sWave}, 2
    s_add_u32 s{sT0}, s{sT0}, {hex(FLAG)}
    v_mov_b32 v{fl}, s{sT0}
    s_mov_b32 s{sT1}, 0x5f800000
    s_nop 2
    v_cmp_nlt_f32 vcc, v{O[0]+8}, s{sT1}
    s_mov_b64 s[26:27], vcc
    v_cmp_nlt_f32 vcc, v{O[1]+8}, s{sT1}
    s_or_b64 s[26:27], s[26:27], vcc
    s_cselect_b32 s{sT0}, 1, 0
    v_mov_b32 v{one}, s{sT0}
    ds_write_b32 v{fl}, v{one}
    s_cmp_eq_u32 s{sKh}, 0
    s_cbranch_scc1 L_k2_x0
    """)
    a(f"""
    ds_write_b128 v{xw}, {v(O[0],4)}
    ds_write_b128 v{xw}, {v(O[0]+4,4)} offset:1024
    ds_write_b32 v{t0}, v{O[0]+8} offset:2048
    s_nop 1
    """)
    for r in range(9):
        a(f"v_mov_b32 v{P if False else M[0]+r}, v{O[1]+r}")
    a("s_branch L_k2_x1")
    a.label("L_k2_x0")
    a(f"""
    ds_write_b128 v{xw}, {v(O[1],4)}
    ds_write_b128 v{xw}, {v(O[1]+4,4)} offset:1024
    ds_write_b32 v{t0}, v{O[1]+8} offset:2048
    """)
    for r in range(9):
        a(f"v_mov_b32 v{M[0]+r}, v{O[0]+r}")
    a.label("L_k2_x1")
    F = S[1]
    a(f"""
    v_mov_b32 v{fl}, {hex(FLAG)}
    s_waitcnt lgkmcnt(0)
    s_barrier
    ds_read_b128 {v(F,4)}, v{fl}
    ds_read_b128 {v(F+4,4)}, v{fl} offset:16
    ds_read_b128 {v(R,4)}, v{xr}
    ds_read_b128 {v(R+4,4)}, v{xr} offset:1024
    ds_read_b32 v{R+8}, v{t1} offset:2048
    s_lshl_b32 s{sT0}, s{sQb}, 3
    s_lshl_b32 s{sT1}, s{sQp}, 1
    s_add_u32 s{sT0}, s{sT0}, s{sT1}
    s_add_u32 s{sT0}, s{sT0}, s{sKh}
    s_lshl_b32 s{sT0}, s{sT0}, 5
    s_add_u32 s{sT0}, s{sT0}, s{sHead}
    s_lshl_b32 s{sT0}, s{sT0}, 10
    s_add_u32 s{sT0}, s{sT0}, {hex(OF)}
    s_waitcnt lgkmcnt(3)
    v_or3_b32 v{F}, v{F}, v{F+1}, v{F+2}
    v_or3_b32 v{F+3}, v{F+3}, v{F+4}, v{F+5}
    v_or3_b32 v{F}, v{F}, v{F+6}, v{F+7}
    v_or_b32 v{F}, v{F}, v{F+3}
    s_nop 0
    v_readfirstlane_b32 s{sT1}, v{F}
    s_waitcnt lgkmcnt(0)
    v_add_f32 v{R+8}, v{R+8}, v{M[0]+8}
    v_rcp_f32 v{R+8}, v{R+8}
    s_andn2_b32 s{sT1}, s{sT1}, s{sPass}
    s_cbranch_scc1 L_k2_fallback
    """)
    for r in range(8):
        a(f"v_add_f32 v{R+r}, v{R+r}, v{M[0]+r}")
    for r in range(8):
        a(f"v_mul_f32 v{R+r}, v{R+r}, v{R+8}")
    for r in range(4):
        a(f"v_cvt_pk_bf16_f32 v{P+r}, v{R+2*r}, v{R+2*r+1}")
    a(f"buffer_store_dwordx4 {v(P,4)}, v{l16}, s[{SWS}:{SWS+3}], s{sT0} offen")
    stamp(a, 4)
    stamp_flush(a, 1, 8, sWave, 8)
    a.label("L_k2_end")
    a("s_endpgm")

    a.label("L_k2_svc")
    PS = 48
    sKV, sJ, sX, sM = 28, 29, 30, 31
    pa = S[0]; pd = S[1]
    a(f"""
    s_lshl_b32 s{sKV}, s{sHead}, 16
    s_add_u32 s{sKV}, s{sKV}, {hex(KF)}
    s_mov_b32 s{sM}, 0
    s_mov_b32 s{sIt}, 0
    s_waitcnt lgkmcnt(0)
    """)
    srd(a, SWS, 8, WS_SIZE)
    a.label("L_k2_grp")
    for part in range(4):
        lo = (part >> 1) * 0x10000 + (part & 1) * 0x8000
        go = (part >> 1) * (2 << 20) + (part & 1) * 0x8000
        a(f"""
        s_add_u32 m0, s{sM}, {hex(lo)}
        s_add_u32 s{sT0}, s{sKV}, {hex(go)}
        """)
        for i in range(4):
            a(f"buffer_load_dwordx4 v{l16}, s[{SWS}:{SWS+3}], s{sT0} offen offset:{i*1024} lds")
    a(f"""
    s_add_u32 s{sM}, s{sM}, 4096
    s_add_u32 s{sKV}, s{sKV}, 4096
    s_add_u32 s{sIt}, s{sIt}, 1
    s_waitcnt vmcnt(32)
    s_cmp_lg_u32 s{sIt}, 2
    s_cbranch_scc1 L_k2_g1
    s_waitcnt vmcnt(16)
    s_barrier
    """)
    a.label("L_k2_g1")
    a(f"""
    s_cmp_lg_u32 s{sIt}, 6
    s_cbranch_scc1 L_k2_g2
    s_barrier
    """)
    a.label("L_k2_g2")
    a(f"""
    s_cmp_lt_u32 s{sIt}, 8
    s_cbranch_scc1 L_k2_grp
    s_lshr_b32 s{sJ}, s2, 3
    s_and_b32 s{sX}, s2, 7
    s_mov_b32 s{PS+3}, 0x00020000
    v_lshlrev_b32 v{pa}, 7, v{lane}
    s_waitcnt vmcnt(0)
    s_barrier
    """)
    k = [0]

    def touch(areg, soff, off=0):
        a(f"buffer_load_dword v{pd+k[0]}, v{areg}, s[{PS}:{PS+3}], {soff} offen" + (f" offset:{off}" if off else ""))
        k[0] += 1

    def setp(p, n):
        a(f"""
        s_mov_b32 s{PS}, s{p}
        s_mov_b32 s{PS+1}, s{p+1}
        s_mov_b32 s{PS+2}, {hex(n)}
        """)
    if os.environ.get("PF", "1") == "1":
        setp(36, 512 * 1024)
        a(f"""
        s_lshl_b32 s{sT0}, s{sJ}, 14
        s_add_u32 s{sT1}, s{sT0}, 8192
        """)
        touch(pa, f"s{sT0}"); touch(pa, f"s{sT1}")
        setp(32, 2048 * 1024)
        a(f"""
        s_lshl_b32 s{sT0}, s{sX}, 5
        s_add_u32 s{sT0}, s{sT0}, s{sJ}
        s_lshl_b32 s{sT0}, s{sT0}, 13
        """)
        touch(pa, f"s{sT0}")
        a(f"""
        v_lshrrev_b32 v{pa+1}, 3, v{lane}
        v_mul_u32_u24 v{pa+1}, 2752, v{pa+1}
        v_and_b32 v{pa+2}, 7, v{lane}
        v_min_u32 v{pa+2}, 6, v{pa+2}
        v_lshl_add_u32 v{pa+1}, v{pa+2}, 7, v{pa+1}
        s_mul_i32 s{sT0}, s{sJ}, {16*2752}
        s_lshr_b32 s{sT1}, s{sX}, 1
        s_mul_i32 s{sT1}, s{sT1}, 768
        s_add_u32 s{sT0}, s{sT0}, s{sT1}
        v_add_u32 v{pa+1}, s{sT0}, v{pa+1}
        v_add_u32 v{pa+2}, {8*2752}, v{pa+1}
        """)
        for p in (40, 42):
            setp(p, 512 * 2752)
            touch(pa + 1, 0); touch(pa + 2, 0)
        setp(44, 1376 * 1024)
        if MAP5 == "48":
            a(f"""
            s_mul_i32 s{sT0}, s{sJ}, {43*1024}
            v_add_u32 v{pa+3}, s{sT0}, v{pa}
            """)
            for i in range(6):
                touch(pa + 3, 0)
                if i < 5:
                    a(f"v_add_u32 v{pa+3}, 8192, v{pa+3}")
        else:
            a(f"""
            v_lshrrev_b32 v{pa+3}, 2, v{lane}
            v_lshlrev_b32 v{pa+3}, 10, v{pa+3}
            v_and_b32 v{pa+4}, 3, v{lane}
            v_lshl_add_u32 v{pa+3}, v{pa+4}, 7, v{pa+3}
            s_mul_i32 s{sT0}, s{sJ}, {43*1024}
            s_lshr_b32 s{sT1}, s{sX}, 2
            s_lshl_b32 s{sT1}, s{sT1}, 9
            s_add_u32 s{sT0}, s{sT0}, s{sT1}
            v_add_u32 v{pa+3}, s{sT0}, v{pa+3}
            """)
            for i in range(3):
                touch(pa + 3, 0)
                if i < 2:
                    a(f"v_add_u32 v{pa+3}, 16384, v{pa+3}")
    cs = O[0]; wf = M[0]; on = Q[0]; wd = ka; rw = va
    a(f"""
    s_cmp_ge_u32 s2, 86
    s_cbranch_scc1 L_k2_end
    s_cmp_lt_u32 s2, 43
    s_cselect_b32 s{PS}, s40, s42
    s_cselect_b32 s{PS+1}, s41, s43
    s_cselect_b32 s{sT0}, 0, 43
    s_mov_b32 s{PS+2}, {hex(512*2752)}
    s_sub_u32 s{sJ}, s2, s{sT0}
    s_lshl_b32 s{sKV}, s{sJ}, 6
    v_lshrrev_b32 v{t0}, 2, v{lane}
    v_and_b32 v{t1}, 3, v{lane}
    v_mul_u32_u24 v{t0}, 2752, v{t0}
    v_lshl_add_u32 v{wd}, v{t1}, 4, v{t0}
    s_mov_b32 s{sIt}, 0
    """)
    tr_addr(a, rw, lane, t0, t1)
    a(f"v_add_u32 v{rw}, {hex(XCH)}, v{rw}")
    for r in range(4):
        a(f"v_mov_b32 v{on+r}, 0x3f803f80")
    for r in range(16):
        a(f"v_mov_b32 v{cs+r}, 0")
    a.label("L_k2_csb")
    a(f"""
    s_mov_b32 m0, {hex(XCH)}
    s_mov_b32 s{sM}, 0
    """)
    a.label("L_k2_csd")
    a(f"""
    buffer_load_dwordx4 v{wd}, s[{PS}:{PS+3}], s{sKV} offen lds
    s_add_u32 m0, m0, 1024
    s_add_u32 s{sKV}, s{sKV}, {16*2752}
    s_add_u32 s{sM}, s{sM}, 1
    s_cmp_lt_u32 s{sM}, 16
    s_cbranch_scc1 L_k2_csd
    v_mov_b32 v{t0}, v{rw}
    s_mov_b32 s{sM}, 0
    s_waitcnt vmcnt(0)
    """)
    a.label("L_k2_csm")
    for i in range(4):
        a(f"""
        ds_read_b64_tr_b16 {v(wf+4*i,2)}, v{t0} offset:{i*1024}
        ds_read_b64_tr_b16 {v(wf+4*i+2,2)}, v{t0} offset:{i*1024+256}
        """)
    a(f"""
    v_add_u32 v{t0}, 4096, v{t0}
    s_add_u32 s{sM}, s{sM}, 1
    s_cmp_lt_u32 s{sM}, 4
    s_waitcnt lgkmcnt(0)
    """)
    for i in range(4):
        a(f"v_mfma_f32_32x32x16_bf16 {v(cs,16)}, {v(wf+4*i,4)}, {v(on,4)}, {v(cs,16)}")
    a(f"""
    s_cbranch_scc1 L_k2_csm
    s_add_u32 s{sIt}, s{sIt}, 1
    s_cmp_lt_u32 s{sIt}, 2
    s_cbranch_scc1 L_k2_csb
    s_cmp_lt_u32 s2, 43
    s_cselect_b32 s{sT0}, 0, {CSM}
    s_lshl_b32 s{sJ}, s{sJ}, 7
    s_add_u32 s{sT0}, s{sT0}, s{sJ}
    s_add_u32 s{sT0}, s{sT0}, {hex(CS)}
    v_and_b32 v{t0}, 32, v{lane}
    s_mov_b32 s26, 1
    s_mov_b32 s27, 1
    s_mov_b64 exec, s[26:27]
    s_nop 3
    buffer_store_dwordx4 {v(cs,4)}, v{t0}, s[{SWS}:{SWS+3}], s{sT0} offen
    buffer_store_dwordx4 {v(cs+4,4)}, v{t0}, s[{SWS}:{SWS+3}], s{sT0} offen offset:16
    buffer_store_dwordx4 {v(cs+8,4)}, v{t0}, s[{SWS}:{SWS+3}], s{sT0} offen offset:64
    buffer_store_dwordx4 {v(cs+12,4)}, v{t0}, s[{SWS}:{SWS+3}], s{sT0} offen offset:80
    s_endpgm
    """)

    a.pads_end(8)
    a.label("L_k2_fallback")
    a(f"""
    s_mov_b32 s{sPass}, 1
    s_mov_b32 s{sG}, 0
    v_mov_b32 v{ka}, v{ka0}
    v_mov_b32 v{mx[0]}, 0xff800000
    v_mov_b32 v{mx[1]}, 0xff800000
    s_mov_b32 s{sIt}, 0
    """)
    a.label("L_k2_fbloop")
    a(f"""
    ds_read_b128 {v(Kf[0],4)}, v{ka}
    v_add_u32 v{ka}, 1024, v{ka}
    s_waitcnt lgkmcnt(0)
    v_mfma_f32_32x32x16_bf16 {v(S[0],16)}, {v(Kf[0],4)}, {v(Q[0],4)}, 0
    v_mfma_f32_32x32x16_bf16 {v(S[1],16)}, {v(Kf[0],4)}, {v(Q[1],4)}, 0
    s_nop 7
    s_nop 3
    """)
    for q in range(2):
        for i in range(0, 16, 2):
            a(f"v_max3_f32 v{mx[q]}, v{mx[q]}, v{S[q]+i}, v{S[q]+i+1}")
    a(f"""
    s_add_u32 s{sIt}, s{sIt}, 1
    s_cmp_lt_u32 s{sIt}, 32
    s_cbranch_scc1 L_k2_fbloop
    """)
    half_max(mx[0], t0)
    half_max(mx[1], t1)
    a(f"""
    s_lshl_b32 s{sT0}, s{sWave}, 9
    s_add_u32 s{sT0}, s{sT0}, {hex(MXS)}
    s_xor_b32 s{sT1}, s{sWave}, 4
    s_lshl_b32 s{sT1}, s{sT1}, 9
    s_add_u32 s{sT1}, s{sT1}, {hex(MXS)}
    v_lshl_add_u32 v{t0}, v{lane}, 2, s{sT0}
    v_lshl_add_u32 v{t1}, v{lane}, 2, s{sT1}
    ds_write_b32 v{t0}, v{mx[0]}
    ds_write_b32 v{t0}, v{mx[1]} offset:256
    s_waitcnt lgkmcnt(0)
    s_barrier
    ds_read_b32 v{S[0]}, v{t1}
    ds_read_b32 v{S[0]+1}, v{t1} offset:256
    s_waitcnt lgkmcnt(0)
    v_max_f32 v{mx[0]}, v{mx[0]}, v{S[0]}
    v_max_f32 v{mx[1]}, v{mx[1]}, v{S[0]+1}
    {initzero}
    s_branch L_k2_start
    """)
    return name, V.hi, 256, 576, LDS_K2
```

```python
from asmlib import *
import os
from k1 import OF, HF, GF, WS_SIZE, srd, half_sum

ST = (15 << 20) + (1 << 19)

CS = (15 << 20) + (3 << 18)
CSM = 8192
MAP5 = os.environ.get('MAP5', '48')


def tr_addr(a, dst, lane, t0, t1, sigma=True):
    a(f"""
    v_lshrrev_b32 v{t0}, 5, v{lane}
    v_lshlrev_b32 v{t0}, 9, v{t0}
    v_bfe_u32 v{t1}, v{lane}, 2, 2
    v_lshl_add_u32 v{t0}, v{t1}, 6, v{t0}
    v_bfe_u32 v{t1}, v{lane}, 4, 1
    v_lshl_add_u32 v{t0}, v{t1}, 5, v{t0}
    """)
    if sigma:
        a(f"""
        v_and_b32 v{t1}, 1, v{lane}
        v_lshl_add_u32 v{t0}, v{t1}, 4, v{t0}
        v_bfe_u32 v{t1}, v{lane}, 1, 1
        v_lshl_add_u32 v{dst}, v{t1}, 3, v{t0}
        """)
    else:
        a(f"""
        v_and_b32 v{t1}, 3, v{lane}
        v_lshl_add_u32 v{dst}, v{t1}, 3, v{t0}
        """)


def gen_splitk(a, which):
    wo = which == "wo"
    name = "wo_kernel" if wo else "down_kernel"
    L = "k3" if wo else "k5"
    KS = 32 if wo else 86
    NF = KS // 4
    NCH = (KS + 3) // 4
    NS = 8
    P = int(os.environ.get('P3' if wo else 'P5', '6'))
    ROT = os.environ.get('ROT3' if wo else 'ROT5', '2')
    assert P <= NS - 2
    AOFF = OF if wo else GF
    V = Regs(1, 128, "v")
    a.raw(f".globl {name}\n.p2align 9\n.type {name},@function")
    a.label(name)
    a.pads_begin("k2")
    SW, SWS, SR = 16, 20, 24
    sWave, sRb, sCg, sAo, sWo, sDm, sCk, sI, sN, sT0, sT1, sAb, sRd, sH, sW4, sWb = range(28, 44)
    a(f"""
    s_cmp_ge_u32 s2, 256
    s_cbranch_scc1 L_{L}_end
    s_load_dwordx2 s[4:5], s[0:1], {16 if wo else 48}
    s_load_dwordx2 s[6:7], s[0:1], {0 if wo else 56}
    s_load_dwordx2 s[8:9], s[0:1], 72
    """)
    stamp(a, 0); stamp_real(a, 5)
    lane = V.alloc(); t0 = V.alloc(); t1 = V.alloc(); l16 = V.alloc()
    a(f"""
    v_lshrrev_b32 v{t0}, 6, v0
    v_and_b32 v{lane}, 63, v0
    s_and_b32 s{sT0}, s2, 7
    v_readfirstlane_b32 s{sWave}, v{t0}
    s_lshr_b32 s{sT1}, s2, 3
    v_lshlrev_b32 v{l16}, 4, v{lane}
    """)
    if wo or MAP5 == '48':
        a(f"""
        s_lshl_b32 s{sRb}, s{sT0}, 2
        s_and_b32 s{sT0}, s{sT1}, 3
        s_add_u32 s{sRb}, s{sRb}, s{sT0}
        s_lshr_b32 s{sCg}, s{sT1}, 2
        s_mul_i32 s{sCk}, s{sCg if ROT == '1' else sT0}, {(1 if wo else 2) if ROT == '1' else ((2 if wo else 5) if ROT == '2' else 0)}
        """)
    else:
        a(f"""
        s_and_b32 s{sRb}, s{sT0}, 3
        s_lshl_b32 s{sRb}, s{sRb}, 3
        s_and_b32 s{sCg}, s{sT1}, 7
        s_add_u32 s{sRb}, s{sRb}, s{sCg}
        s_lshr_b32 s{sCg}, s{sT0}, 2
        s_lshl_b32 s{sCg}, s{sCg}, 2
        s_lshr_b32 s{sT1}, s{sT1}, 3
        s_add_u32 s{sCg}, s{sCg}, s{sT1}
        s_and_b32 s{sCk}, s{sRb}, 7
        s_mul_i32 s{sCk}, s{sT1 if ROT == '1' else sCk}, {5 if ROT == '1' else (2 if ROT == '2' else 0)}
        """)
    a(f"""
    s_and_b32 s{sW4}, s{sWave}, 3
    s_cmp_lt_u32 s{sWave}, 4
    s_cbranch_scc1 L_{L}_compute
    """)
    mk = V.mark()
    ad1 = V.alloc(); wd0 = V.alloc(); wd1 = V.alloc(); vt = V.alloc()
    a(f"""
    v_add_u32 v{ad1}, {KS*1024-1024}, v{l16}
    v_lshrrev_b32 v{t0}, 2, v{lane}
    v_and_b32 v{t1}, 3, v{lane}
    v_lshlrev_b32 v{t0}, 10, v{t0}
    v_lshl_add_u32 v{wd0}, v{t1}, 4, v{t0}
    v_add_u32 v{wd1}, 64, v{wd0}
    s_mul_i32 s{sAb}, s{sRb}, {2*KS*1024}
    s_lshl_b32 s{sT0}, s{sW4}, 10
    s_add_u32 s{sAb}, s{sAb}, s{sT0}
    s_add_u32 s{sAb}, s{sAb}, {hex(AOFF)}
    s_lshl_b32 s{sWb}, s{sW4}, 14
    s_lshl_b32 s{sT0}, s{sCg}, 7
    s_add_u32 s{sWb}, s{sWb}, s{sT0}
    s_lshl_b32 s{sDm}, s{sW4}, 12
    s_mov_b32 s{sI}, 0
    s_mov_b32 s{sN}, 0
    s_waitcnt lgkmcnt(0)
    """)
    srd(a, SW, 4, KS * 16 * 1024)
    srd(a, SWS, 8, WS_SIZE)
    trace_init(a, vt)

    def issue():
        a(f"""
        s_mov_b32 m0, s{sDm}
        s_add_u32 s{sDm}, s{sDm}, 0x4000
        buffer_load_dwordx4 v{l16}, s[{SWS}:{SWS+3}], s{sAo} offen lds
        buffer_load_dwordx4 v{ad1}, s[{SWS}:{SWS+3}], s{sAo} offen offset:1024 lds
        s_add_u32 m0, m0, 2048
        s_and_b32 s{sDm}, s{sDm}, {NS*0x4000-1}
        buffer_load_dwordx4 v{wd0}, s[{SW}:{SW+3}], s{sWo} offen lds
        s_add_u32 m0, m0, 1024
        s_add_u32 s{sI}, s{sI}, 1
        buffer_load_dwordx4 v{wd1}, s[{SW}:{SW+3}], s{sWo} offen lds
        """)

    def addr():
        a(f"""
        s_lshl_b32 s{sAo}, s{sCk}, 12
        s_lshl_b32 s{sWo}, s{sCk}, 16
        s_add_u32 s{sAo}, s{sAo}, s{sAb}
        s_add_u32 s{sWo}, s{sWo}, s{sWb}
        s_add_u32 s{sCk}, s{sCk}, 1
        s_cmp_ge_u32 s{sCk}, {NF}
        s_cselect_b32 s{sCk}, 0, s{sCk}
        """)

    if NCH != NF:
        a(f"""
        s_add_u32 s{sAo}, s{sAb}, {NF*4096}
        s_add_u32 s{sWo}, s{sWb}, {NF*65536}
        s_cmp_lt_u32 s{sW4}, {KS-4*NF}
        s_cbranch_scc1 L_{L}_pi
        s_add_u32 s{sDm}, s{sDm}, 0x4000
        s_add_u32 s{sI}, s{sI}, 1
        """)
    a.label(f"L_{L}_pre")
    addr()
    a.label(f"L_{L}_pi")
    issue()
    a(f"""
    s_cmp_lt_u32 s{sI}, {P}
    s_cbranch_scc1 L_{L}_pre
    """)
    a.label(f"L_{L}_ld")
    addr()
    a(f"""
    s_waitcnt vmcnt({4*(P-1)})
    s_barrier
    """)
    trace(a, vt, sN)
    if STAMP: a(f"s_add_u32 s{sN}, s{sN}, 1")
    issue()
    a(f"""
    s_cmp_lt_u32 s{sI}, {NCH}
    s_cbranch_scc1 L_{L}_ld
    """)
    for r in range(P - 1, -1, -1):
        a(f"""
        s_waitcnt vmcnt({4*r})
        s_barrier
        """)
        trace(a, vt, sN)
        if STAMP: a(f"s_add_u32 s{sN}, s{sN}, 1")
    trace_flush(a, vt, 2 if wo else 4, 8, sWave, 4, lane)
    a("s_endpgm")
    V.release(mk)
    a.label(f"L_{L}_compute")
    ra = V.alloc(); rw = V.alloc(); ca = V.alloc(); cw = V.alloc(); rm = V.alloc()
    res = V.alloc(8, 4)
    acc = V.alloc(16, 4)
    fr = [V.alloc(32, 4) for _ in range(2)]
    a(f"""
    s_and_b32 s{sT0}, s{sWave}, 1
    s_lshr_b32 s{sT1}, s{sWave}, 1
    v_and_b32 v{t0}, 31, v{lane}
    v_lshlrev_b32 v{t0}, 10, v{t0}
    v_lshrrev_b32 v{t1}, 5, v{lane}
    v_lshl_add_u32 v{rm}, v{t1}, 4, v{t0}
    s_lshl_b32 s{sH}, s{sRb}, 16
    s_lshl_b32 s{sN}, s{sT0}, 15
    s_add_u32 s{sH}, s{sH}, s{sN}
    s_lshl_b32 s{sN}, s{sCg}, 7
    s_add_u32 s{sI}, s{sH}, s{sN}
    s_lshl_b32 s{sN}, s{sT1}, 6
    s_add_u32 s{sI}, s{sI}, s{sN}
    v_add_u32 v{rm}, s{sI}, v{rm}
    s_lshl_b32 s{sN}, s{sCg}, 12
    s_add_u32 s{sH}, s{sH}, s{sN}
    s_lshl_b32 s{sN}, s{sT1}, 11
    s_add_u32 s{sH}, s{sH}, s{sN}
    s_add_u32 s{sH}, s{sH}, {hex(HF)}
    s_lshl_b32 s{sN}, s{sT0}, 10
    v_add_u32 v{ra}, s{sN}, v{l16}
    """)
    tr_addr(a, rw, lane, t0, t1)
    a(f"""
    s_lshl_b32 s{sN}, s{sT1}, 10
    s_add_u32 s{sN}, s{sN}, 2048
    v_add_u32 v{rw}, s{sN}, v{rw}
    v_mov_b32 v{ca}, v{ra}
    v_mov_b32 v{cw}, v{rw}
    s_mov_b32 s{sRd}, 0
    s_mov_b32 s{sI}, 0
    """)
    for r in range(16):
        a(f"v_mov_b32 v{acc+r}, 0")
    a("s_waitcnt lgkmcnt(0)")
    srd(a, SWS, 8, WS_SIZE)
    srd(a, SR, 6, 2048 * 1024)
    stamp(a, 1)
    a.warm(L, sWave, 4)
    if wo:
        a(f"""
        buffer_load_dwordx4 {v(res,4)}, v{rm}, s[{SR}:{SR+3}], 0 offen
        buffer_load_dwordx4 {v(res+4,4)}, v{rm}, s[{SR}:{SR+3}], 0 offen offset:32
        """)
    else:
        a(f"""
        buffer_load_dwordx4 {v(res,4)}, v{l16}, s[{SWS}:{SWS+3}], s{sH} offen
        buffer_load_dwordx4 {v(res+4,4)}, v{l16}, s[{SWS}:{SWS+3}], s{sH} offen offset:1024
        """)

    def reads(f, n=4):
        for k in range(n):
            a(f"""
            ds_read_b128 {v(f+8*k,4)}, v{ca} offset:{k*4096}
            ds_read_b64_tr_b16 {v(f+8*k+4,2)}, v{cw} offset:{k*4096}
            ds_read_b64_tr_b16 {v(f+8*k+6,2)}, v{cw} offset:{k*4096+256}
            """)

    def adv():
        a(f"""
        s_add_u32 s{sRd}, s{sRd}, 0x4000
        s_and_b32 s{sRd}, s{sRd}, {NS*0x4000-1}
        v_add_u32 v{ca}, s{sRd}, v{ra}
        v_add_u32 v{cw}, s{sRd}, v{rw}
        """)

    def mm(f, n=4):
        for k in range(n):
            a(f"v_mfma_f32_32x32x16_bf16 {v(acc,16)}, {v(f+8*k+4,4)}, {v(f+8*k,4)}, {v(acc,16)}")

    n0 = 4 if wo else KS - 4 * NF
    a("s_barrier")
    stamp(a, 2)
    if STAMP: a("s_waitcnt lgkmcnt(0)")
    f = fr[1]

    def rd(k):
        a(f"""
        ds_read_b128 {v(f+8*k,4)}, v{ca} offset:{k*4096}
        ds_read_b64_tr_b16 {v(f+8*k+4,2)}, v{cw} offset:{k*4096}
        ds_read_b64_tr_b16 {v(f+8*k+6,2)}, v{cw} offset:{k*4096+256}
        """)

    def mf(k):
        a(f"v_mfma_f32_32x32x16_bf16 {v(acc,16)}, {v(f+8*k+4,4)}, {v(f+8*k,4)}, {v(acc,16)}")

    for k in range(n0):
        rd(k)
    adv()
    if not wo:
        a("s_barrier")
        for k in range(4):
            if k < n0:
                a("s_waitcnt lgkmcnt(3)")
                mf(k)
            rd(k)
        adv()
    a.label(f"L_{L}_loop")
    a("s_barrier")
    for k in range(4):
        a("s_waitcnt lgkmcnt(9)")
        mf(k)
        rd(k)
        if k == 0:
            a(f"""
            s_add_u32 s{sRd}, s{sRd}, 0x4000
            s_and_b32 s{sRd}, s{sRd}, {NS*0x4000-1}
            """)
        if k == 1:
            a(f"""
            s_add_u32 s{sI}, s{sI}, 1
            s_cmp_lt_u32 s{sI}, {NCH-1 if wo else NCH-2}
            """)
    a(f"""
    v_add_u32 v{ca}, s{sRd}, v{ra}
    v_add_u32 v{cw}, s{sRd}, v{rw}
    s_cbranch_scc1 L_{L}_loop
    """)
    u = fr[0]
    a("s_waitcnt vmcnt(0)")
    for k in range(4):
        a(f"s_waitcnt lgkmcnt({9-3*k})")
        a(f"v_mfma_f32_32x32x16_bf16 {v(acc,16)}, {v(fr[1]+8*k+4,4)}, {v(fr[1]+8*k,4)}, {v(acc,16)}")
        for r in range(2 * k, 2 * k + 2):
            a(f"v_lshlrev_b32 v{u+2*r}, 16, v{res+r}")
            a(f"v_and_b32 v{u+2*r+1}, 0xffff0000, v{res+r}")
    stamp(a, 3)
    if wo:
        a(f"""
        s_and_b32 s{sT0}, s{sWave}, 1
        s_lshl_b32 s{sT1}, s{sRb}, 1
        s_add_u32 s{sT0}, s{sT0}, s{sT1}
        s_lshl_b32 s{sT0}, s{sT0}, 3
        s_add_u32 s{sT0}, s{sT0}, s{sCg}
        s_lshl_b32 s{sT0}, s{sT0}, 9
        s_lshr_b32 s{sT1}, s{sWave}, 1
        s_lshl_b32 s{sT1}, s{sT1}, 3
        s_add_u32 s{sT0}, s{sT0}, s{sT1}
        s_add_u32 s{sT0}, s{sT0}, {hex(ST)}
        s_mov_b32 s{sT1}, 0x3f803f80
        """)
    else:
        a("s_nop 7")
    for r in range(0, 16, 2):
        a(f"v_pk_add_f32 {v(acc+r,2)}, {v(acc+r,2)}, {v(u+r,2)}")
    o = fr[1]
    for r in range(8):
        a(f"v_cvt_pk_bf16_f32 v{o+r}, v{acc+2*r}, v{acc+2*r+1}")
    if wo:
        a(f"""
        buffer_store_dwordx4 {v(o,4)}, v{l16}, s[{SWS}:{SWS+3}], s{sH} offen
        buffer_store_dwordx4 {v(o+4,4)}, v{l16}, s[{SWS}:{SWS+3}], s{sH} offen offset:1024
        """)
        sm = fr[0] + 16
        a(f"""
        v_mov_b32 v{sm}, 0
        v_mov_b32 v{sm+1}, 0
        """)
        for r in range(8):
            a(f"v_dot2_f32_bf16 v{sm}, v{o+r}, s{sT1}, v{sm}")
            a(f"v_dot2_f32_bf16 v{sm+1}, v{o+r}, v{o+r}, v{sm+1}")
        a(f"""
        v_and_b32 v{t1}, 0x1ff, v{l16}
        s_nop 1
        v_mov_b32 v{sm+2}, v{sm}
        v_mov_b32 v{sm+3}, v{sm+1}
        s_nop 0
        v_permlane32_swap_b32 v{sm}, v{sm+2}
        v_permlane32_swap_b32 v{sm+1}, v{sm+3}
        s_nop 0
        v_add_f32 v{sm}, v{sm}, v{sm+2}
        v_add_f32 v{sm+1}, v{sm+1}, v{sm+3}
        buffer_store_dwordx2 {v(sm,2)}, v{t1}, s[{SWS}:{SWS+3}], s{sT0} offen
        """)
    else:
        a(f"""
        buffer_store_dwordx4 {v(o,4)}, v{rm}, s[{SR}:{SR+3}], 0 offen
        buffer_store_dwordx4 {v(o+4,4)}, v{rm}, s[{SR}:{SR+3}], 0 offen offset:32
        """)
    a.pads_end(4)
    stamp(a, 4)
    stamp_flush(a, 2 if wo else 4, 8, sWave, 4)
    a.label(f"L_{L}_end")
    a("s_endpgm")
    return name, V.hi, 256, 512, NS * 0x4000
```

```python
from asmlib import *
from k1 import HF, GF, WS_SIZE, EPS, srd, half_sum
from k35 import ST, CS, CSM, tr_addr
import math, os

NS = int(os.environ.get('NS4', '7'))
P = int(os.environ.get('P4', '4'))
SLOT = 20480
NCH = 16
CSL = NS * SLOT


def gen_k4(a):
    name = "ffn1_kernel"
    V = Regs(1, 256, "v")
    a.raw(f".globl {name}\n.p2align 9\n.type {name},@function")
    a.label(name)
    a.pads_begin("k3")
    SW, SWS = 12, 16
    sWave, sRb, sCg, sAo, sWo, sDm, sC, sRd, sT0, sT1, sA, sB, sIss, sW4, sCk, sAb = range(24, 40)
    assert P <= NS - 2
    a(f"""
    s_cmp_ge_u32 s2, 256
    s_cbranch_scc1 L_k4_end
    s_load_dwordx4 s[4:7], s[0:1], 32
    s_load_dwordx2 s[8:9], s[0:1], 72
    """)
    stamp(a, 0); stamp_real(a, 5)
    lane = V.alloc(); t0 = V.alloc(); t1 = V.alloc(); l16 = V.alloc()
    a(f"""
    v_lshrrev_b32 v{t0}, 6, v0
    v_and_b32 v{lane}, 63, v0
    s_and_b32 s{sT0}, s2, 7
    v_readfirstlane_b32 s{sWave}, v{t0}
    s_lshr_b32 s{sT1}, s2, 3
    s_and_b32 s{sRb}, s{sT0}, 1
    s_lshl_b32 s{sRb}, s{sRb}, 3
    s_and_b32 s{sCg}, s{sT1}, 7
    s_add_u32 s{sRb}, s{sRb}, s{sCg}
    s_lshr_b32 s{sCg}, s{sT0}, 1
    s_lshl_b32 s{sCg}, s{sCg}, 2
    s_lshr_b32 s{sT1}, s{sT1}, 3
    s_add_u32 s{sCg}, s{sCg}, s{sT1}
    s_cmp_eq_u32 s{sCg}, 15
    s_cbranch_scc1 L_k4_end
    s_lshl_b32 s{sCk}, s{sT1}, 2
    s_and_b32 s{sCk}, s{sCk}, {15 if os.environ.get('ROT4', '0') == '1' else 0}
    v_lshlrev_b32 v{l16}, 4, v{lane}
    s_and_b32 s{sW4}, s{sWave}, 3
    s_lshl_b32 s{sA}, s{sW4}, 11
    s_lshl_b32 s{sT0}, s{sRb}, 2
    s_add_u32 s{sT0}, s{sT0}, s{sW4}
    s_mov_b32 s{sC}, 0
    s_cmp_lt_u32 s{sWave}, 4
    s_cbranch_scc1 L_k4_compute
    """)
    mk = V.mark()
    wd = [V.alloc() for _ in range(3)]
    vt = V.alloc()
    a(f"""
    v_lshrrev_b32 v{t0}, 2, v{lane}
    v_and_b32 v{t1}, 3, v{lane}
    v_mul_u32_u24 v{t0}, 2752, v{t0}
    v_lshl_add_u32 v{wd[0]}, v{t1}, 4, v{t0}
    v_add_u32 v{wd[1]}, 64, v{wd[0]}
    v_add_u32 v{wd[2]}, 128, v{wd[0]}
    s_lshl_b32 s{sAb}, s{sT0}, 15
    s_add_u32 s{sAb}, s{sAb}, {hex(HF)}
    s_lshl_b32 s{sAo}, s{sCk}, 11
    s_add_u32 s{sAo}, s{sAo}, s{sAb}
    s_lshr_b32 s{sT0}, s{sW4}, 1
    s_mul_i32 s{sWo}, s{sT0}, {16*2752}
    s_mul_i32 s{sT0}, s{sCg}, 192
    s_add_u32 s{sWo}, s{sWo}, s{sT0}
    s_mul_i32 s{sT0}, s{sCk}, {32*2752}
    s_add_u32 s{sWo}, s{sWo}, s{sT0}
    s_mul_i32 s{sB}, s{sW4}, 3072
    s_add_u32 s{sB}, s{sB}, 8192
    s_mov_b32 s{sDm}, 0
    s_mov_b32 s{sIss}, 0
    s_bitcmp1_b32 s{sWave}, 0
    s_waitcnt lgkmcnt(0)
    s_cselect_b32 s{SW}, s6, s4
    s_cselect_b32 s{SW+1}, s7, s5
    s_mov_b32 s{SW+2}, {hex(512*2752)}
    s_mov_b32 s{SW+3}, 0x00020000
    """)
    srd(a, SWS, 8, WS_SIZE)
    trace_init(a, vt)

    def dma_chunk():
        a(f"""
        s_add_u32 m0, s{sDm}, s{sA}
        s_add_u32 s{sT1}, s{sDm}, s{sB}
        buffer_load_dwordx4 v{l16}, s[{SWS}:{SWS+3}], s{sAo} offen lds
        buffer_load_dwordx4 v{l16}, s[{SWS}:{SWS+3}], s{sAo} offen offset:1024 lds
        s_mov_b32 m0, s{sT1}
        s_add_u32 s{sAo}, s{sAo}, 2048
        buffer_load_dwordx4 v{wd[0]}, s[{SW}:{SW+3}], s{sWo} offen lds
        s_add_u32 m0, s{sT1}, 1024
        s_add_u32 s{sDm}, s{sDm}, {SLOT}
        buffer_load_dwordx4 v{wd[1]}, s[{SW}:{SW+3}], s{sWo} offen lds
        s_add_u32 m0, s{sT1}, 2048
        s_cmp_ge_u32 s{sDm}, {NS*SLOT}
        buffer_load_dwordx4 v{wd[2]}, s[{SW}:{SW+3}], s{sWo} offen lds
        s_cselect_b32 s{sDm}, 0, s{sDm}
        s_add_u32 s{sWo}, s{sWo}, {32*2752}
        s_cmp_ge_u32 s{sWo}, {512*2752}
        s_cselect_b32 s{sT0}, {512*2752}, 0
        s_cselect_b32 s{sAo}, s{sAb}, s{sAo}
        s_sub_u32 s{sWo}, s{sWo}, s{sT0}
        s_add_u32 s{sIss}, s{sIss}, 1
        """)

    a.label("L_k4_pre")
    dma_chunk()
    a(f"""
    s_cmp_lt_u32 s{sIss}, {P}
    s_cbranch_scc1 L_k4_pre
    """)
    a.label("L_k4_ldloop")
    a(f"""
    s_waitcnt vmcnt({5*(P-1)})
    s_barrier
    """)
    trace(a, vt, sC)
    if STAMP: a(f"s_add_u32 s{sC}, s{sC}, 1")
    dma_chunk()
    a(f"""
    s_cmp_lt_u32 s{sIss}, {NCH}
    s_cbranch_scc1 L_k4_ldloop
    """)
    for r in range(P - 1, -1, -1):
        a(f"""
        s_waitcnt vmcnt({5*r})
        s_barrier
        """)
        trace(a, vt, sC)
        if STAMP: a(f"s_add_u32 s{sC}, s{sC}, 1")
    trace_flush(a, vt, 3, 8, sWave, 4, lane)
    a("s_endpgm")
    V.release(mk)
    a.label("L_k4_compute")
    ra = V.alloc(); rw = V.alloc(); cw = V.alloc(); ca = V.alloc(); csa = V.alloc()
    acc = [V.alloc(16, 4) for _ in range(6)]
    wf = V.alloc(24, 4)
    an = [V.alloc(4, 4) for _ in range(2)]
    z = V.alloc(16, 4)
    kc = V.alloc(4, 4)
    stt = z
    a(f"""
    s_lshl_b32 s{sT1}, s{sT0}, 12
    s_add_u32 s{sT1}, s{sT1}, {hex(ST)}
    v_and_b32 v{t0}, 0x1ff, v{l16}
    v_lshrrev_b32 v{t1}, 5, v{lane}
    v_lshl_add_u32 v{t0}, v{t1}, 11, v{t0}
    v_min_u32 v{csa}, {47*16}, v{l16}
    v_cmp_lt_u32 vcc, {23*16}, v{csa}
    v_mov_b32 v{ra}, {CSM-384}
    s_mul_i32 s{sB}, s{sCg}, 384
    v_cndmask_b32 v{ra}, 0, v{ra}, vcc
    s_add_u32 s{sB}, s{sB}, {hex(CS)}
    v_add_u32 v{csa}, v{csa}, v{ra}
    s_lshl_b32 s{sRd}, s{sWave}, 10
    s_add_u32 s{sRd}, s{sRd}, {CSL}
    s_mov_b32 m0, s{sRd}
    s_waitcnt lgkmcnt(0)
    """)
    srd(a, SWS, 8, WS_SIZE)
    a(f"buffer_load_dwordx4 v{csa}, s[{SWS}:{SWS+3}], s{sB} offen lds")
    for i in range(4):
        a(f"buffer_load_dwordx4 {v(stt+4*i,4)}, v{t0}, s[{SWS}:{SWS+3}], s{sT1} offen offset:{i*512}")
    a(f"""
    v_and_b32 v{csa}, 32, v{lane}
    v_add_u32 v{csa}, s{sRd}, v{csa}
    v_add_u32 v{ra}, s{sA}, v{l16}
    """)
    tr_addr(a, rw, lane, t0, t1)
    a(f"""
    v_add_u32 v{rw}, 8192, v{rw}
    v_mov_b32 v{ca}, v{ra}
    v_mov_b32 v{cw}, v{rw}
    s_mov_b32 s{sRd}, 0
    s_mul_i32 s{sT0}, s{sT0}, 86
    s_mul_i32 s{sT1}, s{sCg}, 6
    s_add_u32 s{sT0}, s{sT0}, s{sT1}
    s_lshl_b32 s{sT0}, s{sT0}, 10
    s_add_u32 s{sT0}, s{sT0}, {hex(GF)}
    s_cmp_eq_u32 s{sCg}, 14
    s_cselect_b32 s{sIss}, 1, 3
    """)
    stamp(a, 1)
    a.warm("k4", sWave, 4)
    a("s_waitcnt vmcnt(4)")
    if STAMP: a("s_waitcnt lgkmcnt(0)")
    for j in range(6):
        for q in range(4):
            a(f"ds_read_b128 {v(acc[j]+4*q,4)}, v{csa} offset:{j*128+(q>>1)*64+(q&1)*16}")
    a("s_waitcnt vmcnt(0)")
    for i in range(0, 8, 2):
        a(f"v_pk_add_f32 {v(stt+i,2)}, {v(stt+i,2)}, {v(stt+8+i,2)}")
    a(f"""
    v_pk_add_f32 {v(stt,2)}, {v(stt,2)}, {v(stt+4,2)}
    v_pk_add_f32 {v(stt+2,2)}, {v(stt+2,2)}, {v(stt+6,2)}
    s_nop 0
    v_pk_add_f32 {v(stt,2)}, {v(stt,2)}, {v(stt+2,2)}
    s_nop 0
    v_mov_b32 v{stt+2}, v{stt}
    v_mov_b32 v{stt+3}, v{stt+1}
    s_nop 0
    v_permlane32_swap_b32 v{stt}, v{stt+2}
    v_permlane32_swap_b32 v{stt+1}, v{stt+3}
    s_nop 0
    v_add_f32 v{stt}, v{stt}, v{stt+2}
    v_add_f32 v{stt+1}, v{stt+1}, v{stt+3}
    v_mul_f32 v{stt+4}, {hexf(-1.0/512)}, v{stt}
    v_mul_f32 v{t1}, {hexf(1.0/512)}, v{stt+1}
    s_waitcnt lgkmcnt(0)
    """)
    for r in range(0, 96, 2):
        a(f"v_pk_mul_f32 {v(acc[0]+r,2)}, {v(acc[0]+r,2)}, {v(stt+4,2)} op_sel_hi:[1,0]")
    c0 = -2.0 * math.sqrt(2.0 / math.pi) * math.log2(math.e)
    c1 = c0 * 0.044715
    a(f"""
    v_fma_f32 v{t1}, -v{stt+4}, v{stt+4}, v{t1}
    v_max_f32 v{t1}, 0, v{t1}
    v_add_f32 v{kc+2}, {hexf(EPS)}, v{t1}
    v_rsq_f32 v{t0}, v{kc+2}
    s_nop 0
    v_mul_f32 v{t1}, v{t0}, v{t0}
    v_mul_f32 v{kc+1}, {hexf(c0)}, v{t0}
    v_mul_f32 v{t1}, v{t1}, v{t0}
    v_mul_f32 v{kc}, {hexf(c1)}, v{t1}
    """)

    def rd_a(ks2, dst):
        a(f"ds_read_b128 {v(dst,4)}, v{ca} offset:{ks2*1024}")

    def rd_w(ks2, j):
        for jj in range(2):
            a(f"ds_read_b64_tr_b16 {v(wf+4*j+2*jj,2)}, v{cw} offset:{ks2*6144+j*1024+jj*256}")

    def kstep(cur, nxt_ks2, tail=None):
        for j in range(6):
            if j % 2 == 0:
                a(f"s_waitcnt lgkmcnt({8 if j == 0 else 9})")
            a(f"v_mfma_f32_32x32x16_bf16 {v(acc[j],16)}, {v(wf+4*j,4)}, {v(an[cur],4)}, {v(acc[j],16)}")
            if j == 0:
                rd_a(nxt_ks2, an[1 - cur])
            rd_w(nxt_ks2, j)
            if tail and j in tail:
                a(tail[j])

    a("s_barrier")
    stamp(a, 2)
    if STAMP: a("s_waitcnt lgkmcnt(0)")
    rd_a(0, an[0])
    for j in range(6):
        rd_w(0, j)
    a.label("L_k4_loop")
    kstep(0, 1, {1: f"""
    s_add_u32 s{sRd}, s{sRd}, {SLOT}
    """, 2: f"""
    s_cmp_ge_u32 s{sRd}, {NS*SLOT}
    s_cselect_b32 s{sRd}, 0, s{sRd}
    """, 3: f"""
    v_add_u32 v{ca}, s{sRd}, v{ra}
    """, 5: f"""
    v_add_u32 v{cw}, s{sRd}, v{rw}
    s_barrier
    """})
    kstep(1, 0, {3: f"""
    s_add_u32 s{sC}, s{sC}, 1
    s_cmp_lt_u32 s{sC}, {NCH}
    """})
    a("s_cbranch_scc1 L_k4_loop")
    stamp(a, 3)
    a(f"""
    s_waitcnt lgkmcnt(0)
    s_nop 7
    """)
    for j in range(3):
        o = wf + 8 * j
        g = acc[j]; u = acc[3 + j]
        for r in range(0, 16, 2):
            a(f"v_pk_mul_f32 {v(z+r,2)}, {v(g+r,2)}, {v(g+r,2)}")
        for r in range(0, 16, 2):
            a(f"v_pk_fma_f32 {v(z+r,2)}, {v(z+r,2)}, {v(kc,2)}, {v(kc,2)} op_sel:[0,0,1] op_sel_hi:[1,0,1]")
        for r in range(0, 16, 2):
            a(f"v_pk_mul_f32 {v(z+r,2)}, {v(z+r,2)}, {v(g+r,2)}")
        for r in range(16):
            a(f"v_exp_f32 v{z+r}, v{z+r}")
        for r in range(0, 16, 2):
            a(f"v_pk_mul_f32 {v(g+r,2)}, {v(g+r,2)}, {v(u+r,2)}")
        for r in range(0, 16, 2):
            a(f"v_pk_fma_f32 {v(z+r,2)}, {v(z+r,2)}, {v(kc+2,2)}, {v(kc+2,2)} op_sel_hi:[1,0,0]")
        for r in range(16):
            a(f"v_rcp_f32 v{z+r}, v{z+r}")
        a("s_nop 0")
        for r in range(0, 16, 2):
            a(f"v_pk_mul_f32 {v(g+r,2)}, {v(g+r,2)}, {v(z+r,2)}")
        for r in range(8):
            a(f"v_cvt_pk_bf16_f32 v{o+r}, v{g+2*r}, v{g+2*r+1}")
        a(f"""
        buffer_store_dwordx4 {v(o,4)}, v{l16}, s[{SWS}:{SWS+3}], s{sT0} offen
        buffer_store_dwordx4 {v(o+4,4)}, v{l16}, s[{SWS}:{SWS+3}], s{sT0} offen offset:1024
        """)
        if j == 0:
            a(f"""
            s_cmp_eq_u32 s{sIss}, 1
            s_cbranch_scc1 L_k4_fin
            """)
        if j < 2:
            a(f"s_add_u32 s{sT0}, s{sT0}, 2048")
    a.pads_end(4)
    a.label("L_k4_fin")
    stamp(a, 4)
    stamp_flush(a, 3, 8, sWave, 4)
    a.label("L_k4_end")
    a("s_endpgm")
    return name, V.hi, 256, 512, CSL + 4096
```

```python
import os, re
WARMSET = set(os.environ.get("WARM", "k1,w2,w3").split(","))
PADSTEP = int(os.environ.get("PADSTEP", "512"))


def isize(l):
    op = l.split()[0]
    if op.startswith(("buffer_", "ds_", "global_", "v_mfma", "v_pk_", "v_dot", "s_load", "s_memtime", "s_memreal")):
        return 8
    if op.startswith("s_"):
        return 8 if re.search(r"0x[0-9a-f]+|\b\d{3,}\b", l) and not op.startswith(("s_waitcnt", "s_cbranch", "s_branch", "s_nop")) else 4
    return 8


class Asm:
    def __init__(self):
        self.lines = []
        self.uid = 0

    def __call__(self, s, nopad=False):
        if nopad:
            self.lines.append('@NOPAD 1')
            self(s)
            self.lines.append('@NOPAD 0')
            return
        for l in s.strip("\n").split("\n"):
            l = l.strip()
            if l:
                self.lines.append("    " + l)

    def pads_begin(self, tag, every=None):
        self.lines.append(f"@PADBEGIN {tag}")

    def pads_end(self, nchain):
        self.lines.append(f"@PADEND {nchain}")

    def warm_exit(self, tag, sreg, nchain, base=0):
        if tag in WARMSET:
            self("s_mov_b64 exec, 0")
            for c in range(nchain):
                self(f"s_cmp_eq_u32 s{sreg}, {base+c}")
                self(f"s_cbranch_scc1 L_{tag}_pad{c}")
            self.label(f"L_{tag}_wret")
        self("s_endpgm")

    def warm(self, tag, sreg, nchain):
        if tag not in WARMSET:
            return
        self("s_mov_b64 exec, 0")
        for c in range(nchain):
            self(f"s_cmp_eq_u32 s{sreg}, {c}")
            self(f"s_cbranch_scc1 L_{tag}_pad{c}")
        self.label(f"L_{tag}_wret")
        self("s_mov_b64 exec, -1")

    def label(self, name):
        self.lines.append(name + ":")

    def raw(self, s):
        self.lines.append(s)

    def newlabel(self, base):
        self.uid += 1
        return f"L_{base}_{self.uid}"

    def text(self):
        return "\n".join(self.lines) + "\n"


class Regs:
    def __init__(self, start, limit, kind):
        self.n = start
        self.limit = limit
        self.kind = kind
        self.hi = start

    def alloc(self, cnt=1, align=1):
        self.n = (self.n + align - 1) // align * align
        r = self.n
        self.n += cnt
        assert self.n <= self.limit, f"out of {self.kind} regs"
        self.hi = max(self.hi, self.n)
        return r

    def mark(self):
        return self.n

    def release(self, m):
        self.n = m


def v(r, n=1):
    return f"v{r}" if n == 1 else f"v[{r}:{r+n-1}]"


def s(r, n=1):
    return f"s{r}" if n == 1 else f"s[{r}:{r+n-1}]"


def kernel_desc(name, vgpr, sgpr=96):
    vg = (vgpr + 7) // 8 * 8
    acc = (vg + 3) // 4 * 4
    return f""".p2align 6
.amdhsa_kernel {name}
  .amdhsa_next_free_vgpr {vg}
  .amdhsa_next_free_sgpr {sgpr}
  .amdhsa_accum_offset {acc}
  .amdhsa_group_segment_fixed_size 0
  .amdhsa_kernarg_size 80
  .amdhsa_user_sgpr_count 2
  .amdhsa_user_sgpr_kernarg_segment_ptr 1
  .amdhsa_system_sgpr_workgroup_id_x 1
.end_amdhsa_kernel
"""


def f32bits(x):
    import struct
    return struct.unpack("<I", struct.pack("<f", x))[0]


def hexf(x):
    return "0x%08x" % f32bits(x)


import os
STAMP = os.environ.get("STAMP", "0") == "1"
DBGOFF = 32 << 20


def stamp(a, i):
    if STAMP:
        a(f"s_memtime s[{64+2*i}:{65+2*i}]")


def stamp_real(a, i):
    if STAMP:
        a(f"s_memrealtime s[{64+2*i}:{65+2*i}]")


def stamp_flush(a, kidx, wsptr, swave, nw):
    if not STAMP:
        return
    a(f"""
    s_waitcnt vmcnt(0) lgkmcnt(0)
    s_memtime s[76:77]
    s_memrealtime s[78:79]
    s_mov_b32 s80, s{wsptr}
    s_mov_b32 s81, s{wsptr+1}
    s_mov_b32 s82, 0x4000000
    s_mov_b32 s83, 0x00020000
    s_add_u32 s84, s2, {kidx*256}
    s_lshl_b32 s84, s84, 3
    s_add_u32 s84, s84, s{swave}
    s_lshl_b32 s84, s84, 5
    s_add_u32 s84, s84, {hex(DBGOFF)}
    s_waitcnt lgkmcnt(0)
    v_mov_b32 v8, s64
    v_mov_b32 v9, s66
    v_mov_b32 v10, s68
    v_mov_b32 v11, s70
    v_mov_b32 v12, s72
    v_mov_b32 v13, s74
    v_mov_b32 v14, s76
    v_mov_b32 v15, s78
    v_mov_b32 v1, 0
    buffer_store_dwordx4 v[8:11], v1, s[80:83], s84 offen
    buffer_store_dwordx4 v[12:15], v1, s[80:83], s84 offen offset:16
    """)


def trace_init(a, vt):
    if STAMP:
        a(f"v_mov_b32 v{vt}, 0")


def trace(a, vt, sidx):
    if STAMP:
        a(f"""
        s_memtime s[90:91]
        s_waitcnt lgkmcnt(0)
        s_mov_b32 s92, m0
        s_mov_b32 m0, s{sidx}
        s_nop 0
        v_writelane_b32 v{vt}, s90, m0
        s_mov_b32 m0, s92
        """)


def trace_flush(a, vt, kidx, wsptr, swave, wsel, lane):
    if STAMP:
        lab = a.newlabel("tf")
        a(f"""
        s_cmp_lg_u32 s{swave}, {wsel}
        s_cbranch_scc1 {lab}
        s_mov_b32 s80, s{wsptr}
        s_mov_b32 s81, s{wsptr+1}
        s_mov_b32 s82, 0x4000000
        s_mov_b32 s83, 0x00020000
        s_add_u32 s84, s2, {kidx*256}
        s_lshl_b32 s84, s84, 8
        s_add_u32 s84, s84, {hex(DBGOFF + (1 << 20))}
        v_lshlrev_b32 v{lane}, 2, v{lane}
        s_nop 1
        buffer_store_dword v{vt}, v{lane}, s[80:83], s84 offen
        """)
        a.label(lab)
```

```python
from asmlib import *
import math, os

QF = 0
KF = 2 << 20
VF = 4 << 20
OF = 6 << 20
HF = 8 << 20
GF = 10 << 20
WS_SIZE = 16 << 20

EPS = 1e-5
QSCALE = 0.25 * math.log2(math.e)


def srd(a, dst, ptr, nbytes):
    a(f"""
    s_mov_b32 s{dst}, s{ptr}
    s_mov_b32 s{dst+1}, s{ptr+1}
    s_mov_b32 s{dst+2}, {hex(nbytes)}
    s_mov_b32 s{dst+3}, 0x00020000
    """)


def half_sum(a, r, t):
    a(f"""
    v_mov_b32 v{t}, v{r}
    s_nop 1
    v_permlane32_swap_b32 v{r}, v{t}
    s_nop 1
    v_add_f32 v{r}, v{r}, v{t}
    """)


def gen_k1(a):
    name = "qkv_kernel"
    V = Regs(1, 256, "v")
    a.raw(f".globl {name}\n.p2align 12\n.type {name},@function")
    a.label(name)
    SX, SW, SWS = 12, 16, 20
    sWave, sRb, sCg, sTt, sCh = 24, 25, 26, 27, 28
    sXo, sWo, sDm, sC, sM, sOne, sA, sB, sT0, sT1 = 29, 30, 31, 32, 33, 34, 35, 36, 37, 38
    sWb, sIs, sW4 = 40, 42, 44
    WR = 0x10000
    WSL = 12288
    NS = 8
    NCH = 16
    P = int(os.environ.get("P1", "5"))
    PRE = int(os.environ.get("PRE1", "1"))
    NT = os.environ.get("K1NT", "")
    STF = os.environ.get("ST1", "")
    a(f"""
    s_cmp_ge_u32 s2, 256
    s_cbranch_scc1 L_k1_end
    s_load_dwordx4 s[4:7], s[0:1], 0
    s_load_dwordx2 s[8:9], s[0:1], 72
    """)
    stamp(a, 0); stamp_real(a, 5)
    lane = V.alloc(); t0 = V.alloc(); t1 = V.alloc(); t2 = V.alloc()
    xd = V.alloc(); wd0 = V.alloc(); xw = V.alloc(); vt = V.alloc()
    xa = [V.alloc() for _ in range(4)]
    wa = [V.alloc() for _ in range(2)]
    X = V.alloc(32, 4)
    a(f"""
    v_lshrrev_b32 v{t0}, 6, v0
    v_and_b32 v{lane}, 63, v0
    s_and_b32 s{sT0}, s2, 7
    v_readfirstlane_b32 s{sWave}, v{t0}
    s_lshr_b32 s{sT1}, s2, 3
    s_and_b32 s{sRb}, s{sT0}, 3
    s_cmp_ge_u32 s{sWave}, 8
    s_cbranch_scc1 L_k1_warm
    s_lshl_b32 s{sRb}, s{sRb}, 3
    s_and_b32 s{sM}, s{sT1}, 7
    s_add_u32 s{sRb}, s{sRb}, s{sM}
    s_lshr_b32 s{sCg}, s{sT0}, 2
    s_lshl_b32 s{sCg}, s{sCg}, 2
    s_lshr_b32 s{sT1}, s{sT1}, 3
    s_add_u32 s{sCg}, s{sCg}, s{sT1}
    s_lshl_b32 s{sT1}, s{sT1}, 1
    s_xor_b32 s{sM}, s{sM}, s{sT1}
    v_lshrrev_b32 v{t0}, 3, v{lane}
    v_and_b32 v{t1}, 7, v{lane}
    v_lshlrev_b32 v{xd}, 10, v{t0}
    v_lshl_add_u32 v{xd}, v{t1}, 4, v{xd}
    s_lshl_b32 s{sXo}, s{sRb}, 16
    s_lshl_b32 s{sT0}, s{sWave}, 13
    s_add_u32 s{sXo}, s{sXo}, s{sT0}
    s_lshl_b32 s{sT0}, s{sM}, 7
    s_add_u32 s{sXo}, s{sXo}, s{sT0}
    s_and_b32 s{sW4}, s{sWave}, 3
    s_and_b32 s{sTt}, s{sWave}, 1
    s_bfe_u32 s{sCh}, s{sWave}, 0x10001
    s_lshl_b32 s{sWb}, s{sCg}, 7
    s_lshl_b32 s{sT0}, s{sTt}, 6
    s_add_u32 s{sWb}, s{sWb}, s{sT0}
    s_mul_i32 s{sT0}, s{sCh}, {16*3072}
    s_add_u32 s{sWb}, s{sWb}, s{sT0}
    s_lshl_b32 s{sM}, s{sM}, 1
    s_mul_i32 s{sDm}, s{sW4}, 3072
    s_add_u32 s{sDm}, s{sDm}, {WR}
    v_lshrrev_b32 v{t2}, 2, v{lane}
    v_mul_u32_u24 v{t2}, 3072, v{t2}
    v_and_b32 v{wd0}, 3, v{lane}
    v_lshl_add_u32 v{wd0}, v{wd0}, 4, v{t2}
    s_mov_b32 s{sIs}, 0
    s_mov_b32 s{SX+2}, {hex(2048*1024)}
    s_mov_b32 s{SX+3}, 0x00020000
    s_mov_b32 s{SW+2}, {hex(512*3072)}
    s_mov_b32 s{SW+3}, 0x00020000
    s_waitcnt lgkmcnt(0)
    s_mov_b32 s{SX}, s4
    s_mov_b32 s{SX+1}, s5
    s_mov_b32 s{SW}, s6
    s_mov_b32 s{SW+1}, s7
    """)
    stamp(a, 1)

    def dma():
        return f"""
        s_xor_b32 s{sWo}, s{sIs}, s{sM}
        s_mov_b32 m0, s{sDm}
        s_mul_i32 s{sWo}, s{sWo}, {32*3072}
        s_add_u32 s{sDm}, s{sDm}, {WSL}
        s_add_u32 s{sWo}, s{sWo}, s{sWb}
        s_add_u32 s{sIs}, s{sIs}, 1
        buffer_load_dwordx4 v{wd0}, s[{SW}:{SW+3}], s{sWo} offen {NT} lds
        buffer_load_dwordx4 v{wd0}, s[{SW}:{SW+3}], s{sWo} offen offset:1024 {NT} lds
        buffer_load_dwordx4 v{wd0}, s[{SW}:{SW+3}], s{sWo} offen offset:2048 {NT} lds
        s_cmp_eq_u32 s{sIs}, {NS}
        s_cselect_b32 s{sT0}, {NS*WSL}, 0
        s_sub_u32 s{sDm}, s{sDm}, s{sT0}
        """

    def dma_if_loader(upto):
        lab = a.newlabel("k1d"); lp = a.newlabel("k1p")
        a(f"""
        s_cmp_lt_u32 s{sWave}, 4
        s_cbranch_scc1 {lab}
        """)
        a.label(lp)
        a(dma())
        a(f"""
        s_cmp_lt_u32 s{sIs}, {upto}
        s_cbranch_scc1 {lp}
        """)
        a.label(lab)

    if PRE:
        dma_if_loader(PRE)
    for i in range(8):
        if i:
            a(f"s_xor_b32 s{sT1}, s{sXo}, {i*128}")
        a(f"buffer_load_dwordx4 {v(X+4*i,4)}, v{xd}, s[{SX}:{SX+3}], s{sT1 if i else sXo} offen {NT}")
    srd(a, SWS, 8, WS_SIZE)
    acc = [V.alloc(16, 4) for _ in range(3)]
    wf = [V.alloc(12, 4) for _ in range(2)]
    xf = [V.alloc(4, 4) for _ in range(2)]
    st = V.alloc(4, 2)
    rs = V.alloc(2, 2); nmr = V.alloc(2, 2)
    un = V.alloc(8, 2)
    l16 = V.alloc(); vv = V.alloc()
    a(f"""
    v_xor_b32 v{t2}, v{t0}, v{t1}
    v_lshlrev_b32 v{t2}, 4, v{t2}
    v_lshl_add_u32 v{t2}, v{t1}, 9, v{t2}
    s_lshr_b32 s{sT0}, s{sWave}, 2
    s_lshl_b32 s{sT0}, s{sT0}, 15
    s_lshl_b32 s{sT1}, s{sW4}, 7
    s_add_u32 s{sT0}, s{sT0}, s{sT1}
    v_add_u32 v{xw}, s{sT0}, v{t2}
    s_mov_b32 s{sOne}, 0x3f803f80
    v_and_b32 v{t0}, 31, v{lane}
    v_lshrrev_b32 v{t2}, 5, v{lane}
    v_xor_b32 v{t1}, v{t0}, v{t2}
    v_lshlrev_b32 v{t1}, 4, v{t1}
    v_lshl_add_u32 v{t1}, v{t2}, 9, v{t1}
    s_lshl_b32 s{sT0}, s{sTt}, 15
    v_add_u32 v{xa[0]}, s{sT0}, v{t1}
    v_xor_b32 v{xa[1]}, 32, v{xa[0]}
    v_xor_b32 v{xa[2]}, 64, v{xa[0]}
    v_xor_b32 v{xa[3]}, 96, v{xa[0]}
    s_mul_i32 s{sT0}, s{sCh}, 3072
    s_add_u32 s{sT0}, s{sT0}, {WR}
    v_lshlrev_b32 v{t0}, 9, v{t2}
    v_bfe_u32 v{t1}, v{lane}, 2, 2
    v_lshl_add_u32 v{t0}, v{t1}, 6, v{t0}
    v_bfe_u32 v{t1}, v{lane}, 4, 1
    v_lshl_add_u32 v{t0}, v{t1}, 5, v{t0}
    v_and_b32 v{t1}, 3, v{lane}
    v_lshl_add_u32 v{t0}, v{t1}, 3, v{t0}
    v_add_u32 v{wa[0]}, s{sT0}, v{t0}
    v_add_u32 v{wa[1]}, {4*WSL}, v{wa[0]}
    v_lshlrev_b32 v{l16}, 4, v{lane}
    v_bfe_u32 v{t0}, v{lane}, 4, 1
    v_lshlrev_b32 v{vv}, 16, v{t0}
    v_lshl_add_u32 v{vv}, v{t2}, 8, v{vv}
    v_and_b32 v{t0}, 3, v{lane}
    v_lshl_add_u32 v{vv}, v{t0}, 4, v{vv}
    v_bfe_u32 v{t0}, v{lane}, 2, 1
    v_lshl_add_u32 v{vv}, v{t0}, 7, v{vv}
    v_bfe_u32 v{t0}, v{lane}, 3, 1
    v_lshl_add_u32 v{vv}, v{t0}, 6, v{vv}
    """)
    for r in range(48):
        a(f"v_mov_b32 v{acc[0]+r}, 0")
    for r in range(4):
        a(f"v_mov_b32 v{st+r}, 0")
    trace_init(a, vt)
    a.warm("k1", sWave, 8)
    a.pads_begin("k1")
    B = X
    for i in range(8):
        a(f"s_waitcnt vmcnt({7-i})")
        if i == 0:
            stamp(a, 2)
        for r in range(4 * i, 4 * i + 4):
            a(f"v_dot2_f32_bf16 v{st+(r&1)*2}, v{B+r}, s{sOne}, v{st+(r&1)*2}")
            a(f"v_dot2_f32_bf16 v{st+1+(r&1)*2}, v{B+r}, v{B+r}, v{st+1+(r&1)*2}")
    dma_if_loader(PRE + 2)
    a(f"""
    s_nop 0
    v_add_f32 v{st}, v{st}, v{st+2}
    v_add_f32 v{st+1}, v{st+1}, v{st+3}
    s_nop 0
    v_add_f32_dpp v{st}, v{st}, v{st} quad_perm:[1,0,3,2] row_mask:0xf bank_mask:0xf
    v_add_f32_dpp v{st+1}, v{st+1}, v{st+1} quad_perm:[1,0,3,2] row_mask:0xf bank_mask:0xf
    s_nop 0
    v_add_f32_dpp v{st}, v{st}, v{st} quad_perm:[2,3,0,1] row_mask:0xf bank_mask:0xf
    v_add_f32_dpp v{st+1}, v{st+1}, v{st+1} quad_perm:[2,3,0,1] row_mask:0xf bank_mask:0xf
    s_nop 0
    v_add_f32_dpp v{st}, v{st}, v{st} row_half_mirror row_mask:0xf bank_mask:0xf
    v_add_f32_dpp v{st+1}, v{st+1}, v{st+1} row_half_mirror row_mask:0xf bank_mask:0xf
    v_mul_f32 v{st}, {hexf(1.0/512)}, v{st}
    v_mul_f32 v{st+1}, {hexf(1.0/512)}, v{st+1}
    v_fma_f32 v{st+1}, -v{st}, v{st}, v{st+1}
    v_max_f32 v{st+1}, 0, v{st+1}
    v_add_f32 v{st+1}, {hexf(EPS)}, v{st+1}
    v_rsq_f32 v{rs}, v{st+1}
    s_nop 0
    v_mul_f32 v{nmr}, v{st}, v{rs}
    v_sub_f32 v{nmr}, 0, v{nmr}
    """)
    for i in range(8):
        for r in range(4):
            a(f"v_lshlrev_b32 v{un+2*r}, 16, v{B+4*i+r}")
            a(f"v_and_b32 v{un+2*r+1}, 0xffff0000, v{B+4*i+r}")
        for r in range(4):
            a(f"v_pk_fma_f32 {v(un+2*r,2)}, {v(un+2*r,2)}, {v(rs,2)}, {v(nmr,2)} op_sel_hi:[1,0,0]")
        for r in range(4):
            a(f"v_cvt_pk_bf16_f32 v{B+4*i+r}, v{un+2*r}, v{un+2*r+1}")
        a(f"ds_write_b128 v{xw}, {v(B+4*i,4)} offset:{i*4096}")
    a(f"""
    s_mov_b32 s{sC}, 0
    s_cmp_lt_u32 s{sWave}, 4
    s_cbranch_scc1 L_k1_compute
    """)
    assert PRE >= 1
    a(f"""
    s_waitcnt lgkmcnt(0)
    s_barrier
    """)
    trace(a, vt, sC)
    if STAMP: a(f"s_add_u32 s{sC}, s{sC}, 1")
    a.label("L_k1_pre")
    a(dma())
    a(f"""
    s_cmp_lt_u32 s{sIs}, {P+1}
    s_cbranch_scc1 L_k1_pre
    """)
    a.label("L_k1_ld")
    a(f"""
    s_waitcnt vmcnt({3*(P-1)})
    s_barrier
    """)
    trace(a, vt, sC)
    if STAMP: a(f"s_add_u32 s{sC}, s{sC}, 1")
    a(dma())
    a(f"""
    s_cmp_lt_u32 s{sIs}, {NCH}
    s_cbranch_scc1 L_k1_ld
    """)
    for r in range(P - 1, -1, -1):
        a(f"""
        s_waitcnt vmcnt({3*r})
        s_barrier
        """)
        trace(a, vt, sC)
        if STAMP: a(f"s_add_u32 s{sC}, s{sC}, 1")
    trace_flush(a, vt, 0, 8, sWave, 4, lane)
    a("s_endpgm")
    a.label("L_k1_compute")

    def rd_x(c, ks2):
        a(f"ds_read_b128 {v(xf[ks2],4)}, v{xa[(c&1)*2+ks2]} offset:{c*2048+ks2*1024}")

    def rd_w(c, ks2, seg):
        sl = c & 7
        for jj in range(2):
            a(f"ds_read_b64_tr_b16 {v(wf[ks2]+4*seg+2*jj,2)}, v{wa[sl>>2]} offset:{(sl&3)*WSL+ks2*6144+seg*1024+jj*256}")

    def mf(ks2, j):
        if j < 2:
            a(f"v_mfma_f32_32x32x16_bf16 {v(acc[j],16)}, {v(wf[ks2]+4*j,4)}, {v(xf[ks2],4)}, {v(acc[j],16)}")
        else:
            a(f"v_mfma_f32_32x32x16_bf16 {v(acc[j],16)}, {v(xf[ks2],4)}, {v(wf[ks2]+4*j,4)}, {v(acc[j],16)}")

    a(f"""
    s_lshl_b32 s{sT0}, s{sCg}, 2
    s_lshl_b32 s{sT1}, s{sCh}, 1
    s_add_u32 s{sT0}, s{sT0}, s{sT1}
    s_lshl_b32 s{sT0}, s{sT0}, 6
    s_lshl_b32 s{sT1}, s{sRb}, 1
    s_add_u32 s{sT0}, s{sT0}, s{sT1}
    s_add_u32 s{sT0}, s{sT0}, s{sTt}
    s_lshl_b32 s{sXo}, s{sT0}, 10
    s_mov_b32 s{sOne}, {hexf(QSCALE)}
    s_add_u32 s{sA}, s{sXo}, {hex(KF)}
    s_add_u32 s{sB}, s{sXo}, {hex(KF+65536)}
    s_add_u32 s{sT1}, s{sXo}, {hex(VF)}
    s_add_u32 s{sT0}, s{sXo}, {hex(QF+65536)}
    s_waitcnt lgkmcnt(0)
    s_barrier
    """)
    stamp(a, 3)
    if STAMP: a("s_waitcnt lgkmcnt(0)")
    for ks2 in range(2):
        for j in range(3):
            rd_w(0, ks2, j)
        rd_x(0, ks2)
    a.label("L_k1_loop")
    for c in range(8):
        if c == 7:
            a(f"""
            s_cmp_eq_u32 s{sC}, 1
            s_cbranch_scc1 L_k1_last
            """)
        a("s_barrier")
        for ks2 in range(2):
            a("s_waitcnt lgkmcnt(7)")
            for j in range(3):
                mf(ks2, j)
                rd_w(c + 1, ks2, j)
            rd_x(c + 1, ks2)
    for i in range(4):
        a(f"v_add_u32 v{xa[i]}, 0x4000, v{xa[i]}")
    a(f"""
    s_mov_b32 s{sC}, 1
    s_branch L_k1_loop
    """)
    a.label("L_k1_last")
    for ks2 in range(2):
        a(f"s_waitcnt lgkmcnt({7 if ks2 == 0 else 0})")
        for j in range(3):
            mf(ks2, j)
    stamp(a, 4)
    o = X
    a("s_nop 7\ns_nop 1")
    for r in range(16):
        a(f"v_mul_f32 v{acc[0]+r}, s{sOne}, v{acc[0]+r}")
    for r in range(8):
        a(f"v_cvt_pk_bf16_f32 v{o+8+r}, v{acc[1]+2*r}, v{acc[1]+2*r+1}")
    a(f"""
    buffer_store_dwordx4 {v(o+8,4)}, v{l16}, s[{SWS}:{SWS+3}], s{sA} offen {STF}
    buffer_store_dwordx4 {v(o+12,4)}, v{l16}, s[{SWS}:{SWS+3}], s{sB} offen {STF}
    """)
    for r in range(8):
        a(f"v_cvt_pk_bf16_f32 v{o+16+r}, v{acc[2]+2*r}, v{acc[2]+2*r+1}")
    a(f"""
    buffer_store_dwordx4 {v(o+16,4)}, v{vv}, s[{SWS}:{SWS+3}], s{sT1} offen {STF}
    buffer_store_dwordx4 {v(o+20,4)}, v{vv}, s[{SWS}:{SWS+3}], s{sT1} offen offset:512 {STF}
    """)
    for r in range(8):
        a(f"v_cvt_pk_bf16_f32 v{o+r}, v{acc[0]+2*r}, v{acc[0]+2*r+1}")
    assert QF == 0
    a(f"""
    buffer_store_dwordx4 {v(o,4)}, v{l16}, s[{SWS}:{SWS+3}], s{sXo} offen {STF}
    buffer_store_dwordx4 {v(o+4,4)}, v{l16}, s[{SWS}:{SWS+3}], s{sT0} offen {STF}
    """)
    a.pads_end(8)
    stamp_flush(a, 0, 8, sWave, 4)
    a.label("L_k1_end")
    a("s_endpgm")
    a.label("L_k1_warm")
    a.warm_exit("w2", sWave, 4, 8)
    assert V.hi <= 168
    return name, V.hi, 256, 768 if 'w2' in WARMSET else 512, WR + NS * WSL
```

```python
from asmlib import *
import os
from k1 import QF, KF, VF, OF, HF, GF, WS_SIZE, srd
from k35 import ST
from kpost import FL, FL_BYTES
FUSED = os.environ.get('FUSED', '1') == '1'
GUROWS = int(os.environ.get('GUROWS', '512'))
from k35 import tr_addr, CS, CSM, MAP5, PFD, wd_touch

ONES = 0x20000
XCH = 0x21000
FLAG = XCH + 8 * 9 * 256
MXS = FLAG + 64
LDS_K2 = MXS + 8 * 2 * 256


def gen_k2(a):
    name = "attn_kernel"
    V = Regs(1, 256, "v")
    a.raw(f".globl {name}\n.p2align 9\n.type {name},@function")
    a.label(name)
    a.pads_begin("w2")
    SWS = 12
    sWave, sHead, sQb, sQp, sKh, sIt, sT0, sT1, sG, sPass = 16, 17, 18, 19, 20, 21, 22, 23, 24, 25
    a(f"""
    s_cmp_ge_u32 s2, 256
    s_cbranch_scc1 L_k2_end
    s_load_dwordx2 s[8:9], s[0:1], 72
    s_load_dwordx16 s[32:47], s[0:1], 0
    """)
    stamp(a, 0); stamp_real(a, 5)
    lane = V.alloc(); t0 = V.alloc(); t1 = V.alloc(); l16 = V.alloc()
    ka = V.alloc(); va = V.alloc(); vs = V.alloc(); ka0 = V.alloc(); va0 = V.alloc()
    one = V.alloc(2, 2)
    Q = [V.alloc(4, 4) for _ in range(2)]
    M = [V.alloc(16, 4) for _ in range(2)]
    S = [V.alloc(16, 4) for _ in range(2)]
    O = [V.alloc(16, 4) for _ in range(2)]
    P = V.alloc(8, 4)
    Kf = [V.alloc(4, 4) for _ in range(2)]
    Vf = [V.alloc(8, 4) for _ in range(2)]
    a(f"""
    v_lshrrev_b32 v{t0}, 6, v0
    v_and_b32 v{lane}, 63, v0
    s_and_b32 s{sT0}, s2, 7
    v_readfirstlane_b32 s{sWave}, v{t0}
    s_lshr_b32 s{sT1}, s2, 3
    s_lshl_b32 s{sHead}, s{sT0}, 2
    s_and_b32 s{sT0}, s{sT1}, 3
    s_add_u32 s{sHead}, s{sHead}, s{sT0}
    s_lshr_b32 s{sQb}, s{sT1}, 2
    v_lshlrev_b32 v{l16}, 4, v{lane}
    s_and_b32 s{sQp}, s{sWave}, 3
    s_lshr_b32 s{sKh}, s{sWave}, 2
    """)
    a(f"""
    s_cmp_eq_u32 s{sWave}, 8
    s_cbranch_scc1 L_k2_svc
    s_cmp_eq_u32 s{sWave}, 9
    s_cbranch_scc1 L_k2_warm
    s_lshl_b32 s{sT0}, s{sHead}, 16
    s_lshl_b32 s{sIt}, s{sQb}, 13
    s_add_u32 s{sT0}, s{sT0}, s{sIt}
    s_lshl_b32 s{sIt}, s{sQp}, 11
    s_add_u32 s{sT0}, s{sT0}, s{sIt}
    s_movk_i32 s{sG}, 0x43
    s_waitcnt lgkmcnt(0)
    """)
    assert QF == 0 and VF == KF + (2 << 20)
    srd(a, SWS, 8, WS_SIZE)
    stamp(a, 1)
    a(f"""
    buffer_load_dwordx4 {v(Q[0],4)}, v{l16}, s[{SWS}:{SWS+3}], s{sT0} offen
    buffer_load_dwordx4 {v(Q[1],4)}, v{l16}, s[{SWS}:{SWS+3}], s{sT0} offen offset:1024
    """)
    initzero = "\n".join([f"v_mov_b32 v{O[q]+r}, 0" for q in range(2) for r in range(16)] +
                         [f"v_mov_b32 v{P+4+r}, 0" for r in range(4)] + [f"v_mov_b32 v{Vf[1]+4+r}, 0" for r in range(4)])
    a(f"""
    v_mov_b32 v{one}, 0x3f803f80
    v_and_b32 v{t0}, {0x16 if os.environ.get("ZROW", "1") == "1" else 0}, v0
    v_cmp_eq_u32 vcc, 0, v{t0}
    v_lshlrev_b32 v{t0}, 3, v0
    s_nop 0
    v_cndmask_b32 v{one}, 0, v{one}, vcc
    v_mov_b32 v{one+1}, v{one}
    v_add_u32 v{t0}, {hex(ONES)}, v{t0}
    ds_write_b64 v{t0}, {v(one,2)}
    s_lshl_b32 s{sT0}, s{sKh}, 15
    v_add_u32 v{ka0}, s{sT0}, v{l16}
    v_and_b32 v{t0}, 15, v{lane}
    v_lshlrev_b32 v{t0}, 4, v{t0}
    v_lshrrev_b32 v{t1}, 5, v{lane}
    v_lshl_add_u32 v{t1}, v{t1}, 8, v{t0}
    s_add_u32 s{sT0}, s{sT0}, 0x10000
    v_add_u32 v{t1}, s{sT0}, v{t1}
    v_add_u32 v{t0}, {hex(ONES-1024)}, v{t0}
    v_and_b32 v{vs}, 16, v{lane}
    v_cmp_eq_u32 vcc, 0, v{vs}
    v_mov_b32 v{vs}, 0x1000
    s_mov_b32 s{sPass}, 0
    v_cndmask_b32 v{va0}, v{t0}, v{t1}, vcc
    v_cndmask_b32 v{vs}, 0, v{vs}, vcc
    {initzero}
    s_waitcnt vmcnt(0) lgkmcnt(0)
    """)
    a(f"""
    s_barrier
    ds_read_b128 {v(Kf[1],4)}, v{l16}
    s_waitcnt lgkmcnt(0)
    v_mfma_f32_32x32x16_bf16 {v(S[0],16)}, {v(Kf[1],4)}, {v(Q[0],4)}, 0
    v_mfma_f32_32x32x16_bf16 {v(S[1],16)}, {v(Kf[1],4)}, {v(Q[1],4)}, 0
    s_nop 7
    s_nop 3
    """)

    def max16(dst, src):
        a(f"v_max3_f32 v{dst}, v{src}, v{src+1}, v{src+2}")
        for i in range(3, 15, 2):
            a(f"v_max3_f32 v{dst}, v{dst}, v{src+i}, v{src+i+1}")
        a(f"v_max_f32 v{dst}, v{dst}, v{src+15}")

    def half_max(r, t):
        a(f"""
        v_mov_b32 v{t}, v{r}
        s_nop 1
        v_permlane32_swap_b32 v{r}, v{t}
        s_nop 1
        v_max_f32 v{r}, v{r}, v{t}
        """)

    mx = [V.alloc(), V.alloc()]
    max16(mx[0], S[0])
    max16(mx[1], S[1])
    half_max(mx[0], t0)
    half_max(mx[1], t1)
    a.label("L_k2_start")
    for q in range(2):
        a(f"v_sub_f32 v{M[q]}, 0, v{mx[q]}")
        for r in range(1, 16):
            a(f"v_sub_f32 v{M[q]+r}, 0, v{mx[q]}")
    a(f"""
    v_mov_b32 v{ka}, v{ka0}
    v_mov_b32 v{va}, v{va0}
    v_add_u32 v{t0}, 1024, v{va0}
    ds_read_b128 {v(Kf[0],4)}, v{ka}
    """)
    a(f"""
    v_lshrrev_b32 v{t1}, 2, v{vs}
    v_sub_u32 v{t0}, v{t0}, v{t1}
    s_nop 0
    ds_read_b128 {v(Vf[0],4)}, v{t0}
    ds_read_b128 {v(Vf[0]+4,4)}, v{t0} offset:512
    """)
    a(f"""
    s_mov_b32 s{sIt}, 0
    s_waitcnt lgkmcnt(0)
    v_mfma_f32_32x32x16_bf16 {v(S[0],16)}, {v(Kf[0],4)}, {v(Q[0],4)}, {v(M[0],16)}
    s_nop 7
    s_nop 3
    """)
    stamp(a, 2)
    if STAMP: a("s_waitcnt lgkmcnt(0)")
    a.label("L_k2_loop")
    for u in range(8):
        t = u >> 1
        q = u & 1
        Sx = S[q]
        e = lambda i: a(f"v_exp_f32 v{Sx+i}, v{Sx+i}")
        c = lambda j: a(f"v_cvt_pk_bf16_f32 v{P+j}, v{Sx+2*j}, v{Sx+2*j+1}")
        tp = (u - 1) >> 1
        qp = (u - 1) & 1
        tn = (u + 1) >> 1
        qn = (u + 1) & 1
        e(0); e(1)
        a(f"v_mfma_f32_32x32x16_bf16 {v(O[qp],16)}, {v(Vf[tp&1]+4,4)}, {v(P+4,4)}, {v(O[qp],16)}")
        if q == 0:
            if t == 3:
                a(f"""
                s_bitcmp1_b32 s{sG}, s{sIt}
                s_cbranch_scc0 L_k2_syncback
                s_barrier
                """)
                a.label("L_k2_syncback")
            a(f"""
            ds_read_b128 {v(Kf[(t+1)&1],4)}, v{ka} offset:{(t+1)*1024}
            ds_read_b128 {v(Vf[(t+1)&1],4)}, v{va} offset:{(t+1)*1024}
            ds_read_b128 {v(Vf[(t+1)&1]+4,4)}, v{va} offset:{(t+1)*1024+512}
            """)
        e(2); e(3); c(0); c(1); e(4); e(5)
        if q == 1:
            a("s_waitcnt lgkmcnt(0)")
        a(f"v_mfma_f32_32x32x16_bf16 {v(S[qn],16)}, {v(Kf[tn&1],4)}, {v(Q[qn],4)}, {v(M[qn],16)}")
        e(6); e(7); c(2); c(3); e(8); e(9); e(10)
        a(f"v_mfma_f32_32x32x16_bf16 {v(O[q],16)}, {v(Vf[t&1],4)}, {v(P,4)}, {v(O[q],16)}")
        e(11); c(4); c(5); e(12); e(13)
        if u == 7:
            a(f"""
            v_add_u32 v{ka}, 0x1000, v{ka}
            v_add_u32 v{va}, v{vs}, v{va}
            s_add_u32 s{sIt}, s{sIt}, 1
            s_cmp_lt_u32 s{sIt}, 8
            """)
        e(14); e(15); c(6); c(7)
    a("s_cbranch_scc1 L_k2_loop")
    stamp(a, 3)
    a(f"""
    s_nop 1
    v_mfma_f32_32x32x16_bf16 {v(O[1],16)}, {v(Vf[1]+4,4)}, {v(P+4,4)}, {v(O[1],16)}
    """)
    xw = V.alloc(); xr = V.alloc(); fl = V.alloc()
    R = S[0]
    a(f"""
    s_mul_i32 s{sT0}, s{sWave}, {9*256}
    s_add_u32 s{sT0}, s{sT0}, {hex(XCH)}
    s_xor_b32 s{sT1}, s{sWave}, 4
    s_mul_i32 s{sT1}, s{sT1}, {9*256}
    s_add_u32 s{sT1}, s{sT1}, {hex(XCH)}
    v_add_u32 v{xw}, s{sT0}, v{l16}
    v_add_u32 v{xr}, s{sT1}, v{l16}
    v_lshl_add_u32 v{t0}, v{lane}, 2, s{sT0}
    v_lshl_add_u32 v{t1}, v{lane}, 2, s{sT1}
    s_lshl_b32 s{sT0}, s{sWave}, 2
    s_add_u32 s{sT0}, s{sT0}, {hex(FLAG)}
    v_mov_b32 v{fl}, s{sT0}
    s_mov_b32 s{sT1}, 0x5f800000
    s_nop 2
    v_cmp_nlt_f32 vcc, v{O[0]+8}, s{sT1}
    s_mov_b64 s[26:27], vcc
    v_cmp_nlt_f32 vcc, v{O[1]+8}, s{sT1}
    s_or_b64 s[26:27], s[26:27], vcc
    s_cselect_b32 s{sT0}, 1, 0
    v_mov_b32 v{one}, s{sT0}
    ds_write_b32 v{fl}, v{one}
    s_cmp_eq_u32 s{sKh}, 0
    s_cbranch_scc1 L_k2_x0
    """)
    a(f"""
    ds_write_b128 v{xw}, {v(O[0],4)}
    ds_write_b128 v{xw}, {v(O[0]+4,4)} offset:1024
    ds_write_b32 v{t0}, v{O[0]+8} offset:2048
    s_nop 1
    """)
    for r in range(9):
        a(f"v_mov_b32 v{P if False else M[0]+r}, v{O[1]+r}")
    a("s_branch L_k2_x1")
    a.label("L_k2_x0")
    a(f"""
    ds_write_b128 v{xw}, {v(O[1],4)}
    ds_write_b128 v{xw}, {v(O[1]+4,4)} offset:1024
    ds_write_b32 v{t0}, v{O[1]+8} offset:2048
    """)
    for r in range(9):
        a(f"v_mov_b32 v{M[0]+r}, v{O[0]+r}")
    a.label("L_k2_x1")
    F = S[1]
    a(f"""
    v_mov_b32 v{fl}, {hex(FLAG)}
    s_waitcnt lgkmcnt(0)
    s_barrier
    ds_read_b128 {v(F,4)}, v{fl}
    ds_read_b128 {v(F+4,4)}, v{fl} offset:16
    ds_read_b128 {v(R,4)}, v{xr}
    ds_read_b128 {v(R+4,4)}, v{xr} offset:1024
    ds_read_b32 v{R+8}, v{t1} offset:2048
    s_lshl_b32 s{sT0}, s{sQb}, 3
    s_lshl_b32 s{sT1}, s{sQp}, 1
    s_add_u32 s{sT0}, s{sT0}, s{sT1}
    s_add_u32 s{sT0}, s{sT0}, s{sKh}
    s_lshl_b32 s{sT0}, s{sT0}, 5
    s_add_u32 s{sT0}, s{sT0}, s{sHead}
    s_lshl_b32 s{sT0}, s{sT0}, 10
    s_add_u32 s{sT0}, s{sT0}, {hex(OF)}
    s_waitcnt lgkmcnt(3)
    v_or3_b32 v{F}, v{F}, v{F+1}, v{F+2}
    v_or3_b32 v{F+3}, v{F+3}, v{F+4}, v{F+5}
    v_or3_b32 v{F}, v{F}, v{F+6}, v{F+7}
    v_or_b32 v{F}, v{F}, v{F+3}
    s_nop 0
    v_readfirstlane_b32 s{sT1}, v{F}
    s_waitcnt lgkmcnt(0)
    v_add_f32 v{R+8}, v{R+8}, v{M[0]+8}
    v_rcp_f32 v{R+8}, v{R+8}
    s_andn2_b32 s{sT1}, s{sT1}, s{sPass}
    s_cbranch_scc1 L_k2_fallback
    """)
    for r in range(8):
        a(f"v_add_f32 v{R+r}, v{R+r}, v{M[0]+r}")
    for r in range(8):
        a(f"v_mul_f32 v{R+r}, v{R+r}, v{R+8}")
    for r in range(4):
        a(f"v_cvt_pk_bf16_f32 v{P+r}, v{R+2*r}, v{R+2*r+1}")
    a(f"buffer_store_dwordx4 {v(P,4)}, v{l16}, s[{SWS}:{SWS+3}], s{sT0} offen")
    stamp(a, 4)
    stamp_flush(a, 1, 8, sWave, 8)
    a.label("L_k2_end")
    a("s_endpgm")

    a.label("L_k2_svc")
    PS = 48
    sKV, sJ, sX, sM = 28, 29, 30, 31
    pa = S[0]; pd = S[1]
    a(f"""
    s_lshl_b32 s{sKV}, s{sHead}, 16
    s_add_u32 s{sKV}, s{sKV}, {hex(KF)}
    s_mov_b32 s{sM}, 0
    s_mov_b32 s{sIt}, 0
    s_waitcnt lgkmcnt(0)
    """)
    srd(a, SWS, 8, WS_SIZE)
    a.label("L_k2_grp")
    for part in range(4):
        lo = (part >> 1) * 0x10000 + (part & 1) * 0x8000
        go = (part >> 1) * (2 << 20) + (part & 1) * 0x8000
        a(f"""
        s_add_u32 m0, s{sM}, {hex(lo)}
        s_add_u32 s{sT0}, s{sKV}, {hex(go)}
        """)
        for i in range(4):
            a(f"buffer_load_dwordx4 v{l16}, s[{SWS}:{SWS+3}], s{sT0} offen offset:{i*1024} lds")
    a(f"""
    s_add_u32 s{sM}, s{sM}, 4096
    s_add_u32 s{sKV}, s{sKV}, 4096
    s_add_u32 s{sIt}, s{sIt}, 1
    s_waitcnt vmcnt(32)
    s_cmp_lg_u32 s{sIt}, 2
    s_cbranch_scc1 L_k2_g1
    s_waitcnt vmcnt(16)
    s_barrier
    """)
    a.label("L_k2_g1")
    a(f"""
    s_cmp_lg_u32 s{sIt}, 6
    s_cbranch_scc1 L_k2_g2
    s_barrier
    """)
    a.label("L_k2_g2")
    a(f"""
    s_cmp_lt_u32 s{sIt}, 8
    s_cbranch_scc1 L_k2_grp
    s_lshr_b32 s{sJ}, s2, 3
    s_and_b32 s{sX}, s2, 7
    s_mov_b32 s{PS+3}, 0x00020000
    v_lshlrev_b32 v{pa}, 7, v{lane}
    s_waitcnt vmcnt(0)
    s_barrier
    """)
    k = [0]

    def touch(areg, soff, off=0):
        a(f"buffer_load_dword v{pd+k[0]}, v{areg}, s[{PS}:{PS+3}], {soff} offen" + (f" offset:{off}" if off else ""))
        k[0] += 1

    def setp(p, n):
        a(f"""
        s_mov_b32 s{PS}, s{p}
        s_mov_b32 s{PS+1}, s{p+1}
        s_mov_b32 s{PS+2}, {hex(n)}
        """)
    if os.environ.get("PF", "1") == "1":
        if FUSED and os.environ.get("GFT", "1") == "1":
            setp(8, WS_SIZE)
            a(f"""
            s_lshl_b32 s{sT0}, s{sX}, 5
            s_add_u32 s{sT0}, s{sT0}, s{sJ}
            s_mul_i32 s{sT0}, s{sT0}, {172*128}
            s_add_u32 s{sT0}, s{sT0}, {hex(GF)}
            s_add_u32 s{sT1}, s{sT0}, {54*128}
            s_add_u32 s{sM}, s{sT0}, {108*128}
            """)
            touch(pa, f"s{sT0}"); touch(pa, f"s{sT1}"); touch(pa, f"s{sM}")
        setp(36, 512 * 1024)
        a(f"""
        s_lshl_b32 s{sT0}, s{sJ}, 14
        s_add_u32 s{sT1}, s{sT0}, 8192
        """)
        touch(pa, f"s{sT0}"); touch(pa, f"s{sT1}")
        setp(32, 2048 * 1024)
        a(f"""
        s_lshl_b32 s{sT0}, s{sX}, 5
        s_add_u32 s{sT0}, s{sT0}, s{sJ}
        s_lshl_b32 s{sT0}, s{sT0}, 13
        """)
        touch(pa, f"s{sT0}")
        if FUSED:
            setp(8, WS_SIZE)
            a(f"""
            s_add_u32 s{sT1}, s{sT0}, {hex(HF)}
            s_lshr_b32 s{sT0}, s{sT0}, 3
            s_add_u32 s{sT0}, s{sT0}, {hex(ST)}
            v_and_b32 v{pa+1}, {7*128}, v{pa}
            """)
            touch(pa, f"s{sT1}"); touch(pa + 1, f"s{sT0}")
            per = GUROWS // 32 * 2752
            a(f"s_mul_i32 s{sT0}, s{sJ}, {per}")
            for p in (40, 42):
                setp(p, 512 * 2752)
                a(f"v_add_u32 v{pa+1}, s{sT0}, v{pa}")
                a(f"v_add_u32 v{pa+2}, {per}, v{pa+1}")
                a(f"v_sub_u32 v{pa+2}, v{pa+2}, v{pa}")
                n = (per + 128 + 8191) // 8192
                for i in range(n):
                    k[0] = 0
                    touch(pa + 1, 0)
                    if i < n - 1:
                        a(f"v_add_u32 v{pa+1}, 8192, v{pa+1}")
                        a(f"v_min_u32 v{pa+1}, v{pa+1}, v{pa+2}")
        else:
            a(f"""
            v_lshrrev_b32 v{pa+1}, 3, v{lane}
            v_mul_u32_u24 v{pa+1}, 2752, v{pa+1}
            v_and_b32 v{pa+2}, 7, v{lane}
            v_min_u32 v{pa+2}, 6, v{pa+2}
            v_lshl_add_u32 v{pa+1}, v{pa+2}, 7, v{pa+1}
            s_mul_i32 s{sT0}, s{sJ}, {16*2752}
            s_lshr_b32 s{sT1}, s{sX}, 1
            s_mul_i32 s{sT1}, s{sT1}, 768
            s_add_u32 s{sT0}, s{sT0}, s{sT1}
            v_add_u32 v{pa+1}, s{sT0}, v{pa+1}
            v_add_u32 v{pa+2}, {8*2752}, v{pa+1}
            """)
            for p in (40, 42):
                setp(p, 512 * 2752)
                touch(pa + 1, 0); touch(pa + 2, 0)
        setp(44, 1376 * 1024)
        if PFD == "k4" or FUSED:
            a(f"""
            s_mul_i32 s{sT0}, s2, {43*128}
            v_add_u32 v{pa+3}, s{sT0}, v{pa}
            """)
            touch(pa + 3, 0)
        else:
            wd_touch(a, touch, pa, pa + 3, lane, sJ, sX, sT0, sT1)
    if FUSED:
        a(f"""
        s_cmp_lt_u32 s2, {256 - FL_BYTES // 4096}
        s_cbranch_scc1 L_k2_nz
        v_mov_b32 v{O[1]}, 0
        v_mov_b32 v{O[1]+1}, 0
        v_mov_b32 v{O[1]+2}, 0
        v_mov_b32 v{O[1]+3}, 0
        s_sub_u32 s{sT0}, 255, s2
        s_lshl_b32 s{sT0}, s{sT0}, 12
        s_add_u32 s{sT0}, s{sT0}, {hex(FL)}
        """)
        for q in range(4):
            a(f"buffer_store_dwordx4 {v(O[1],4)}, v{l16}, s[{SWS}:{SWS+3}], s{sT0} offen offset:{q*1024}")
        a.label("L_k2_nz")
    cs = O[0]; wf = M[0]; on = Q[0]; wd = ka; rw = va
    a(f"""
    s_cmp_ge_u32 s2, 86
    s_cbranch_scc1 L_k2_end
    s_cmp_lt_u32 s2, 43
    s_cselect_b32 s{PS}, s40, s42
    s_cselect_b32 s{PS+1}, s41, s43
    s_cselect_b32 s{sT0}, 0, 43
    s_mov_b32 s{PS+2}, {hex(512*2752)}
    s_sub_u32 s{sJ}, s2, s{sT0}
    s_lshl_b32 s{sKV}, s{sJ}, 6
    v_lshrrev_b32 v{t0}, 2, v{lane}
    v_and_b32 v{t1}, 3, v{lane}
    v_mul_u32_u24 v{t0}, 2752, v{t0}
    v_lshl_add_u32 v{wd}, v{t1}, 4, v{t0}
    s_mov_b32 s{sIt}, 0
    """)
    tr_addr(a, rw, lane, t0, t1)
    a(f"v_add_u32 v{rw}, {hex(XCH)}, v{rw}")
    for r in range(4):
        a(f"v_mov_b32 v{on+r}, 0x3f803f80")
    for r in range(16):
        a(f"v_mov_b32 v{cs+r}, 0")
    a.label("L_k2_csb")
    a(f"""
    s_mov_b32 m0, {hex(XCH)}
    s_mov_b32 s{sM}, 0
    """)
    a.label("L_k2_csd")
    a(f"""
    buffer_load_dwordx4 v{wd}, s[{PS}:{PS+3}], s{sKV} offen lds
    s_add_u32 m0, m0, 1024
    s_add_u32 s{sKV}, s{sKV}, {16*2752}
    s_add_u32 s{sM}, s{sM}, 1
    s_cmp_lt_u32 s{sM}, 16
    s_cbranch_scc1 L_k2_csd
    v_mov_b32 v{t0}, v{rw}
    s_mov_b32 s{sM}, 0
    s_waitcnt vmcnt(0)
    """)
    a.label("L_k2_csm")
    for i in range(4):
        a(f"""
        ds_read_b64_tr_b16 {v(wf+4*i,2)}, v{t0} offset:{i*1024}
        ds_read_b64_tr_b16 {v(wf+4*i+2,2)}, v{t0} offset:{i*1024+256}
        """)
    a(f"""
    v_add_u32 v{t0}, 4096, v{t0}
    s_add_u32 s{sM}, s{sM}, 1
    s_cmp_lt_u32 s{sM}, 4
    s_waitcnt lgkmcnt(0)
    """)
    for i in range(4):
        a(f"v_mfma_f32_32x32x16_bf16 {v(cs,16)}, {v(wf+4*i,4)}, {v(on,4)}, {v(cs,16)}")
    a(f"""
    s_cbranch_scc1 L_k2_csm
    s_add_u32 s{sIt}, s{sIt}, 1
    s_cmp_lt_u32 s{sIt}, 2
    s_cbranch_scc1 L_k2_csb
    s_cmp_lt_u32 s2, 43
    s_cselect_b32 s{sT0}, 0, {CSM}
    s_lshl_b32 s{sJ}, s{sJ}, 7
    s_add_u32 s{sT0}, s{sT0}, s{sJ}
    s_add_u32 s{sT0}, s{sT0}, {hex(CS)}
    v_and_b32 v{t0}, 32, v{lane}
    s_mov_b32 s26, 1
    s_mov_b32 s27, 1
    s_mov_b64 exec, s[26:27]
    s_nop 3
    buffer_store_dwordx4 {v(cs,4)}, v{t0}, s[{SWS}:{SWS+3}], s{sT0} offen
    buffer_store_dwordx4 {v(cs+4,4)}, v{t0}, s[{SWS}:{SWS+3}], s{sT0} offen offset:16
    buffer_store_dwordx4 {v(cs+8,4)}, v{t0}, s[{SWS}:{SWS+3}], s{sT0} offen offset:64
    buffer_store_dwordx4 {v(cs+12,4)}, v{t0}, s[{SWS}:{SWS+3}], s{sT0} offen offset:80
    s_endpgm
    """)

    a.label("L_k2_warm")
    a("s_barrier\ns_barrier\ns_barrier")
    a.warm_exit("w3", sWave, 1, 9)
    a.pads_end(8)
    a.label("L_k2_fallback")
    a(f"""
    s_mov_b32 s{sPass}, 1
    s_mov_b32 s{sG}, 0
    v_mov_b32 v{ka}, v{ka0}
    v_mov_b32 v{mx[0]}, 0xff800000
    v_mov_b32 v{mx[1]}, 0xff800000
    s_mov_b32 s{sIt}, 0
    """)
    a.label("L_k2_fbloop")
    a(f"""
    ds_read_b128 {v(Kf[0],4)}, v{ka}
    v_add_u32 v{ka}, 1024, v{ka}
    s_waitcnt lgkmcnt(0)
    v_mfma_f32_32x32x16_bf16 {v(S[0],16)}, {v(Kf[0],4)}, {v(Q[0],4)}, 0
    v_mfma_f32_32x32x16_bf16 {v(S[1],16)}, {v(Kf[0],4)}, {v(Q[1],4)}, 0
    s_nop 7
    s_nop 3
    """)
    for q in range(2):
        for i in range(0, 16, 2):
            a(f"v_max3_f32 v{mx[q]}, v{mx[q]}, v{S[q]+i}, v{S[q]+i+1}")
    a(f"""
    s_add_u32 s{sIt}, s{sIt}, 1
    s_cmp_lt_u32 s{sIt}, 32
    s_cbranch_scc1 L_k2_fbloop
    """)
    half_max(mx[0], t0)
    half_max(mx[1], t1)
    a(f"""
    s_lshl_b32 s{sT0}, s{sWave}, 9
    s_add_u32 s{sT0}, s{sT0}, {hex(MXS)}
    s_xor_b32 s{sT1}, s{sWave}, 4
    s_lshl_b32 s{sT1}, s{sT1}, 9
    s_add_u32 s{sT1}, s{sT1}, {hex(MXS)}
    v_lshl_add_u32 v{t0}, v{lane}, 2, s{sT0}
    v_lshl_add_u32 v{t1}, v{lane}, 2, s{sT1}
    ds_write_b32 v{t0}, v{mx[0]}
    ds_write_b32 v{t0}, v{mx[1]} offset:256
    s_waitcnt lgkmcnt(0)
    s_barrier
    ds_read_b32 v{S[0]}, v{t1}
    ds_read_b32 v{S[0]+1}, v{t1} offset:256
    s_waitcnt lgkmcnt(0)
    v_max_f32 v{mx[0]}, v{mx[0]}, v{S[0]}
    v_max_f32 v{mx[1]}, v{mx[1]}, v{S[0]+1}
    {initzero}
    s_branch L_k2_start
    """)
    return name, V.hi, 256, 640 if 'w3' in WARMSET else 576, LDS_K2
```

```python
from asmlib import *
import os
from k1 import OF, HF, GF, WS_SIZE, srd, half_sum

ST = (15 << 20) + (1 << 19)

CS = (15 << 20) + (3 << 18)
CSM = 8192
MAP5 = os.environ.get('MAP5', '84')

PFD = os.environ.get('PFD', 'k4')


def wd_touch(a, touch, l128, pa, lane, sJ, sX, sT0, sT1, part=None):
    if MAP5 == "48":
        a(f"s_mul_i32 s{sT0}, s{sJ}, {43*1024}")
        if part is not None:
            a(f"""
            s_mul_i32 s{sT1}, s{part}, {86*128}
            s_add_u32 s{sT0}, s{sT0}, s{sT1}
            """)
        a(f"v_add_u32 v{pa}, s{sT0}, v{l128}")
        n = 6 if part is None else 2
        for i in range(n):
            touch(pa, 0)
            if i < n - 1:
                a(f"v_add_u32 v{pa}, {8192 if part is None else 22*128}, v{pa}")
    else:
        a(f"""
        v_lshrrev_b32 v{pa}, 2, v{lane}
        v_lshlrev_b32 v{pa}, 10, v{pa}
        v_and_b32 v{pa+1}, 3, v{lane}
        v_lshl_add_u32 v{pa}, v{pa+1}, 7, v{pa}
        s_mul_i32 s{sT0}, s{sJ}, {43*1024}
        s_lshr_b32 s{sT1}, s{sX}, 2
        s_lshl_b32 s{sT1}, s{sT1}, 9
        s_add_u32 s{sT0}, s{sT0}, s{sT1}
        """)
        if part is not None:
            a(f"""
            s_mul_i32 s{sT1}, s{part}, {11*1024}
            s_add_u32 s{sT0}, s{sT0}, s{sT1}
            """)
        a(f"v_add_u32 v{pa}, s{sT0}, v{pa}")
        n = 3 if part is None else 1
        for i in range(n):
            touch(pa, 0)
            if i < n - 1:
                a(f"v_add_u32 v{pa}, 16384, v{pa}")


def tr_addr(a, dst, lane, t0, t1, sigma=True):
    a(f"""
    v_lshrrev_b32 v{t0}, 5, v{lane}
    v_lshlrev_b32 v{t0}, 9, v{t0}
    v_bfe_u32 v{t1}, v{lane}, 2, 2
    v_lshl_add_u32 v{t0}, v{t1}, 6, v{t0}
    v_bfe_u32 v{t1}, v{lane}, 4, 1
    v_lshl_add_u32 v{t0}, v{t1}, 5, v{t0}
    """)
    if sigma:
        a(f"""
        v_and_b32 v{t1}, 1, v{lane}
        v_lshl_add_u32 v{t0}, v{t1}, 4, v{t0}
        v_bfe_u32 v{t1}, v{lane}, 1, 1
        v_lshl_add_u32 v{dst}, v{t1}, 3, v{t0}
        """)
    else:
        a(f"""
        v_and_b32 v{t1}, 3, v{lane}
        v_lshl_add_u32 v{dst}, v{t1}, 3, v{t0}
        """)


def gen_splitk(a, which):
    wo = which == "wo"
    name = "wo_kernel" if wo else "down_kernel"
    L = "k3" if wo else "k5"
    KS = 32 if wo else 86
    NF = KS // 4
    NCH = (KS + 3) // 4
    NS = 8
    P = int(os.environ.get('P3' if wo else 'P5', '6'))
    ROT = os.environ.get('ROT3' if wo else 'ROT5', '2')
    assert P <= NS - 2
    AOFF = OF if wo else GF
    V = Regs(1, 128, "v")
    a.raw(f".globl {name}\n.p2align 9\n.type {name},@function")
    a.label(name)
    a.pads_begin("w3")
    SW, SWS, SR = 16, 20, 24
    sWave, sRb, sCg, sAo, sWo, sDm, sCk, sI, sN, sT0, sT1, sAb, sRd, sH, sW4, sWb = range(28, 44)
    a(f"""
    s_cmp_ge_u32 s2, 256
    s_cbranch_scc1 L_{L}_end
    s_load_dwordx2 s[4:5], s[0:1], {16 if wo else 48}
    s_load_dwordx2 s[6:7], s[0:1], {0 if wo else 56}
    s_load_dwordx2 s[8:9], s[0:1], 72
    """)
    stamp(a, 0); stamp_real(a, 5)
    lane = V.alloc(); t0 = V.alloc(); t1 = V.alloc(); l16 = V.alloc()
    a(f"""
    v_lshrrev_b32 v{t0}, 6, v0
    v_and_b32 v{lane}, 63, v0
    s_and_b32 s{sT0}, s2, 7
    v_readfirstlane_b32 s{sWave}, v{t0}
    s_lshr_b32 s{sT1}, s2, 3
    v_lshlrev_b32 v{l16}, 4, v{lane}
    """)
    if wo or MAP5 == '48':
        a(f"""
        s_lshl_b32 s{sRb}, s{sT0}, 2
        s_and_b32 s{sT0}, s{sT1}, 3
        s_add_u32 s{sRb}, s{sRb}, s{sT0}
        s_lshr_b32 s{sCg}, s{sT1}, 2
        s_mul_i32 s{sCk}, s{sCg if ROT == '1' else sT0}, {(1 if wo else 2) if ROT == '1' else ((2 if wo else 5) if ROT in '23' else 0)}
        """)
        if ROT == '3':
            a(f"""
            s_mul_i32 s{sT1}, s{sCg}, {NF}
            s_lshr_b32 s{sT1}, s{sT1}, 3
            s_add_u32 s{sCk}, s{sCk}, s{sT1}
            s_cmp_ge_u32 s{sCk}, {NF}
            s_cselect_b32 s{sT1}, {NF}, 0
            s_sub_u32 s{sCk}, s{sCk}, s{sT1}
            """)
    else:
        a(f"""
        s_and_b32 s{sRb}, s{sT0}, 3
        s_lshl_b32 s{sRb}, s{sRb}, 3
        s_and_b32 s{sCg}, s{sT1}, 7
        s_add_u32 s{sRb}, s{sRb}, s{sCg}
        s_lshr_b32 s{sCg}, s{sT0}, 2
        s_lshl_b32 s{sCg}, s{sCg}, 2
        s_lshr_b32 s{sT1}, s{sT1}, 3
        s_add_u32 s{sCg}, s{sCg}, s{sT1}
        s_and_b32 s{sCk}, s{sRb}, 7
        s_mul_i32 s{sCk}, s{sT1 if ROT == '1' else sCk}, {5 if ROT == '1' else (2 if ROT == '2' else 0)}
        """)
    a(f"""
    s_and_b32 s{sW4}, s{sWave}, 3
    s_cmp_lt_u32 s{sWave}, 4
    s_cbranch_scc1 L_{L}_compute
    """)
    mk = V.mark()
    ad1 = V.alloc(); wd0 = V.alloc(); wd1 = V.alloc(); vt = V.alloc()
    a(f"""
    v_add_u32 v{ad1}, {KS*1024-1024}, v{l16}
    v_lshrrev_b32 v{t0}, 2, v{lane}
    v_and_b32 v{t1}, 3, v{lane}
    v_lshlrev_b32 v{t0}, 10, v{t0}
    v_lshl_add_u32 v{wd0}, v{t1}, 4, v{t0}
    v_add_u32 v{wd1}, 64, v{wd0}
    s_mul_i32 s{sAb}, s{sRb}, {2*KS*1024}
    s_lshl_b32 s{sT0}, s{sW4}, 10
    s_add_u32 s{sAb}, s{sAb}, s{sT0}
    s_add_u32 s{sAb}, s{sAb}, {hex(AOFF)}
    s_lshl_b32 s{sWb}, s{sW4}, 14
    s_lshl_b32 s{sT0}, s{sCg}, 7
    s_add_u32 s{sWb}, s{sWb}, s{sT0}
    s_lshl_b32 s{sDm}, s{sW4}, 12
    s_mov_b32 s{sI}, 0
    s_mov_b32 s{sN}, 0
    s_waitcnt lgkmcnt(0)
    """)
    srd(a, SW, 4, KS * 16 * 1024)
    srd(a, SWS, 8, WS_SIZE)
    trace_init(a, vt)

    def issue():
        a(f"""
        s_mov_b32 m0, s{sDm}
        s_add_u32 s{sDm}, s{sDm}, 0x4000
        buffer_load_dwordx4 v{l16}, s[{SWS}:{SWS+3}], s{sAo} offen lds
        buffer_load_dwordx4 v{ad1}, s[{SWS}:{SWS+3}], s{sAo} offen offset:1024 lds
        s_add_u32 m0, m0, 2048
        s_and_b32 s{sDm}, s{sDm}, {NS*0x4000-1}
        buffer_load_dwordx4 v{wd0}, s[{SW}:{SW+3}], s{sWo} offen lds
        s_add_u32 m0, m0, 1024
        s_add_u32 s{sI}, s{sI}, 1
        buffer_load_dwordx4 v{wd1}, s[{SW}:{SW+3}], s{sWo} offen lds
        """)

    def addr():
        a(f"""
        s_lshl_b32 s{sAo}, s{sCk}, 12
        s_lshl_b32 s{sWo}, s{sCk}, 16
        s_add_u32 s{sAo}, s{sAo}, s{sAb}
        s_add_u32 s{sWo}, s{sWo}, s{sWb}
        s_add_u32 s{sCk}, s{sCk}, 1
        s_cmp_ge_u32 s{sCk}, {NF}
        s_cselect_b32 s{sCk}, 0, s{sCk}
        """)

    if NCH != NF:
        a(f"""
        s_add_u32 s{sAo}, s{sAb}, {NF*4096}
        s_add_u32 s{sWo}, s{sWb}, {NF*65536}
        s_cmp_lt_u32 s{sW4}, {KS-4*NF}
        s_cbranch_scc1 L_{L}_pi
        s_add_u32 s{sDm}, s{sDm}, 0x4000
        s_add_u32 s{sI}, s{sI}, 1
        """)
    a.label(f"L_{L}_pre")
    addr()
    a.label(f"L_{L}_pi")
    issue()
    a(f"""
    s_cmp_lt_u32 s{sI}, {P}
    s_cbranch_scc1 L_{L}_pre
    """)
    a.label(f"L_{L}_ld")
    addr()
    a(f"""
    s_waitcnt vmcnt({4*(P-1)})
    s_barrier
    """)
    trace(a, vt, sN)
    if STAMP: a(f"s_add_u32 s{sN}, s{sN}, 1")
    issue()
    a(f"""
    s_cmp_lt_u32 s{sI}, {NCH}
    s_cbranch_scc1 L_{L}_ld
    """)
    for r in range(P - 1, -1, -1):
        a(f"""
        s_waitcnt vmcnt({4*r})
        s_barrier
        """)
        trace(a, vt, sN)
        if STAMP: a(f"s_add_u32 s{sN}, s{sN}, 1")
    trace_flush(a, vt, 2 if wo else 4, 8, sWave, 4, lane)
    a("s_endpgm")
    V.release(mk)
    a.label(f"L_{L}_compute")
    ra = V.alloc(); rw = V.alloc(); ca = V.alloc(); cw = V.alloc(); rm = V.alloc()
    res = V.alloc(8, 4)
    acc = V.alloc(16, 4)
    fr = [V.alloc(32, 4) for _ in range(2)]
    a(f"""
    s_and_b32 s{sT0}, s{sWave}, 1
    s_lshr_b32 s{sT1}, s{sWave}, 1
    v_and_b32 v{t0}, 31, v{lane}
    v_lshlrev_b32 v{t0}, 10, v{t0}
    v_lshrrev_b32 v{t1}, 5, v{lane}
    v_lshl_add_u32 v{rm}, v{t1}, 4, v{t0}
    s_lshl_b32 s{sH}, s{sRb}, 16
    s_lshl_b32 s{sN}, s{sT0}, 15
    s_add_u32 s{sH}, s{sH}, s{sN}
    s_lshl_b32 s{sN}, s{sCg}, 7
    s_add_u32 s{sI}, s{sH}, s{sN}
    s_lshl_b32 s{sN}, s{sT1}, 6
    s_add_u32 s{sI}, s{sI}, s{sN}
    v_add_u32 v{rm}, s{sI}, v{rm}
    s_lshl_b32 s{sN}, s{sCg}, 12
    s_add_u32 s{sH}, s{sH}, s{sN}
    s_lshl_b32 s{sN}, s{sT1}, 11
    s_add_u32 s{sH}, s{sH}, s{sN}
    s_add_u32 s{sH}, s{sH}, {hex(HF)}
    s_lshl_b32 s{sN}, s{sT0}, 10
    v_add_u32 v{ra}, s{sN}, v{l16}
    """)
    tr_addr(a, rw, lane, t0, t1)
    a(f"""
    s_lshl_b32 s{sN}, s{sT1}, 10
    s_add_u32 s{sN}, s{sN}, 2048
    v_add_u32 v{rw}, s{sN}, v{rw}
    v_mov_b32 v{ca}, v{ra}
    v_mov_b32 v{cw}, v{rw}
    s_mov_b32 s{sRd}, 0
    s_mov_b32 s{sI}, 0
    """)
    for r in range(16):
        a(f"v_mov_b32 v{acc+r}, 0")
    a("s_waitcnt lgkmcnt(0)")
    srd(a, SWS, 8, WS_SIZE)
    srd(a, SR, 6, 2048 * 1024)
    stamp(a, 1)
    if wo:
        a(f"""
        buffer_load_dwordx4 {v(res,4)}, v{rm}, s[{SR}:{SR+3}], 0 offen
        buffer_load_dwordx4 {v(res+4,4)}, v{rm}, s[{SR}:{SR+3}], 0 offen offset:32
        """)
    else:
        a(f"""
        buffer_load_dwordx4 {v(res,4)}, v{l16}, s[{SWS}:{SWS+3}], s{sH} offen
        buffer_load_dwordx4 {v(res+4,4)}, v{l16}, s[{SWS}:{SWS+3}], s{sH} offen offset:1024
        """)

    def reads(f, n=4):
        for k in range(n):
            a(f"""
            ds_read_b128 {v(f+8*k,4)}, v{ca} offset:{k*4096}
            ds_read_b64_tr_b16 {v(f+8*k+4,2)}, v{cw} offset:{k*4096}
            ds_read_b64_tr_b16 {v(f+8*k+6,2)}, v{cw} offset:{k*4096+256}
            """)

    def adv():
        a(f"""
        s_add_u32 s{sRd}, s{sRd}, 0x4000
        s_and_b32 s{sRd}, s{sRd}, {NS*0x4000-1}
        v_add_u32 v{ca}, s{sRd}, v{ra}
        v_add_u32 v{cw}, s{sRd}, v{rw}
        """)

    def mm(f, n=4):
        for k in range(n):
            a(f"v_mfma_f32_32x32x16_bf16 {v(acc,16)}, {v(f+8*k+4,4)}, {v(f+8*k,4)}, {v(acc,16)}")

    n0 = 4 if wo else KS - 4 * NF
    a("s_barrier")
    stamp(a, 2)
    if STAMP: a("s_waitcnt lgkmcnt(0)")
    f = fr[1]

    def rd(k):
        a(f"""
        ds_read_b128 {v(f+8*k,4)}, v{ca} offset:{k*4096}
        ds_read_b64_tr_b16 {v(f+8*k+4,2)}, v{cw} offset:{k*4096}
        ds_read_b64_tr_b16 {v(f+8*k+6,2)}, v{cw} offset:{k*4096+256}
        """)

    def mf(k):
        a(f"v_mfma_f32_32x32x16_bf16 {v(acc,16)}, {v(f+8*k+4,4)}, {v(f+8*k,4)}, {v(acc,16)}")

    for k in range(n0):
        rd(k)
    adv()
    if not wo:
        a("s_barrier")
        for k in range(4):
            if k < n0:
                a("s_waitcnt lgkmcnt(3)")
                mf(k)
            rd(k)
        adv()
    a.label(f"L_{L}_loop")
    a("s_barrier")
    for k in range(4):
        a("s_waitcnt lgkmcnt(9)")
        mf(k)
        rd(k)
        if k == 0:
            a(f"""
            s_add_u32 s{sRd}, s{sRd}, 0x4000
            s_and_b32 s{sRd}, s{sRd}, {NS*0x4000-1}
            """)
        if k == 1:
            a(f"""
            s_add_u32 s{sI}, s{sI}, 1
            s_cmp_lt_u32 s{sI}, {NCH-1 if wo else NCH-2}
            """)
    a(f"""
    v_add_u32 v{ca}, s{sRd}, v{ra}
    v_add_u32 v{cw}, s{sRd}, v{rw}
    s_cbranch_scc1 L_{L}_loop
    """)
    u = fr[0]
    a("s_waitcnt vmcnt(0)")
    for k in range(4):
        a(f"s_waitcnt lgkmcnt({9-3*k})")
        a(f"v_mfma_f32_32x32x16_bf16 {v(acc,16)}, {v(fr[1]+8*k+4,4)}, {v(fr[1]+8*k,4)}, {v(acc,16)}")
        for r in range(2 * k, 2 * k + 2):
            a(f"v_lshlrev_b32 v{u+2*r}, 16, v{res+r}")
            a(f"v_and_b32 v{u+2*r+1}, 0xffff0000, v{res+r}")
    stamp(a, 3)
    if wo:
        a(f"""
        s_and_b32 s{sT0}, s{sWave}, 1
        s_lshl_b32 s{sT1}, s{sRb}, 1
        s_add_u32 s{sT0}, s{sT0}, s{sT1}
        s_lshl_b32 s{sT0}, s{sT0}, 3
        s_add_u32 s{sT0}, s{sT0}, s{sCg}
        s_lshl_b32 s{sT0}, s{sT0}, 9
        s_lshr_b32 s{sT1}, s{sWave}, 1
        s_lshl_b32 s{sT1}, s{sT1}, 3
        s_add_u32 s{sT0}, s{sT0}, s{sT1}
        s_add_u32 s{sT0}, s{sT0}, {hex(ST)}
        s_mov_b32 s{sT1}, 0x3f803f80
        """)
    else:
        a("s_nop 7")
    for r in range(0, 16, 2):
        a(f"v_pk_add_f32 {v(acc+r,2)}, {v(acc+r,2)}, {v(u+r,2)}")
    o = fr[1]
    for r in range(8):
        a(f"v_cvt_pk_bf16_f32 v{o+r}, v{acc+2*r}, v{acc+2*r+1}")
    if wo:
        a(f"""
        buffer_store_dwordx4 {v(o,4)}, v{l16}, s[{SWS}:{SWS+3}], s{sH} offen
        buffer_store_dwordx4 {v(o+4,4)}, v{l16}, s[{SWS}:{SWS+3}], s{sH} offen offset:1024
        """)
        sm = fr[0] + 16
        a(f"""
        v_mov_b32 v{sm}, 0
        v_mov_b32 v{sm+1}, 0
        """)
        for r in range(8):
            a(f"v_dot2_f32_bf16 v{sm}, v{o+r}, s{sT1}, v{sm}")
            a(f"v_dot2_f32_bf16 v{sm+1}, v{o+r}, v{o+r}, v{sm+1}")
        a(f"""
        v_and_b32 v{t1}, 0x1ff, v{l16}
        s_nop 1
        v_mov_b32 v{sm+2}, v{sm}
        v_mov_b32 v{sm+3}, v{sm+1}
        s_nop 0
        v_permlane32_swap_b32 v{sm}, v{sm+2}
        v_permlane32_swap_b32 v{sm+1}, v{sm+3}
        s_nop 0
        v_add_f32 v{sm}, v{sm}, v{sm+2}
        v_add_f32 v{sm+1}, v{sm+1}, v{sm+3}
        buffer_store_dwordx2 {v(sm,2)}, v{t1}, s[{SWS}:{SWS+3}], s{sT0} offen
        """)
    else:
        a(f"""
        buffer_store_dwordx4 {v(o,4)}, v{rm}, s[{SR}:{SR+3}], 0 offen
        buffer_store_dwordx4 {v(o+4,4)}, v{rm}, s[{SR}:{SR+3}], 0 offen offset:32
        """)
    a.pads_end(4)
    stamp(a, 4)
    stamp_flush(a, 2 if wo else 4, 8, sWave, 4)
    a.label(f"L_{L}_end")
    a("s_endpgm")
    return name, V.hi, 256, 512, NS * 0x4000
```

```python
from asmlib import *
from k1 import HF, GF, WS_SIZE, EPS, srd, half_sum
from k35 import ST, CS, CSM, tr_addr, PFD, wd_touch
import math, os

NS = int(os.environ.get('NS4', '7'))
P = int(os.environ.get('P4', '3'))
SLOT = 20480
NCH = 16
CSL = NS * SLOT


def gen_k4(a):
    name = "ffn1_kernel"
    V = Regs(1, 256, "v")
    a.raw(f".globl {name}\n.p2align 9\n.type {name},@function")
    a.label(name)
    a.pads_begin("w3")
    SW, SWS = 12, 16
    sWave, sRb, sCg, sAo, sWo, sDm, sC, sRd, sT0, sT1, sA, sB, sIss, sW4, sCk, sAb = range(24, 40)
    assert P <= NS - 2
    a(f"""
    s_cmp_ge_u32 s2, 256
    s_cbranch_scc1 L_k4_end
    s_load_dwordx4 s[4:7], s[0:1], 32
    s_load_dwordx2 s[8:9], s[0:1], 72
    s_load_dwordx2 s[10:11], s[0:1], 48
    """)
    stamp(a, 0); stamp_real(a, 5)
    lane = V.alloc(); t0 = V.alloc(); t1 = V.alloc(); l16 = V.alloc()
    a(f"""
    v_lshrrev_b32 v{t0}, 6, v0
    v_and_b32 v{lane}, 63, v0
    s_and_b32 s{sT0}, s2, 7
    v_readfirstlane_b32 s{sWave}, v{t0}
    s_lshr_b32 s{sT1}, s2, 3
    s_and_b32 s{sRb}, s{sT0}, 1
    s_lshl_b32 s{sRb}, s{sRb}, 3
    s_and_b32 s{sCg}, s{sT1}, 7
    s_add_u32 s{sRb}, s{sRb}, s{sCg}
    s_lshr_b32 s{sCg}, s{sT0}, 1
    s_lshl_b32 s{sCg}, s{sCg}, 2
    s_lshr_b32 s{sT1}, s{sT1}, 3
    s_add_u32 s{sCg}, s{sCg}, s{sT1}
    s_and_b32 s{sW4}, s{sWave}, 3
    s_cmp_eq_u32 s{sCg}, 15
    s_cbranch_scc1 L_k4_idle
    s_lshl_b32 s{sCk}, s{sT1}, 2
    s_and_b32 s{sCk}, s{sCk}, {15 if os.environ.get('ROT4', '0') == '1' else 0}
    v_lshlrev_b32 v{l16}, 4, v{lane}
    s_and_b32 s{sW4}, s{sWave}, 3
    s_lshl_b32 s{sA}, s{sW4}, 11
    s_lshl_b32 s{sT0}, s{sRb}, 2
    s_add_u32 s{sT0}, s{sT0}, s{sW4}
    s_mov_b32 s{sC}, 0
    s_cmp_lt_u32 s{sWave}, 4
    s_cbranch_scc1 L_k4_compute
    """)
    mk = V.mark()
    wd = [V.alloc() for _ in range(3)]
    vt = V.alloc()
    a(f"""
    v_lshrrev_b32 v{t0}, 2, v{lane}
    v_and_b32 v{t1}, 3, v{lane}
    v_mul_u32_u24 v{t0}, 2752, v{t0}
    v_lshl_add_u32 v{wd[0]}, v{t1}, 4, v{t0}
    v_add_u32 v{wd[1]}, 64, v{wd[0]}
    v_add_u32 v{wd[2]}, 128, v{wd[0]}
    s_lshl_b32 s{sAb}, s{sT0}, 15
    s_add_u32 s{sAb}, s{sAb}, {hex(HF)}
    s_lshl_b32 s{sAo}, s{sCk}, 11
    s_add_u32 s{sAo}, s{sAo}, s{sAb}
    s_lshr_b32 s{sT0}, s{sW4}, 1
    s_mul_i32 s{sWo}, s{sT0}, {16*2752}
    s_mul_i32 s{sT0}, s{sCg}, 192
    s_add_u32 s{sWo}, s{sWo}, s{sT0}
    s_mul_i32 s{sT0}, s{sCk}, {32*2752}
    s_add_u32 s{sWo}, s{sWo}, s{sT0}
    s_mul_i32 s{sB}, s{sW4}, 3072
    s_add_u32 s{sB}, s{sB}, 8192
    s_mov_b32 s{sDm}, 0
    s_mov_b32 s{sIss}, 0
    s_bitcmp1_b32 s{sWave}, 0
    s_waitcnt lgkmcnt(0)
    s_cselect_b32 s{SW}, s6, s4
    s_cselect_b32 s{SW+1}, s7, s5
    s_mov_b32 s{SW+2}, {hex(512*2752)}
    s_mov_b32 s{SW+3}, 0x00020000
    """)
    srd(a, SWS, 8, WS_SIZE)
    trace_init(a, vt)

    def dma_chunk():
        a(f"""
        s_add_u32 m0, s{sDm}, s{sA}
        s_add_u32 s{sT1}, s{sDm}, s{sB}
        buffer_load_dwordx4 v{l16}, s[{SWS}:{SWS+3}], s{sAo} offen lds
        buffer_load_dwordx4 v{l16}, s[{SWS}:{SWS+3}], s{sAo} offen offset:1024 lds
        s_mov_b32 m0, s{sT1}
        s_add_u32 s{sAo}, s{sAo}, 2048
        buffer_load_dwordx4 v{wd[0]}, s[{SW}:{SW+3}], s{sWo} offen lds
        s_add_u32 m0, s{sT1}, 1024
        s_add_u32 s{sDm}, s{sDm}, {SLOT}
        buffer_load_dwordx4 v{wd[1]}, s[{SW}:{SW+3}], s{sWo} offen lds
        s_add_u32 m0, s{sT1}, 2048
        s_cmp_ge_u32 s{sDm}, {NS*SLOT}
        buffer_load_dwordx4 v{wd[2]}, s[{SW}:{SW+3}], s{sWo} offen lds
        s_cselect_b32 s{sDm}, 0, s{sDm}
        s_add_u32 s{sWo}, s{sWo}, {32*2752}
        s_cmp_ge_u32 s{sWo}, {512*2752}
        s_cselect_b32 s{sT0}, {512*2752}, 0
        s_cselect_b32 s{sAo}, s{sAb}, s{sAo}
        s_sub_u32 s{sWo}, s{sWo}, s{sT0}
        s_add_u32 s{sIss}, s{sIss}, 1
        """)

    a.label("L_k4_pre")
    dma_chunk()
    a(f"""
    s_cmp_lt_u32 s{sIss}, {P}
    s_cbranch_scc1 L_k4_pre
    """)
    a.label("L_k4_ldloop")
    a(f"""
    s_waitcnt vmcnt({5*(P-1)})
    s_barrier
    """)
    trace(a, vt, sC)
    if STAMP: a(f"s_add_u32 s{sC}, s{sC}, 1")
    dma_chunk()
    a(f"""
    s_cmp_lt_u32 s{sIss}, {NCH}
    s_cbranch_scc1 L_k4_ldloop
    """)
    for r in range(P - 1, -1, -1):
        a(f"""
        s_waitcnt vmcnt({5*r})
        s_barrier
        """)
        trace(a, vt, sC)
        if STAMP: a(f"s_add_u32 s{sC}, s{sC}, 1")
    trace_flush(a, vt, 3, 8, sWave, 4, lane)
    if STAMP: a(f"v_and_b32 v{lane}, 63, v0")
    a("s_barrier")
    a.label("L_k4_pf")
    if PFD == "k4":
        pd = V.alloc(4); pa = V.alloc(2); kk = [0]

        def touch(areg, soff):
            a(f"buffer_load_dword v{pd+kk[0]}, v{areg}, s[{SW}:{SW+3}], {soff} offen")
            kk[0] += 1
        srd(a, SW, 10, 1376 * 1024)
        a(f"""
        s_lshr_b32 s{sAo}, s2, 3
        s_and_b32 s{sWo}, s2, 7
        v_lshlrev_b32 v{t0}, 7, v{lane}
        """)
        wd_touch(a, touch, t0, pa, lane, sAo, sWo, sT0, sT1, sW4)
    a("s_endpgm")
    a.label("L_k4_idle")
    a(f"""
    s_cmp_lt_u32 s{sWave}, 4
    s_cbranch_scc1 L_k4_end
    s_waitcnt lgkmcnt(0)
    s_branch L_k4_pf
    """)
    V.release(mk)
    a.label("L_k4_compute")
    ra = V.alloc(); rw = V.alloc(); cw = V.alloc(); ca = V.alloc(); csa = V.alloc()
    acc = [V.alloc(16, 4) for _ in range(6)]
    wf = V.alloc(24, 4)
    an = [V.alloc(4, 4) for _ in range(2)]
    z = V.alloc(16, 4)
    kc = V.alloc(4, 4)
    stt = z
    a(f"""
    s_lshl_b32 s{sT1}, s{sT0}, 12
    s_add_u32 s{sT1}, s{sT1}, {hex(ST)}
    v_and_b32 v{t0}, 0x1ff, v{l16}
    v_lshrrev_b32 v{t1}, 5, v{lane}
    v_lshl_add_u32 v{t0}, v{t1}, 11, v{t0}
    v_min_u32 v{csa}, {47*16}, v{l16}
    v_cmp_lt_u32 vcc, {23*16}, v{csa}
    v_mov_b32 v{ra}, {CSM-384}
    s_mul_i32 s{sB}, s{sCg}, 384
    v_cndmask_b32 v{ra}, 0, v{ra}, vcc
    s_add_u32 s{sB}, s{sB}, {hex(CS)}
    v_add_u32 v{csa}, v{csa}, v{ra}
    s_lshl_b32 s{sRd}, s{sWave}, 10
    s_add_u32 s{sRd}, s{sRd}, {CSL}
    s_mov_b32 m0, s{sRd}
    s_waitcnt lgkmcnt(0)
    """)
    srd(a, SWS, 8, WS_SIZE)
    a(f"buffer_load_dwordx4 v{csa}, s[{SWS}:{SWS+3}], s{sB} offen lds")
    for i in range(4):
        a(f"buffer_load_dwordx4 {v(stt+4*i,4)}, v{t0}, s[{SWS}:{SWS+3}], s{sT1} offen offset:{i*512}")
    a(f"""
    v_and_b32 v{csa}, 32, v{lane}
    v_add_u32 v{csa}, s{sRd}, v{csa}
    v_add_u32 v{ra}, s{sA}, v{l16}
    """)
    tr_addr(a, rw, lane, t0, t1)
    a(f"""
    v_add_u32 v{rw}, 8192, v{rw}
    v_mov_b32 v{ca}, v{ra}
    v_mov_b32 v{cw}, v{rw}
    s_mov_b32 s{sRd}, 0
    s_mul_i32 s{sT0}, s{sT0}, 86
    s_mul_i32 s{sT1}, s{sCg}, 6
    s_add_u32 s{sT0}, s{sT0}, s{sT1}
    s_lshl_b32 s{sT0}, s{sT0}, 10
    s_add_u32 s{sT0}, s{sT0}, {hex(GF)}
    s_cmp_eq_u32 s{sCg}, 14
    s_cselect_b32 s{sIss}, 1, 3
    """)
    stamp(a, 1)
    a("s_waitcnt vmcnt(4)")
    if STAMP: a("s_waitcnt lgkmcnt(0)")
    for j in range(6):
        for q in range(4):
            a(f"ds_read_b128 {v(acc[j]+4*q,4)}, v{csa} offset:{j*128+(q>>1)*64+(q&1)*16}")
    a("s_waitcnt vmcnt(0)")
    for i in range(0, 8, 2):
        a(f"v_pk_add_f32 {v(stt+i,2)}, {v(stt+i,2)}, {v(stt+8+i,2)}")
    a(f"""
    v_pk_add_f32 {v(stt,2)}, {v(stt,2)}, {v(stt+4,2)}
    v_pk_add_f32 {v(stt+2,2)}, {v(stt+2,2)}, {v(stt+6,2)}
    s_nop 0
    v_pk_add_f32 {v(stt,2)}, {v(stt,2)}, {v(stt+2,2)}
    s_nop 0
    v_mov_b32 v{stt+2}, v{stt}
    v_mov_b32 v{stt+3}, v{stt+1}
    s_nop 0
    v_permlane32_swap_b32 v{stt}, v{stt+2}
    v_permlane32_swap_b32 v{stt+1}, v{stt+3}
    s_nop 0
    v_add_f32 v{stt}, v{stt}, v{stt+2}
    v_add_f32 v{stt+1}, v{stt+1}, v{stt+3}
    v_mul_f32 v{stt+4}, {hexf(-1.0/512)}, v{stt}
    v_mul_f32 v{t1}, {hexf(1.0/512)}, v{stt+1}
    s_waitcnt lgkmcnt(0)
    """)
    for r in range(0, 96, 2):
        a(f"v_pk_mul_f32 {v(acc[0]+r,2)}, {v(acc[0]+r,2)}, {v(stt+4,2)} op_sel_hi:[1,0]")
    c0 = -2.0 * math.sqrt(2.0 / math.pi) * math.log2(math.e)
    c1 = c0 * 0.044715
    a(f"""
    v_fma_f32 v{t1}, -v{stt+4}, v{stt+4}, v{t1}
    v_max_f32 v{t1}, 0, v{t1}
    v_add_f32 v{kc+2}, {hexf(EPS)}, v{t1}
    v_rsq_f32 v{t0}, v{kc+2}
    s_nop 0
    v_mul_f32 v{t1}, v{t0}, v{t0}
    v_mul_f32 v{kc+1}, {hexf(c0)}, v{t0}
    v_mul_f32 v{t1}, v{t1}, v{t0}
    v_mul_f32 v{kc}, {hexf(c1)}, v{t1}
    """)

    def rd_a(ks2, dst):
        a(f"ds_read_b128 {v(dst,4)}, v{ca} offset:{ks2*1024}")

    def rd_w(ks2, j):
        for jj in range(2):
            a(f"ds_read_b64_tr_b16 {v(wf+4*j+2*jj,2)}, v{cw} offset:{ks2*6144+j*1024+jj*256}")

    def kstep(cur, nxt_ks2, tail=None):
        for j in range(6):
            if j % 2 == 0:
                a(f"s_waitcnt lgkmcnt({8 if j == 0 else 9})")
            a(f"v_mfma_f32_32x32x16_bf16 {v(acc[j],16)}, {v(wf+4*j,4)}, {v(an[cur],4)}, {v(acc[j],16)}")
            if j == 0:
                rd_a(nxt_ks2, an[1 - cur])
            rd_w(nxt_ks2, j)
            if tail and j in tail:
                a(tail[j])

    a("s_barrier")
    stamp(a, 2)
    if STAMP: a("s_waitcnt lgkmcnt(0)")
    rd_a(0, an[0])
    for j in range(6):
        rd_w(0, j)
    a.label("L_k4_loop")
    kstep(0, 1, {1: f"""
    s_add_u32 s{sRd}, s{sRd}, {SLOT}
    """, 2: f"""
    s_cmp_ge_u32 s{sRd}, {NS*SLOT}
    s_cselect_b32 s{sRd}, 0, s{sRd}
    """, 3: f"""
    v_add_u32 v{ca}, s{sRd}, v{ra}
    """, 5: f"""
    v_add_u32 v{cw}, s{sRd}, v{rw}
    s_barrier
    """})
    kstep(1, 0, {3: f"""
    s_add_u32 s{sC}, s{sC}, 1
    s_cmp_lt_u32 s{sC}, {NCH}
    """})
    a("s_cbranch_scc1 L_k4_loop")
    stamp(a, 3)
    a(f"""
    s_waitcnt lgkmcnt(0)
    s_nop 7
    """)
    for j in range(3):
        o = wf + 8 * j
        g = acc[j]; u = acc[3 + j]
        for r in range(0, 16, 2):
            a(f"v_pk_mul_f32 {v(z+r,2)}, {v(g+r,2)}, {v(g+r,2)}")
        for r in range(0, 16, 2):
            a(f"v_pk_fma_f32 {v(z+r,2)}, {v(z+r,2)}, {v(kc,2)}, {v(kc,2)} op_sel:[0,0,1] op_sel_hi:[1,0,1]")
        for r in range(0, 16, 2):
            a(f"v_pk_mul_f32 {v(z+r,2)}, {v(z+r,2)}, {v(g+r,2)}")
        for r in range(16):
            a(f"v_exp_f32 v{z+r}, v{z+r}")
        for r in range(0, 16, 2):
            a(f"v_pk_mul_f32 {v(g+r,2)}, {v(g+r,2)}, {v(u+r,2)}")
        for r in range(0, 16, 2):
            a(f"v_pk_fma_f32 {v(z+r,2)}, {v(z+r,2)}, {v(kc+2,2)}, {v(kc+2,2)} op_sel_hi:[1,0,0]")
        for r in range(16):
            a(f"v_rcp_f32 v{z+r}, v{z+r}")
        a("s_nop 0")
        for r in range(0, 16, 2):
            a(f"v_pk_mul_f32 {v(g+r,2)}, {v(g+r,2)}, {v(z+r,2)}")
        for r in range(8):
            a(f"v_cvt_pk_bf16_f32 v{o+r}, v{g+2*r}, v{g+2*r+1}")
        a(f"""
        buffer_store_dwordx4 {v(o,4)}, v{l16}, s[{SWS}:{SWS+3}], s{sT0} offen
        buffer_store_dwordx4 {v(o+4,4)}, v{l16}, s[{SWS}:{SWS+3}], s{sT0} offen offset:1024
        """)
        if j == 0:
            a(f"""
            s_cmp_eq_u32 s{sIss}, 1
            s_cbranch_scc1 L_k4_fin
            """)
        if j < 2:
            a(f"s_add_u32 s{sT0}, s{sT0}, 2048")
    a.pads_end(4)
    a.label("L_k4_fin")
    stamp(a, 4)
    stamp_flush(a, 3, 8, sWave, 4)
    a.label("L_k4_end")
    a("s_endpgm")
    return name, V.hi, 256, 512, CSL + 4096
```

```python
from asmlib import *
from k1 import OF, HF, GF, WS_SIZE, EPS, srd
from k35 import ST, CS, CSM, tr_addr
import math, os

FL = (15 << 20) + (7 << 17)
FLA = FL
FLB = FL + 0x1000
FLX = FL + 0x2000
FL_BYTES = 0xa000
LFLAG = 163840 - 64
SLEEP = int(os.environ.get('SLEEP', '2'))

E = lambda k, d: int(os.environ.get(k, str(d)))
A_PA, A_PW = E('APA', 5), E('APW', 5)
B_NSW, B_PW, B_NSA, B_PA = 9, E('BPW', 6), 6, E('BPA', 3)
C_NSW, C_PW, C_NSA, C_PA = 13, E('CPW', 11), 6, E('CPA', 4)
A_AB, A_WB = 0, 0x10000
CSL = 0x20000
B_AB, B_WB, B_W0 = 0, 49152, 7
C_AB, C_WB, C_W0 = 0, 49152, 8
C_EARLY = {10: 2, 11: 2, 12: 1, 13: 1, 14: 2, 15: 1}
SPIN = 400000
GT = E('GT', 2)
DBG = os.environ.get('DBG', '0') == '1'


def gen_post(a):
    name = "post_kernel"
    V = Regs(1, 256, "v")
    a.raw(f".globl {name}\n.p2align 9\n.type {name},@function")
    a.label(name)
    a.pads_begin("w3")
    SW, SWS, SR = 12, 16, 20
    (sWave, sG, sJ, sRb, sCg, sRB, sCB, sT0, sT1, sI, sN, sDm, sGo, sFast, sRa, sRw, sH, sPh, sNa, sNw, sSp,
     sW2, sTr) = range(24, 47)
    PX, PWO, PWG, PWU, PWD, POUT = 48, 52, 56, 58, 60, 62
    a(f"""
    s_cmp_ge_u32 s2, 256
    s_cbranch_scc1 L_p_end
    s_load_dwordx16 s[48:63], s[0:1], 0
    s_load_dwordx2 s[8:9], s[0:1], 72
    """)
    stamp(a, 0); stamp_real(a, 5)
    lane = V.alloc(); t0 = V.alloc(); t1 = V.alloc(); l16 = V.alloc(); l4 = V.alloc()
    a(f"""
    v_lshrrev_b32 v{t0}, 6, v0
    v_and_b32 v{lane}, 63, v0
    s_and_b32 s{sG}, s2, 7
    v_readfirstlane_b32 s{sWave}, v{t0}
    s_lshr_b32 s{sJ}, s2, 3
    v_lshlrev_b32 v{l16}, 4, v{lane}
    v_lshlrev_b32 v{l4}, 2, v{lane}
    s_lshl_b32 s{sRb}, s{sG}, 2
    s_and_b32 s{sT0}, s{sJ}, 3
    s_add_u32 s{sRb}, s{sRb}, s{sT0}
    s_lshr_b32 s{sCg}, s{sJ}, 2
    s_lshl_b32 s{sRB}, s{sG}, 1
    s_and_b32 s{sT0}, s{sJ}, 1
    s_add_u32 s{sRB}, s{sRB}, s{sT0}
    s_lshr_b32 s{sCB}, s{sJ}, 1
    s_and_b32 s{sW2}, s{sWave}, 1
    s_mov_b32 s{SWS+2}, {hex(WS_SIZE)}
    s_mov_b32 s{SWS+3}, 0x00020000
    s_mov_b32 s{SW+3}, 0x00020000
    s_mov_b32 s{sTr}, 0
    s_cmp_lt_u32 s{sWave}, 4
    s_cbranch_scc1 L_p_compute
    s_cmp_lt_u32 s{sWave}, 6
    s_cbranch_scc1 L_p_awave
    """)
    mk = V.mark()

    def poll(off_sreg, nwords, vtmp, lab):
        if nwords:
            a(f"v_min_u32 v{vtmp+1}, {4*(nwords-1)}, v{l4}")
        a(f"s_mov_b32 s{sSp}, 0")
        a.label(lab)
        a(f"""
        s_sleep {SLEEP}
        buffer_load_dword v{vtmp}, v{vtmp+1}, s[{SWS}:{SWS+3}], s{off_sreg} offen sc1
        s_add_u32 s{sSp}, s{sSp}, 1
        s_cmp_ge_u32 s{sSp}, {SPIN}
        s_waitcnt vmcnt(0)
        v_cmp_eq_u32 vcc, 0, v{vtmp}
        s_cbranch_scc1 {lab}_x
        s_cbranch_vccnz {lab}
        """)
        a.label(lab + "_x")

    def stream(tag, n, P, nops, issue, pre_done=0, vt=None):
        a.label(f"L_{tag}_pre")
        issue()
        a(f"""
        s_cmp_lt_u32 s{sI}, {P}
        s_cbranch_scc1 L_{tag}_pre
        """)
        stream_loop(tag, n, P, nops, issue, vt)

    def stream_loop(tag, n, P, nops, issue, vt=None):
        def tr():
            if vt is not None:
                trace(a, vt, sTr)
                if STAMP: a(f"s_add_u32 s{sTr}, s{sTr}, 1")
        if P < n:
            a.label(f"L_{tag}_ld")
            a(f"""
            s_waitcnt vmcnt({min(63, nops*(P-1))})
            s_barrier
            """)
            tr()
            issue()
            a(f"""
            s_cmp_lt_u32 s{sI}, {n}
            s_cbranch_scc1 L_{tag}_ld
            """)
        for r in range(P - 1, -1, -1):
            a(f"""
            s_waitcnt vmcnt({min(63, nops*r)})
            s_barrier
            """)
            tr()

    def ring_adv(slot, base, ns):
        return f"""
        s_add_u32 s{sDm}, s{sDm}, {slot}
        s_add_u32 s{sI}, s{sI}, 1
        s_cmp_ge_u32 s{sDm}, {base+ns*slot}
        s_cselect_b32 s{sT0}, {ns*slot}, 0
        s_sub_u32 s{sDm}, s{sDm}, s{sT0}
        """

    wd = [V.alloc() for _ in range(3)]
    wr = V.alloc(); pd = V.alloc(2)
    a(f"""
    v_lshrrev_b32 v{t0}, 2, v{lane}
    v_and_b32 v{t1}, 3, v{lane}
    v_lshlrev_b32 v{wr}, 10, v{t0}
    v_lshl_add_u32 v{wr}, v{t1}, 4, v{wr}
    v_mul_u32_u24 v{t0}, 2752, v{t0}
    v_lshl_add_u32 v{wd[0]}, v{t1}, 4, v{t0}
    v_add_u32 v{wd[1]}, 64, v{wd[0]}
    v_add_u32 v{wd[2]}, 128, v{wd[0]}
    s_lshl_b32 s{sH}, s{sW2}, 15
    s_lshl_b32 s{sT0}, s{sCg}, 7
    s_add_u32 s{sH}, s{sH}, s{sT0}
    s_mov_b32 s{sGo}, s{sH}
    s_lshl_b32 s{sDm}, s{sW2}, 12
    s_add_u32 s{sDm}, s{sDm}, {A_WB}
    s_mov_b32 s{sI}, 0
    s_mov_b32 s{SW+2}, {hex(512*1024)}
    s_waitcnt lgkmcnt(0)
    s_mov_b32 s{SW}, s{PWO}
    s_mov_b32 s{SW+1}, s{PWO+1}
    s_mov_b32 s{SWS}, s8
    s_mov_b32 s{SWS+1}, s9
    """)

    def issue_w1024(base, ns):
        def f():
            a(f"""
            s_mov_b32 m0, s{sDm}
            s_add_u32 s{sT1}, s{sGo}, 64
            buffer_load_dwordx4 v{wr}, s[{SW}:{SW+3}], s{sGo} offen lds
            s_add_u32 m0, m0, 1024
            s_add_u32 s{sN}, s{sGo}, 16384
            buffer_load_dwordx4 v{wr}, s[{SW}:{SW+3}], s{sT1} offen lds
            s_add_u32 m0, m0, 1024
            s_add_u32 s{sT1}, s{sGo}, {16384+64}
            buffer_load_dwordx4 v{wr}, s[{SW}:{SW+3}], s{sN} offen lds
            s_add_u32 m0, m0, 1024
            s_add_u32 s{sGo}, s{sGo}, 65536
            buffer_load_dwordx4 v{wr}, s[{SW}:{SW+3}], s{sT1} offen lds
            """)
            a(ring_adv(8192, base, ns))
        return f
    def issue_wB():
        a(f"""
        s_mov_b32 m0, s{sDm}
        s_add_u32 s{sT1}, s{sGo}, {16*2752}
        buffer_load_dwordx4 v{wd[0]}, s[{SW}:{SW+3}], s{sGo} offen lds
        s_add_u32 m0, m0, 1024
        s_nop 0
        buffer_load_dwordx4 v{wd[1]}, s[{SW}:{SW+3}], s{sGo} offen lds
        s_add_u32 m0, m0, 1024
        s_nop 0
        buffer_load_dwordx4 v{wd[2]}, s[{SW}:{SW+3}], s{sGo} offen lds
        s_add_u32 m0, m0, 4096
        s_add_u32 s{sGo}, s{sGo}, {32*2752}
        buffer_load_dwordx4 v{wd[0]}, s[{SW}:{SW+3}], s{sT1} offen lds
        s_add_u32 m0, m0, 1024
        s_nop 0
        buffer_load_dwordx4 v{wd[1]}, s[{SW}:{SW+3}], s{sT1} offen lds
        s_add_u32 m0, m0, 1024
        s_nop 0
        buffer_load_dwordx4 v{wd[2]}, s[{SW}:{SW+3}], s{sT1} offen lds
        """)
        a(ring_adv(12288, B_WB, B_NSW))

    def issue_until(tag, issue, upto):
        a.label(f"L_{tag}")
        issue()
        a(f"""
        s_cmp_lt_u32 s{sI}, {upto}
        s_cbranch_scc1 L_{tag}
        """)

    iwA = issue_w1024(A_WB, 8)
    iwC = issue_w1024(C_WB, C_NSW)
    issue_until("pwA_pre", iwA, A_PW)
    a.label("L_pwA_ld")
    a(f"""
    s_waitcnt vmcnt({4*(A_PW-1)})
    s_barrier
    """)
    iwA()
    a(f"""
    s_cmp_lt_u32 s{sI}, 8
    s_cbranch_scc1 L_pwA_ld
    s_cmp_eq_u32 s{sW2}, 1
    s_cselect_b32 s{SW}, s{PWU}, s{PWG}
    s_cselect_b32 s{SW+1}, s{PWU+1}, s{PWG+1}
    s_mov_b32 s{SW+2}, {hex(512*2752)}
    s_min_u32 s{sGo}, s{sCB}, 14
    s_mul_i32 s{sGo}, s{sGo}, 192
    s_mul_i32 s{sDm}, s{sW2}, 3072
    s_add_u32 s{sDm}, s{sDm}, {B_WB+B_W0*12288}
    s_mov_b32 s{sI}, 0
    """)
    k0 = E('BEARLY', 2)
    for idx, r in enumerate(range(A_PW - 1, -1, -1)):
        if idx == k0:
            issue_until("pwB_e", issue_wB, 2)
        a(f"""
        s_waitcnt vmcnt({4*r + (12 if idx >= k0 else 0)})
        s_barrier
        """)
    a(f"""
    s_barrier
    s_barrier
    s_cmp_eq_u32 s{sCB}, 15
    s_cbranch_scc1 L_p_wC
    """)
    issue_until("pwB_pre", issue_wB, B_PW)
    a.label("L_pwB_ld")
    a(f"""
    s_waitcnt vmcnt({6*(B_PW-1)})
    s_barrier
    """)
    issue_wB()
    a(f"""
    s_cmp_lt_u32 s{sI}, 16
    s_cbranch_scc1 L_pwB_ld
    """)
    a.label("L_p_wC")
    a(f"""
    s_mov_b32 s{SW}, s{PWD}
    s_mov_b32 s{SW+1}, s{PWD+1}
    s_mov_b32 s{SW+2}, {hex(1376*1024)}
    s_lshl_b32 s{sDm}, s{sW2}, 12
    s_add_u32 s{sDm}, s{sDm}, {C_WB+C_W0*8192}
    s_mov_b32 s{sI}, 0
    s_lshl_b32 s{sGo}, s{sCg}, 7
    s_add_u32 s{sGo}, s{sGo}, {21*65536}
    s_mov_b32 s{sNa}, 0
    s_cmp_eq_u32 s{sCB}, 15
    s_cbranch_scc1 L_p_wC0
    """)
    nC = 0
    for r in range(B_PW - 1, -1, -1):
        bi = 15 - r
        a(f"""
        s_waitcnt vmcnt({6*r + 4*nC})
        s_barrier
        """)
        avail = sum(n for b, n in C_EARLY.items() if b <= bi) - nC
        avail = min(avail, C_PW - nC, 2)
        if avail > 0:
            nC += avail
            a(f"""
            s_mov_b32 s{sNw}, {nC}
            s_getpc_b64 s[4:5]
            s_add_u32 s4, s4, 12
            s_addc_u32 s5, s5, 0
            s_branch L_p_wCi
            """, nopad=True)
    a("s_barrier")
    a(f"s_branch L_p_wC1")
    a.label("L_p_wC0")
    a("s_waitcnt vmcnt(0)")
    a.label("L_p_wC1")
    a(f"""
    s_mov_b32 s{sNw}, {C_PW}
    s_mov_b32 s{sNa}, 1
    s_cmp_ge_u32 s{sI}, {C_PW}
    s_cbranch_scc1 L_pwC_ld
    """)
    a.label("L_p_wCi")
    iwC()
    a(f"""
    s_cmp_eq_u32 s{sI}, 1
    s_cselect_b32 s{sGo}, s{sH}, s{sGo}
    s_cmp_lt_u32 s{sI}, s{sNw}
    s_cbranch_scc1 L_p_wCi
    s_cmp_eq_u32 s{sNa}, 1
    s_cbranch_scc1 L_pwC_ld
    s_setpc_b64 s[4:5]
    """)
    stream_loop("pwC", 22, C_PW, 4, iwC)
    a("s_endpgm")

    V.release(mk)
    a.label("L_p_awave")
    pv = V.alloc(2); vt = V.alloc(); a1 = V.alloc()
    trace_init(a, vt)
    a(f"""
    s_lshl_b32 s{sH}, s{sRb}, 1
    s_add_u32 s{sH}, s{sH}, s{sW2}
    s_lshl_b32 s{sGo}, s{sH}, 15
    s_add_u32 s{sGo}, s{sGo}, {hex(OF)}
    s_lshl_b32 s{sDm}, s{sW2}, 12
    s_add_u32 s{sDm}, s{sDm}, {A_AB}
    s_mov_b32 s{sI}, 0
    v_add_u32 v{a1}, {32768-2048}, v{l16}
    s_waitcnt lgkmcnt(0)
    s_mov_b32 s{SWS}, s8
    s_mov_b32 s{SWS+1}, s9
    """)

    def issue_a4(base, ns, fl, n=4):
        def f():
            a(f"s_mov_b32 m0, s{sDm}")
            a("s_nop 0")
            for k in range(n):
                a(f"buffer_load_dwordx4 v{l16}, s[{SWS}:{SWS+3}], s{sGo} offen offset:{k*1024} {fl} lds")
            a(f"s_add_u32 s{sGo}, s{sGo}, 4096")
            a(ring_adv(8192, base, ns))
        return f
    stream("paA", 8, A_PA, 4, issue_a4(A_AB, 8, ""), vt=vt)
    a(f"""
    s_barrier
    s_barrier
    s_cmp_eq_u32 s{sCB}, 15
    s_cbranch_scc1 L_p_aC
    s_lshl_b32 s{sT0}, s{sRB}, 2
    s_lshl_b32 s{sT1}, s{sW2}, 1
    s_add_u32 s{sT0}, s{sT0}, s{sT1}
    s_lshl_b32 s{sGo}, s{sT0}, 15
    s_add_u32 s{sGo}, s{sGo}, {hex(HF)}
    s_lshl_b32 s{sN}, s{sT0}, 6
    s_add_u32 s{sN}, s{sN}, {hex(FLA)}
    s_lshl_b32 s{sDm}, s{sW2}, 12
    s_add_u32 s{sDm}, s{sDm}, {B_AB}
    s_mov_b32 s{sI}, 0
    """)
    poll(sN, 32, pv, "L_p_pollaB")
    a(f"""
    s_lshl_b32 s{sT0}, s{sW2}, 2
    s_add_u32 s{sT0}, s{sT0}, {LFLAG}
    v_mov_b32 v{pv}, s{sT0}
    ds_write_b32 v{pv}, v{pv}
    """)

    def issue_aB():
        a(f"""
        s_mov_b32 m0, s{sDm}
        s_nop 0
        buffer_load_dwordx4 v{l16}, s[{SWS}:{SWS+3}], s{sGo} offen sc1 lds
        buffer_load_dwordx4 v{l16}, s[{SWS}:{SWS+3}], s{sGo} offen offset:1024 sc1 lds
        buffer_load_dwordx4 v{a1}, s[{SWS}:{SWS+3}], s{sGo} offen offset:2048 sc1 lds
        buffer_load_dwordx4 v{a1}, s[{SWS}:{SWS+3}], s{sGo} offen offset:3072 sc1 lds
        s_add_u32 s{sGo}, s{sGo}, 2048
        """)
        a(ring_adv(8192, B_AB, B_NSA))
    stream("paB", 16, B_PA, 4, issue_aB, vt=vt)
    a("s_barrier")
    a.label("L_p_aC")
    a(f"""
    s_mul_i32 s{sRa}, s{sH}, {86*1024}
    s_add_u32 s{sRa}, s{sRa}, {hex(GF)}
    s_add_u32 s{sGo}, s{sRa}, {84*1024}
    s_lshl_b32 s{sN}, s{sH}, 6
    s_add_u32 s{sN}, s{sN}, {hex(FLB)}
    s_lshl_b32 s{sDm}, s{sW2}, 12
    s_add_u32 s{sDm}, s{sDm}, {C_AB}
    s_mov_b32 s{sI}, 0
    """)
    poll(sN, 15, pv, "L_p_pollaC")
    issue_a4(C_AB, C_NSA, "sc1", 2)()
    a(f"s_mov_b32 s{sGo}, s{sRa}")
    stream("paC", 22, C_PA, 4, issue_a4(C_AB, C_NSA, "sc1"), vt=vt)
    trace_flush(a, vt, 2, 8, sWave, 4, lane)
    a("s_endpgm")

    V.release(mk)
    a.label("L_p_compute")
    ra = V.alloc(); rw = V.alloc(); cw = V.alloc(); ca = V.alloc(); csa = V.alloc(); rm = V.alloc(); trb = V.alloc()
    cen = V.alloc(2)
    acc = [V.alloc(16, 4) for _ in range(6)]
    wf = V.alloc(24, 4)
    an = [V.alloc(4, 4) for _ in range(2)]
    z = V.alloc(16, 4)
    kc = V.alloc(4, 4)
    res = V.alloc(8, 4)
    assert an[0] == wf + 24
    f = wf
    ac = z
    a(f"""
    s_lshr_b32 s{sT1}, s{sWave}, 1
    v_and_b32 v{t0}, 31, v{lane}
    v_lshlrev_b32 v{t0}, 10, v{t0}
    v_lshrrev_b32 v{t1}, 5, v{lane}
    v_lshl_add_u32 v{rm}, v{t1}, 4, v{t0}
    s_lshl_b32 s{sH}, s{sRb}, 16
    s_lshl_b32 s{sN}, s{sW2}, 15
    s_add_u32 s{sH}, s{sH}, s{sN}
    s_lshl_b32 s{sN}, s{sCg}, 7
    s_add_u32 s{sI}, s{sH}, s{sN}
    s_lshl_b32 s{sN}, s{sT1}, 6
    s_add_u32 s{sI}, s{sI}, s{sN}
    v_add_u32 v{rm}, s{sI}, v{rm}
    s_lshl_b32 s{sN}, s{sCg}, 12
    s_add_u32 s{sH}, s{sH}, s{sN}
    s_lshl_b32 s{sN}, s{sT1}, 11
    s_add_u32 s{sH}, s{sH}, s{sN}
    s_add_u32 s{sH}, s{sH}, {hex(HF)}
    v_min_u32 v{csa}, {47*16}, v{l16}
    v_cmp_lt_u32 vcc, {23*16}, v{csa}
    v_mov_b32 v{ra}, {CSM-384}
    s_mul_i32 s{sN}, s{sCB}, 384
    v_cndmask_b32 v{ra}, 0, v{ra}, vcc
    s_add_u32 s{sN}, s{sN}, {hex(CS)}
    v_add_u32 v{csa}, v{csa}, v{ra}
    s_lshl_b32 s{sRa}, s{sWave}, 10
    s_add_u32 s{sRa}, s{sRa}, {CSL}
    s_mov_b32 m0, s{sRa}
    s_mov_b32 s{SR+2}, {hex(2048*1024)}
    s_mov_b32 s{SR+3}, 0x00020000
    s_getreg_b32 s{sT0}, hwreg(HW_REG_XCC_ID)
    s_and_b32 s{sT0}, s{sT0}, 15
    s_add_u32 s{sT0}, s{sT0}, 1
    v_mov_b32 v{cen}, s{sT0}
    s_lshl_b32 s{sFast}, s{sG}, 12
    s_add_u32 s{sFast}, s{sFast}, {hex(FLX)}
    s_lshl_b32 s{sT0}, s{sJ}, 7
    v_mov_b32 v{cen+1}, s{sT0}
    v_and_b32 v{ca}, 3, v{lane}
    v_lshlrev_b32 v{ca}, 7, v{ca}
    v_and_b32 v{cw}, 4, v{lane}
    v_lshl_add_u32 v{ca}, v{cw}, 10, v{ca}
    s_lshl_b32 s{sT0}, s{sG}, 9
    s_add_u32 s{sT0}, s{sT0}, {hex(FLA)}
    s_waitcnt lgkmcnt(0)
    s_mov_b32 s{SWS}, s8
    s_mov_b32 s{SWS+1}, s9
    s_mov_b32 s{SR}, s{PX}
    s_mov_b32 s{SR+1}, s{PX+1}
    buffer_load_dwordx4 v{csa}, s[{SWS}:{SWS+3}], s{sN} offen lds
    buffer_load_dwordx4 {v(res,4)}, v{rm}, s[{SR}:{SR+3}], 0 offen
    buffer_load_dwordx4 {v(res+4,4)}, v{rm}, s[{SR}:{SR+3}], 0 offen offset:32
    s_cmp_lg_u32 s{sWave}, 0
    s_cbranch_scc1 L_p_nocen
    s_mov_b64 exec, 1
    buffer_store_dword v{cen}, v{cen+1}, s[{SWS}:{SWS+3}], s{sFast} offen sc0 sc1
    s_mov_b64 exec, 0xff
    buffer_load_dword v{kc}, v{ca}, s[{SWS}:{SWS+3}], s{sT0} offen sc1
    v_mov_b32 v{cw}, 0
    v_add_u32 v{ca}, {LFLAG}, v{l4}
    ds_write_b32 v{ca}, v{cw}
    s_mov_b64 exec, -1
    s_waitcnt vmcnt(4)
    s_branch L_p_cend
    """)
    a.label("L_p_nocen")
    a("s_waitcnt vmcnt(2)")
    a.label("L_p_cend")
    a(f"""
    v_and_b32 v{csa}, 32, v{lane}
    v_add_u32 v{csa}, s{sRa}, v{csa}
    """)
    tr_addr(a, trb, lane, t0, t1)
    a(f"""
    s_lshl_b32 s{sN}, s{sW2}, 12
    s_add_u32 s{sN}, s{sN}, {A_AB}
    v_add_u32 v{ra}, s{sN}, v{l16}
    s_lshl_b32 s{sN}, s{sT1}, 10
    s_add_u32 s{sN}, s{sN}, {A_WB}
    v_add_u32 v{rw}, s{sN}, v{trb}
    s_mov_b32 s{sPh}, 0
    s_mov_b32 s{sNa}, 0x10000
    s_mov_b32 s{sNw}, 0x10000
    s_mov_b32 s{sN}, 7
    v_and_b32 v{cen+1}, 31, v{lane}
    v_lshlrev_b32 v{cen+1}, 7, v{cen+1}
    """)
    if not DBG: stamp(a, 1)
    if STAMP: a("s_waitcnt lgkmcnt(0)")
    for j in range(6):
        for q in range(4):
            a(f"ds_read_b128 {v(acc[j]+4*q,4)}, v{csa} offset:{j*128+(q>>1)*64+(q&1)*16}")

    def rd(k):
        a(f"""
        ds_read_b128 {v(f+8*k,4)}, v{ca} offset:{k*1024}
        ds_read_b64_tr_b16 {v(f+8*k+4,2)}, v{cw} offset:{k*2048}
        ds_read_b64_tr_b16 {v(f+8*k+6,2)}, v{cw} offset:{k*2048+256}
        """)

    def mf(k):
        a(f"v_mfma_f32_32x32x16_bf16 {v(ac,16)}, {v(f+8*k+4,4)}, {v(f+8*k,4)}, {v(ac,16)}")

    adv_a = f"""
    s_add_u32 s{sRa}, s{sRa}, 8192
    s_cmp_ge_u32 s{sRa}, s{sNa}
    s_cselect_b32 s{sRa}, 0, s{sRa}
    """
    adv_w = f"""
    s_add_u32 s{sRw}, s{sRw}, 8192
    s_cmp_ge_u32 s{sRw}, s{sNw}
    s_cselect_b32 s{sRw}, 0, s{sRw}
    """
    adv_v = f"""
    v_add_u32 v{ca}, s{sRa}, v{ra}
    v_add_u32 v{cw}, s{sRw}, v{rw}
    """
    a.label("L_p_gemm")
    for r in range(16):
        a(f"v_mov_b32 v{ac+r}, 0")
    a(f"""
    s_mul_i32 s{sRw}, s{sPh}, {C_W0*8192}
    v_mov_b32 v{ca}, v{ra}
    v_add_u32 v{cw}, s{sRw}, v{rw}
    s_mov_b32 s{sRa}, 0
    s_mov_b32 s{sI}, 0
    s_waitcnt lgkmcnt(0)
    s_barrier
    """)
    rd(0); rd(1)
    a(f"""
    s_cmp_eq_u32 s{sPh}, 0
    s_cbranch_scc1 L_p_g0
    """)
    a(adv_a); a(adv_w); a(adv_v)
    a("s_barrier")
    for k in range(2):
        a("s_waitcnt lgkmcnt(3)")
        mf(k)
        rd(k)
    a("s_branch L_p_g1")
    a.label("L_p_g0")
    a(f"buffer_load_dword v{cen}, v{cen+1}, s[{SWS}:{SWS+3}], s{sFast} offen sc0 sc1")
    a.label("L_p_g1")
    rd(2); rd(3)
    a(adv_a); a(adv_w); a(adv_v)
    a.label("L_p_gloop")
    a("s_barrier")
    for k in range(4):
        a("s_waitcnt lgkmcnt(9)")
        mf(k)
        rd(k)
        if k == 0: a(adv_a)
        if k == 1: a(adv_w)
        if k == 2:
            a(f"""
            s_add_u32 s{sI}, s{sI}, 1
            s_cmp_lt_u32 s{sI}, s{sN}
            """)
    a(adv_v)
    a("s_cbranch_scc1 L_p_gloop")
    a("s_waitcnt vmcnt(0)")
    for k in range(4):
        a(f"s_waitcnt lgkmcnt({9-3*k})")
        mf(k)
    a(f"""
    s_cmp_eq_u32 s{sPh}, 0
    s_cbranch_scc0 L_p_nb
    s_barrier
    """)
    a.label("L_p_nb")
    u = f
    for r in range(8):
        a(f"v_lshlrev_b32 v{u+2*r}, 16, v{res+r}")
        a(f"v_and_b32 v{u+2*r+1}, 0xffff0000, v{res+r}")
    for r in range(0, 16, 2):
        a(f"v_pk_add_f32 {v(ac+r,2)}, {v(ac+r,2)}, {v(u+r,2)}")
    for r in range(8):
        a(f"v_cvt_pk_bf16_f32 v{res+r}, v{ac+2*r}, v{ac+2*r+1}")
    a(f"s_cbranch_scc0 L_p_final")
    stamp(a, 1 if DBG else 2)
    sm = f + 16
    a(f"""
    s_mov_b32 s{sT1}, 0x3f803f80
    v_mov_b32 v{sm}, 0
    v_mov_b32 v{sm+1}, 0
    v_cmp_eq_u32 vcc, 0, v{cen}
    s_cbranch_vccz L_p_cen
    """)
    poll(sFast, 0, cen, "L_p_pollx")
    a.label("L_p_cen")
    if DBG: stamp(a, 2)
    a(f"""
    v_readfirstlane_b32 s{sT0}, v{cen}
    s_nop 1
    v_cmp_ne_u32 vcc, s{sT0}, v{cen}
    s_cmp_eq_u64 vcc, 0
    s_cselect_b32 s{sFast}, {0 if os.environ.get('SLOW', '0') == '1' else 1}, 0
    s_cmp_eq_u32 s{sFast}, 1
    s_cbranch_scc0 L_p_hs
    buffer_store_dwordx4 {v(res,4)}, v{l16}, s[{SWS}:{SWS+3}], s{sH} offen
    buffer_store_dwordx4 {v(res+4,4)}, v{l16}, s[{SWS}:{SWS+3}], s{sH} offen offset:1024
    s_branch L_p_hd
    """)
    a.label("L_p_hs")
    a(f"""
    buffer_store_dwordx4 {v(res,4)}, v{l16}, s[{SWS}:{SWS+3}], s{sH} offen sc1
    buffer_store_dwordx4 {v(res+4,4)}, v{l16}, s[{SWS}:{SWS+3}], s{sH} offen offset:1024 sc1
    """)
    a.label("L_p_hd")
    for r in range(8):
        a(f"v_dot2_f32_bf16 v{sm}, v{res+r}, s{sT1}, v{sm}")
        a(f"v_dot2_f32_bf16 v{sm+1}, v{res+r}, v{res+r}, v{sm+1}")
    a(f"""
    s_lshl_b32 s{sT0}, s{sRb}, 1
    s_add_u32 s{sT0}, s{sT0}, s{sW2}
    s_lshl_b32 s{sT0}, s{sT0}, 3
    s_add_u32 s{sT0}, s{sT0}, s{sCg}
    s_lshr_b32 s{sT1}, s{sWave}, 1
    s_lshl_b32 s{sN}, s{sT0}, 1
    s_add_u32 s{sN}, s{sN}, s{sT1}
    s_lshl_b32 s{sN}, s{sN}, 2
    s_add_u32 s{sN}, s{sN}, {hex(FLA)}
    s_lshl_b32 s{sT0}, s{sT0}, 9
    s_lshl_b32 s{sT1}, s{sT1}, 3
    s_add_u32 s{sT0}, s{sT0}, s{sT1}
    s_add_u32 s{sT0}, s{sT0}, {hex(ST)}
    v_and_b32 v{t1}, 0x1ff, v{l16}
    v_mov_b32 v{sm+2}, v{sm}
    v_mov_b32 v{sm+3}, v{sm+1}
    s_nop 0
    v_permlane32_swap_b32 v{sm}, v{sm+2}
    v_permlane32_swap_b32 v{sm+1}, v{sm+3}
    s_nop 0
    v_add_f32 v{sm}, v{sm}, v{sm+2}
    v_add_f32 v{sm+1}, v{sm+1}, v{sm+3}
    v_mov_b32 v{t0}, 0
    v_mov_b32 v{sm+4}, 1
    """)

    def signal(pre_fast, pre_slow, soff, lab):
        a(f"""
        s_cmp_eq_u32 s{sFast}, 1
        s_cbranch_scc0 {lab}_s
        {pre_fast}
        s_waitcnt vmcnt(0)
        s_mov_b64 exec, 1
        buffer_store_dword v{sm+4}, v{t0}, s[{SWS}:{SWS+3}], s{soff} offen
        s_branch {lab}_d
        """)
        a.label(lab + "_s")
        a(f"""
        {pre_slow}
        s_waitcnt vmcnt(0)
        s_mov_b64 exec, 1
        buffer_store_dword v{sm+4}, v{t0}, s[{SWS}:{SWS+3}], s{soff} offen sc0 sc1
        """)
        a.label(lab + "_d")
        a("s_mov_b64 exec, -1")
    signal(f"buffer_store_dwordx2 {v(sm,2)}, v{t1}, s[{SWS}:{SWS+3}], s{sT0} offen",
           f"buffer_store_dwordx2 {v(sm,2)}, v{t1}, s[{SWS}:{SWS+3}], s{sT0} offen sc1", sN, "L_p_sigA")
    if DBG: stamp(a, 3); a("s_waitcnt lgkmcnt(0)")
    a(f"""
    s_barrier
    s_cmp_eq_u32 s{sCB}, 15
    s_cbranch_scc1 L_p_toC
    """)
    stt = z
    a(f"""
    s_lshl_b32 s{sT0}, s{sRB}, 2
    s_add_u32 s{sT0}, s{sT0}, s{sWave}
    s_lshl_b32 s{sN}, s{sT0}, 6
    s_add_u32 s{sN}, s{sN}, {hex(FLA)}
    s_lshl_b32 s{sDm}, s{sT0}, 12
    s_add_u32 s{sDm}, s{sDm}, {hex(ST)}
    v_lshrrev_b32 v{csa}, 5, v{lane}
    v_lshl_add_u32 v{csa}, v{csa}, 11, v{t1}
    s_mul_i32 s{sGo}, s{sT0}, 86
    s_mul_i32 s{sT1}, s{sCB}, 6
    s_add_u32 s{sGo}, s{sGo}, s{sT1}
    s_lshl_b32 s{sGo}, s{sGo}, 10
    s_add_u32 s{sGo}, s{sGo}, {hex(GF)}
    v_lshlrev_b32 v{ca}, 7, v{lane}
    v_min_u32 v{ca}, {47*128}, v{ca}
    s_lshl_b32 s{sT1}, s{sWave}, 11
    s_add_u32 s{sT1}, s{sT1}, {B_AB}
    v_add_u32 v{kc+3}, s{sT1}, v{l16}
    """)
    a(f"""
    s_lshr_b32 s{sT1}, s{sWave}, 1
    s_lshl_b32 s{sT1}, s{sT1}, 2
    s_add_u32 s{sT1}, s{sT1}, {LFLAG}
    v_mov_b32 v{cen+1}, s{sT1}
    """)
    a.label("L_p_lp")
    a(f"""
    ds_read_b32 v{cen}, v{cen+1}
    s_waitcnt lgkmcnt(0)
    v_cmp_eq_u32 vcc, 0, v{cen}
    s_cbranch_vccnz L_p_lp
    """)
    if DBG: stamp(a, 4)
    for i in range(4):
        a(f"buffer_load_dwordx4 {v(stt+4*i,4)}, v{csa}, s[{SWS}:{SWS+3}], s{sDm} offen offset:{i*512} sc1")
    a(f"""
    {f'buffer_load_dword v{cen}, v{ca}, s[{SWS}:{SWS+3}], s{sGo} offen' if GT == 1 else f'v_mov_b32 v{cen+1}, v{ca}'}
    s_lshl_b32 s{sN}, s{sT0}, 6
    s_lshl_b32 s{sT1}, s{sCB}, 2
    s_add_u32 s{sN}, s{sN}, s{sT1}
    s_add_u32 s{sN}, s{sN}, {hex(FLB)}
    v_mov_b32 v{ca}, v{kc+3}
    v_add_u32 v{cw}, {B_W0*12288}, v{trb}
    s_mov_b32 s{sRa}, 0
    s_mov_b32 s{sRw}, {B_W0*12288}
    s_mov_b32 s{sI}, 0
    s_waitcnt vmcnt({1 if GT == 1 else 0})
    """)
    for i in range(0, 8, 2):
        a(f"v_pk_add_f32 {v(stt+i,2)}, {v(stt+i,2)}, {v(stt+8+i,2)}")
    a(f"""
    v_pk_add_f32 {v(stt,2)}, {v(stt,2)}, {v(stt+4,2)}
    v_pk_add_f32 {v(stt+2,2)}, {v(stt+2,2)}, {v(stt+6,2)}
    s_nop 0
    v_pk_add_f32 {v(stt,2)}, {v(stt,2)}, {v(stt+2,2)}
    s_nop 0
    v_mov_b32 v{stt+2}, v{stt}
    v_mov_b32 v{stt+3}, v{stt+1}
    s_nop 0
    v_permlane32_swap_b32 v{stt}, v{stt+2}
    v_permlane32_swap_b32 v{stt+1}, v{stt+3}
    s_nop 0
    v_add_f32 v{stt}, v{stt}, v{stt+2}
    v_add_f32 v{stt+1}, v{stt+1}, v{stt+3}
    v_mul_f32 v{stt+4}, {hexf(-1.0/512)}, v{stt}
    v_mul_f32 v{stt+1}, {hexf(1.0/512)}, v{stt+1}
    s_barrier
    """)

    def rd_a(ks2, dst):
        a(f"ds_read_b128 {v(dst,4)}, v{ca} offset:{ks2*1024}")

    def rd_w(ks2, j):
        for jj in range(2):
            a(f"ds_read_b64_tr_b16 {v(wf+4*j+2*jj,2)}, v{cw} offset:{B_WB+ks2*6144+j*1024+jj*256}")

    def kstep(cur, nxt_ks2, tail=None, reads=True):
        for j in range(6):
            if j % 2 == 0:
                a(f"s_waitcnt lgkmcnt({(8 if j == 0 else 9) if reads else 8-2*j})")
            a(f"v_mfma_f32_32x32x16_bf16 {v(acc[j],16)}, {v(wf+4*j,4)}, {v(an[cur],4)}, {v(acc[j],16)}")
            if reads:
                if j == 0:
                    rd_a(nxt_ks2, an[1 - cur])
                rd_w(nxt_ks2, j)
            if tail and j in tail:
                a(tail[j])

    if not DBG: stamp(a, 3)
    if STAMP: a("s_waitcnt lgkmcnt(0)")
    rd_a(0, an[0])
    for j in range(6):
        rd_w(0, j)
    for r in range(0, 96, 2):
        a(f"v_pk_mul_f32 {v(acc[0]+r,2)}, {v(acc[0]+r,2)}, {v(stt+4,2)} op_sel_hi:[1,0]")
    c0 = -2.0 * math.sqrt(2.0 / math.pi) * math.log2(math.e)
    c1 = c0 * 0.044715
    a(f"""
    v_fma_f32 v{t1}, -v{stt+4}, v{stt+4}, v{stt+1}
    v_max_f32 v{t1}, 0, v{t1}
    v_add_f32 v{kc+2}, {hexf(EPS)}, v{t1}
    v_rsq_f32 v{csa}, v{kc+2}
    s_nop 0
    v_mul_f32 v{t1}, v{csa}, v{csa}
    v_mul_f32 v{kc+1}, {hexf(c0)}, v{csa}
    v_mul_f32 v{t1}, v{t1}, v{csa}
    v_mul_f32 v{kc}, {hexf(c1)}, v{t1}
    """)
    a.label("L_p_bloop")
    kstep(0, 1, {0: f"""
    s_add_u32 s{sRw}, s{sRw}, 12288
    s_add_u32 s{sRa}, s{sRa}, 8192
    """, 1: f"""
    s_cmp_ge_u32 s{sRw}, {B_NSW*12288}
    s_cselect_b32 s{sRw}, 0, s{sRw}
    """, 2: f"""
    s_cmp_ge_u32 s{sRa}, {B_NSA*8192}
    s_cselect_b32 s{sRa}, 0, s{sRa}
    """, 3: f"""
    v_add_u32 v{ca}, s{sRa}, v{kc+3}
    s_add_u32 s{sI}, s{sI}, 1
    s_cmp_eq_u32 s{sI}, 16
    """, 5: f"""
    v_add_u32 v{cw}, s{sRw}, v{trb}
    s_cbranch_scc1 L_p_blast
    s_barrier
    """})
    kstep(1, 0, {2: f"s_cmp_lg_u32 s{sI}, {E('GTI', 3)}"} if GT == 2 else None)
    if GT == 2:
        a(f"""
        s_cbranch_scc1 L_p_bloop
        buffer_load_dword v{cen}, v{cen+1}, s[{SWS}:{SWS+3}], s{sGo} offen
        """)
    a("s_branch L_p_bloop")
    a.label("L_p_blast")
    kstep(1, 0, {4: "s_barrier"}, reads=False)
    if not DBG: stamp(a, 4)
    a("s_nop 7")
    for j in range(3):
        o = wf + 8 * j
        g = acc[j]; uu = acc[3 + j]
        for r in range(0, 16, 2):
            a(f"v_pk_mul_f32 {v(z+r,2)}, {v(g+r,2)}, {v(g+r,2)}")
        for r in range(0, 16, 2):
            a(f"v_pk_fma_f32 {v(z+r,2)}, {v(z+r,2)}, {v(kc,2)}, {v(kc,2)} op_sel:[0,0,1] op_sel_hi:[1,0,1]")
        for r in range(0, 16, 2):
            a(f"v_pk_mul_f32 {v(z+r,2)}, {v(z+r,2)}, {v(g+r,2)}")
        for r in range(16):
            a(f"v_exp_f32 v{z+r}, v{z+r}")
        for r in range(0, 16, 2):
            a(f"v_pk_mul_f32 {v(g+r,2)}, {v(g+r,2)}, {v(uu+r,2)}")
        for r in range(0, 16, 2):
            a(f"v_pk_fma_f32 {v(z+r,2)}, {v(z+r,2)}, {v(kc+2,2)}, {v(kc+2,2)} op_sel_hi:[1,0,0]")
        for r in range(16):
            a(f"v_rcp_f32 v{z+r}, v{z+r}")
        a(f"s_cmp_eq_u32 s{sFast}, 1")
        for r in range(0, 16, 2):
            a(f"v_pk_mul_f32 {v(g+r,2)}, {v(g+r,2)}, {v(z+r,2)}")
        for r in range(8):
            a(f"v_cvt_pk_bf16_f32 v{o+r}, v{g+2*r}, v{g+2*r+1}")
        a(f"""
        s_cbranch_scc0 L_p_gs{j}
        buffer_store_dwordx4 {v(o,4)}, v{l16}, s[{SWS}:{SWS+3}], s{sGo} offen
        buffer_store_dwordx4 {v(o+4,4)}, v{l16}, s[{SWS}:{SWS+3}], s{sGo} offen offset:1024
        s_branch L_p_gd{j}
        """)
        a.label(f"L_p_gs{j}")
        a(f"""
        buffer_store_dwordx4 {v(o,4)}, v{l16}, s[{SWS}:{SWS+3}], s{sGo} offen sc1
        buffer_store_dwordx4 {v(o+4,4)}, v{l16}, s[{SWS}:{SWS+3}], s{sGo} offen offset:1024 sc1
        """)
        a.label(f"L_p_gd{j}")
        if j == 0:
            a(f"""
            s_cmp_eq_u32 s{sCB}, 14
            s_cbranch_scc1 L_p_bfin
            """)
        if j < 2:
            a(f"s_add_u32 s{sGo}, s{sGo}, 2048")
    a.label("L_p_bfin")
    sm = an[0] - 4
    a(f"v_mov_b32 v{sm+4}, 1")
    signal("", "", sN, "L_p_sigB")
    a.label("L_p_toC")
    a(f"""
    v_subrev_u32 v{rw}, {A_WB-C_WB}, v{rw}
    s_mov_b32 s{sPh}, 1
    s_mov_b32 s{sNa}, {C_NSA*8192}
    s_mov_b32 s{sNw}, {C_NSW*8192}
    s_mov_b32 s{sN}, 20
    s_mov_b32 s{SR}, s{POUT}
    s_mov_b32 s{SR+1}, s{POUT+1}
    s_branch L_p_gemm
    """)
    a.label("L_p_final")
    a(f"""
    buffer_store_dwordx4 {v(res,4)}, v{rm}, s[{SR}:{SR+3}], 0 offen
    buffer_store_dwordx4 {v(res+4,4)}, v{rm}, s[{SR}:{SR+3}], 0 offen offset:32
    """)
    a.pads_end(4)
    stamp_flush(a, 2, 8, sWave, 4)
    a.label("L_p_end")
    a("s_endpgm")
    return name, V.hi, 256, 512, 163840
```

```python
from asmlib import *
import math, os

QF = 0
KF = 2 << 20
VF = 4 << 20
OF = 6 << 20
HF = 8 << 20
GF = 10 << 20
WS_SIZE = 16 << 20

EPS = 1e-5
QSCALE = 0.25 * math.log2(math.e)


def srd(a, dst, ptr, nbytes):
    a(f"""
    s_mov_b32 s{dst}, s{ptr}
    s_mov_b32 s{dst+1}, s{ptr+1}
    s_mov_b32 s{dst+2}, {hex(nbytes)}
    s_mov_b32 s{dst+3}, 0x00020000
    """)


def half_sum(a, r, t):
    a(f"""
    v_mov_b32 v{t}, v{r}
    s_nop 1
    v_permlane32_swap_b32 v{r}, v{t}
    s_nop 1
    v_add_f32 v{r}, v{r}, v{t}
    """)


def gen_k1(a):
    name = "qkv_kernel"
    V = Regs(1, 256, "v")
    a.raw(f".globl {name}\n.p2align 12\n.type {name},@function")
    a.label(name)
    SX, SW, SWS = 12, 16, 20
    sWave, sRb, sCg, sTt, sCh = 24, 25, 26, 27, 28
    sXo, sWo, sDm, sC, sM, sOne, sA, sB, sT0, sT1 = 29, 30, 31, 32, 33, 34, 35, 36, 37, 38
    sWb, sIs, sW4 = 40, 42, 44
    WR = 0x10000
    WSL = 12288
    NS = 8
    NCH = 16
    P = int(os.environ.get("P1", "6"))
    PRE = int(os.environ.get("PRE1", "2"))
    NT = os.environ.get("K1NT", "")
    STF = os.environ.get("ST1", "")
    a(f"""
    s_cmp_ge_u32 s2, 256
    s_cbranch_scc1 L_k1_end
    s_load_dwordx4 s[4:7], s[0:1], 0
    s_load_dwordx2 s[8:9], s[0:1], 72
    """)
    stamp(a, 0); stamp_real(a, 5)
    lane = V.alloc(); t0 = V.alloc(); t1 = V.alloc(); t2 = V.alloc()
    xd = V.alloc(); wd0 = V.alloc(); xw = V.alloc(); vt = V.alloc()
    xa = [V.alloc() for _ in range(4)]
    wa = [V.alloc() for _ in range(2)]
    X = V.alloc(32, 4)
    a(f"""
    v_lshrrev_b32 v{t0}, 6, v0
    v_and_b32 v{lane}, 63, v0
    s_and_b32 s{sT0}, s2, 7
    v_readfirstlane_b32 s{sWave}, v{t0}
    s_lshr_b32 s{sT1}, s2, 3
    s_and_b32 s{sRb}, s{sT0}, 3

    s_lshl_b32 s{sRb}, s{sRb}, 3
    s_and_b32 s{sM}, s{sT1}, 7
    s_add_u32 s{sRb}, s{sRb}, s{sM}
    s_lshr_b32 s{sCg}, s{sT0}, 2
    s_lshl_b32 s{sCg}, s{sCg}, 2
    s_lshr_b32 s{sT1}, s{sT1}, 3
    s_add_u32 s{sCg}, s{sCg}, s{sT1}
    s_lshl_b32 s{sT1}, s{sT1}, 1
    s_xor_b32 s{sM}, s{sM}, s{sT1}
    v_lshrrev_b32 v{t0}, 3, v{lane}
    v_and_b32 v{t1}, 7, v{lane}
    v_lshlrev_b32 v{xd}, 10, v{t0}
    v_lshl_add_u32 v{xd}, v{t1}, 4, v{xd}
    s_lshl_b32 s{sXo}, s{sRb}, 16
    s_lshl_b32 s{sT0}, s{sWave}, 13
    s_add_u32 s{sXo}, s{sXo}, s{sT0}
    s_lshl_b32 s{sT0}, s{sM}, 7
    s_add_u32 s{sXo}, s{sXo}, s{sT0}
    s_and_b32 s{sW4}, s{sWave}, 3
    s_and_b32 s{sTt}, s{sWave}, 1
    s_bfe_u32 s{sCh}, s{sWave}, 0x10001
    s_lshl_b32 s{sWb}, s{sCg}, 7
    s_lshl_b32 s{sT0}, s{sTt}, 6
    s_add_u32 s{sWb}, s{sWb}, s{sT0}
    s_mul_i32 s{sT0}, s{sCh}, {16*3072}
    s_add_u32 s{sWb}, s{sWb}, s{sT0}
    s_lshl_b32 s{sM}, s{sM}, 1
    s_mul_i32 s{sDm}, s{sW4}, 3072
    s_add_u32 s{sDm}, s{sDm}, {WR}
    v_lshrrev_b32 v{t2}, 2, v{lane}
    v_mul_u32_u24 v{t2}, 3072, v{t2}
    v_and_b32 v{wd0}, 3, v{lane}
    v_lshl_add_u32 v{wd0}, v{wd0}, 4, v{t2}
    s_mov_b32 s{sIs}, 0
    s_mov_b32 s{SX+2}, {hex(2048*1024)}
    s_mov_b32 s{SX+3}, 0x00020000
    s_mov_b32 s{SW+2}, {hex(512*3072)}
    s_mov_b32 s{SW+3}, 0x00020000
    s_waitcnt lgkmcnt(0)
    s_mov_b32 s{SX}, s4
    s_mov_b32 s{SX+1}, s5
    s_mov_b32 s{SW}, s6
    s_mov_b32 s{SW+1}, s7
    """)
    stamp(a, 1)

    def dma():
        return f"""
        s_xor_b32 s{sWo}, s{sIs}, s{sM}
        s_mov_b32 m0, s{sDm}
        s_mul_i32 s{sWo}, s{sWo}, {32*3072}
        s_add_u32 s{sDm}, s{sDm}, {WSL}
        s_add_u32 s{sWo}, s{sWo}, s{sWb}
        s_add_u32 s{sIs}, s{sIs}, 1
        buffer_load_dwordx4 v{wd0}, s[{SW}:{SW+3}], s{sWo} offen {NT} lds
        buffer_load_dwordx4 v{wd0}, s[{SW}:{SW+3}], s{sWo} offen offset:1024 {NT} lds
        buffer_load_dwordx4 v{wd0}, s[{SW}:{SW+3}], s{sWo} offen offset:2048 {NT} lds
        s_cmp_eq_u32 s{sIs}, {NS}
        s_cselect_b32 s{sT0}, {NS*WSL}, 0
        s_sub_u32 s{sDm}, s{sDm}, s{sT0}
        """

    a(f"""
    s_cmp_ge_u32 s{sWave}, 8
    s_cbranch_scc1 L_k1_loader
    """)
    for i in range(8):
        if i:
            a(f"s_xor_b32 s{sT1}, s{sXo}, {i*128}")
        a(f"buffer_load_dwordx4 {v(X+4*i,4)}, v{xd}, s[{SX}:{SX+3}], s{sT1 if i else sXo} offen {NT}")
    srd(a, SWS, 8, WS_SIZE)
    acc = [V.alloc(16, 4) for _ in range(3)]
    wf = [V.alloc(12, 4) for _ in range(2)]
    xf = [V.alloc(4, 4) for _ in range(2)]
    st = V.alloc(4, 2)
    rs = V.alloc(2, 2); nmr = V.alloc(2, 2)
    un = V.alloc(8, 2)
    l16 = V.alloc(); vv = V.alloc()
    a(f"""
    v_xor_b32 v{t2}, v{t0}, v{t1}
    v_lshlrev_b32 v{t2}, 4, v{t2}
    v_lshl_add_u32 v{t2}, v{t1}, 9, v{t2}
    s_lshr_b32 s{sT0}, s{sWave}, 2
    s_lshl_b32 s{sT0}, s{sT0}, 15
    s_lshl_b32 s{sT1}, s{sW4}, 7
    s_add_u32 s{sT0}, s{sT0}, s{sT1}
    v_add_u32 v{xw}, s{sT0}, v{t2}
    s_mov_b32 s{sOne}, 0x3f803f80
    v_and_b32 v{t0}, 31, v{lane}
    v_lshrrev_b32 v{t2}, 5, v{lane}
    v_xor_b32 v{t1}, v{t0}, v{t2}
    v_lshlrev_b32 v{t1}, 4, v{t1}
    v_lshl_add_u32 v{t1}, v{t2}, 9, v{t1}
    s_lshl_b32 s{sT0}, s{sTt}, 15
    v_add_u32 v{xa[0]}, s{sT0}, v{t1}
    v_xor_b32 v{xa[1]}, 32, v{xa[0]}
    v_xor_b32 v{xa[2]}, 64, v{xa[0]}
    v_xor_b32 v{xa[3]}, 96, v{xa[0]}
    s_mul_i32 s{sT0}, s{sCh}, 3072
    s_add_u32 s{sT0}, s{sT0}, {WR}
    v_lshlrev_b32 v{t0}, 9, v{t2}
    v_bfe_u32 v{t1}, v{lane}, 2, 2
    v_lshl_add_u32 v{t0}, v{t1}, 6, v{t0}
    v_bfe_u32 v{t1}, v{lane}, 4, 1
    v_lshl_add_u32 v{t0}, v{t1}, 5, v{t0}
    v_and_b32 v{t1}, 3, v{lane}
    v_lshl_add_u32 v{t0}, v{t1}, 3, v{t0}
    v_add_u32 v{wa[0]}, s{sT0}, v{t0}
    v_add_u32 v{wa[1]}, {4*WSL}, v{wa[0]}
    v_lshlrev_b32 v{l16}, 4, v{lane}
    v_bfe_u32 v{t0}, v{lane}, 4, 1
    v_lshlrev_b32 v{vv}, 16, v{t0}
    v_lshl_add_u32 v{vv}, v{t2}, 8, v{vv}
    v_and_b32 v{t0}, 3, v{lane}
    v_lshl_add_u32 v{vv}, v{t0}, 4, v{vv}
    v_bfe_u32 v{t0}, v{lane}, 2, 1
    v_lshl_add_u32 v{vv}, v{t0}, 7, v{vv}
    v_bfe_u32 v{t0}, v{lane}, 3, 1
    v_lshl_add_u32 v{vv}, v{t0}, 6, v{vv}
    """)
    for r in range(48):
        a(f"v_mov_b32 v{acc[0]+r}, 0")
    for r in range(4):
        a(f"v_mov_b32 v{st+r}, 0")
    trace_init(a, vt)
    a.warm("k1", sWave, 8)
    a.pads_begin("k1")
    B = X
    for i in range(8):
        a(f"s_waitcnt vmcnt({7-i})")
        if i == 0:
            stamp(a, 2)
        for r in range(4 * i, 4 * i + 4):
            a(f"v_dot2_f32_bf16 v{st+(r&1)*2}, v{B+r}, s{sOne}, v{st+(r&1)*2}")
            a(f"v_dot2_f32_bf16 v{st+1+(r&1)*2}, v{B+r}, v{B+r}, v{st+1+(r&1)*2}")
    a("s_nop 1")
    a(f"""
    s_nop 0
    v_add_f32 v{st}, v{st}, v{st+2}
    v_add_f32 v{st+1}, v{st+1}, v{st+3}
    s_nop 0
    v_add_f32_dpp v{st}, v{st}, v{st} quad_perm:[1,0,3,2] row_mask:0xf bank_mask:0xf
    v_add_f32_dpp v{st+1}, v{st+1}, v{st+1} quad_perm:[1,0,3,2] row_mask:0xf bank_mask:0xf
    s_nop 0
    v_add_f32_dpp v{st}, v{st}, v{st} quad_perm:[2,3,0,1] row_mask:0xf bank_mask:0xf
    v_add_f32_dpp v{st+1}, v{st+1}, v{st+1} quad_perm:[2,3,0,1] row_mask:0xf bank_mask:0xf
    s_nop 0
    v_add_f32_dpp v{st}, v{st}, v{st} row_half_mirror row_mask:0xf bank_mask:0xf
    v_add_f32_dpp v{st+1}, v{st+1}, v{st+1} row_half_mirror row_mask:0xf bank_mask:0xf
    v_mul_f32 v{st}, {hexf(1.0/512)}, v{st}
    v_mul_f32 v{st+1}, {hexf(1.0/512)}, v{st+1}
    v_fma_f32 v{st+1}, -v{st}, v{st}, v{st+1}
    v_max_f32 v{st+1}, 0, v{st+1}
    v_add_f32 v{st+1}, {hexf(EPS)}, v{st+1}
    v_rsq_f32 v{rs}, v{st+1}
    s_nop 0
    v_mul_f32 v{nmr}, v{st}, v{rs}
    v_sub_f32 v{nmr}, 0, v{nmr}
    """)
    for i in range(8):
        for r in range(4):
            a(f"v_lshlrev_b32 v{un+2*r}, 16, v{B+4*i+r}")
            a(f"v_and_b32 v{un+2*r+1}, 0xffff0000, v{B+4*i+r}")
        for r in range(4):
            a(f"v_pk_fma_f32 {v(un+2*r,2)}, {v(un+2*r,2)}, {v(rs,2)}, {v(nmr,2)} op_sel_hi:[1,0,0]")
        for r in range(4):
            a(f"v_cvt_pk_bf16_f32 v{B+4*i+r}, v{un+2*r}, v{un+2*r+1}")
        a(f"ds_write_b128 v{xw}, {v(B+4*i,4)} offset:{i*4096}")
    a(f"""
    s_mov_b32 s{sC}, 0
    s_cmp_lt_u32 s{sWave}, 4
    s_cbranch_scc1 L_k1_compute
    """)
    a("""
    s_waitcnt lgkmcnt(0)
    s_endpgm
    """)
    a.label("L_k1_loader")
    a(f"s_mov_b32 s{sC}, 0")
    trace_init(a, vt)
    a.label("L_k1_pre0")
    a(dma())
    a(f"""
    s_cmp_lt_u32 s{sIs}, {PRE}
    s_cbranch_scc1 L_k1_pre0
    s_waitcnt vmcnt({os.environ.get("K1THR", "0")})
    """)
    a.label("L_k1_pre")
    a(dma())
    a(f"""
    s_cmp_lt_u32 s{sIs}, {NS}
    s_cbranch_scc1 L_k1_pre
    """)
    for r in range(NS - P):
        a(f"""
        s_waitcnt vmcnt({3*(NS-1-r)})
        s_barrier
        """)
        trace(a, vt, sC)
        if STAMP: a(f"s_add_u32 s{sC}, s{sC}, 1")
    a.label("L_k1_ld")
    a(f"""
    s_waitcnt vmcnt({3*(P-1)})
    s_barrier
    """)
    trace(a, vt, sC)
    if STAMP: a(f"s_add_u32 s{sC}, s{sC}, 1")
    a(dma())
    a(f"""
    s_cmp_lt_u32 s{sIs}, {NCH}
    s_cbranch_scc1 L_k1_ld
    """)
    for r in range(P - 1, -1, -1):
        a(f"""
        s_waitcnt vmcnt({3*r})
        s_barrier
        """)
        trace(a, vt, sC)
        if STAMP: a(f"s_add_u32 s{sC}, s{sC}, 1")
    trace_flush(a, vt, 0, 8, sWave, 8, lane)
    a("s_endpgm")
    a.label("L_k1_compute")

    def rd_x(c, ks2):
        a(f"ds_read_b128 {v(xf[ks2],4)}, v{xa[(c&1)*2+ks2]} offset:{c*2048+ks2*1024}")

    def rd_w(c, ks2, seg):
        sl = c & 7
        for jj in range(2):
            a(f"ds_read_b64_tr_b16 {v(wf[ks2]+4*seg+2*jj,2)}, v{wa[sl>>2]} offset:{(sl&3)*WSL+ks2*6144+seg*1024+jj*256}")

    def mf(ks2, j):
        if j < 2:
            a(f"v_mfma_f32_32x32x16_bf16 {v(acc[j],16)}, {v(wf[ks2]+4*j,4)}, {v(xf[ks2],4)}, {v(acc[j],16)}")
        else:
            a(f"v_mfma_f32_32x32x16_bf16 {v(acc[j],16)}, {v(xf[ks2],4)}, {v(wf[ks2]+4*j,4)}, {v(acc[j],16)}")

    a(f"""
    s_lshl_b32 s{sT0}, s{sCg}, 2
    s_lshl_b32 s{sT1}, s{sCh}, 1
    s_add_u32 s{sT0}, s{sT0}, s{sT1}
    s_lshl_b32 s{sT0}, s{sT0}, 6
    s_lshl_b32 s{sT1}, s{sRb}, 1
    s_add_u32 s{sT0}, s{sT0}, s{sT1}
    s_add_u32 s{sT0}, s{sT0}, s{sTt}
    s_lshl_b32 s{sXo}, s{sT0}, 10
    s_mov_b32 s{sOne}, {hexf(QSCALE)}
    s_add_u32 s{sA}, s{sXo}, {hex(KF)}
    s_add_u32 s{sB}, s{sXo}, {hex(KF+65536)}
    s_add_u32 s{sT1}, s{sXo}, {hex(VF)}
    s_add_u32 s{sT0}, s{sXo}, {hex(QF+65536)}
    s_waitcnt lgkmcnt(0)
    s_barrier
    """)
    stamp(a, 3)
    if STAMP: a("s_waitcnt lgkmcnt(0)")
    for ks2 in range(2):
        for j in range(3):
            rd_w(0, ks2, j)
        rd_x(0, ks2)
    a.label("L_k1_loop")
    for c in range(8):
        if c == 7:
            a(f"""
            s_cmp_eq_u32 s{sC}, 1
            s_cbranch_scc1 L_k1_last
            """)
        a("s_barrier")
        for ks2 in range(2):
            a("s_waitcnt lgkmcnt(7)")
            for j in range(3):
                mf(ks2, j)
                rd_w(c + 1, ks2, j)
            rd_x(c + 1, ks2)
    for i in range(4):
        a(f"v_add_u32 v{xa[i]}, 0x4000, v{xa[i]}")
    a(f"""
    s_mov_b32 s{sC}, 1
    s_branch L_k1_loop
    """)
    a.label("L_k1_last")
    for ks2 in range(2):
        a(f"s_waitcnt lgkmcnt({7 if ks2 == 0 else 0})")
        for j in range(3):
            mf(ks2, j)
    stamp(a, 4)
    o = X
    a("s_nop 7\ns_nop 1")
    for r in range(16):
        a(f"v_mul_f32 v{acc[0]+r}, s{sOne}, v{acc[0]+r}")
    for r in range(8):
        a(f"v_cvt_pk_bf16_f32 v{o+8+r}, v{acc[1]+2*r}, v{acc[1]+2*r+1}")
    a(f"""
    buffer_store_dwordx4 {v(o+8,4)}, v{l16}, s[{SWS}:{SWS+3}], s{sA} offen {STF}
    buffer_store_dwordx4 {v(o+12,4)}, v{l16}, s[{SWS}:{SWS+3}], s{sB} offen {STF}
    """)
    for r in range(8):
        a(f"v_cvt_pk_bf16_f32 v{o+16+r}, v{acc[2]+2*r}, v{acc[2]+2*r+1}")
    a(f"""
    buffer_store_dwordx4 {v(o+16,4)}, v{vv}, s[{SWS}:{SWS+3}], s{sT1} offen {STF}
    buffer_store_dwordx4 {v(o+20,4)}, v{vv}, s[{SWS}:{SWS+3}], s{sT1} offen offset:512 {STF}
    """)
    for r in range(8):
        a(f"v_cvt_pk_bf16_f32 v{o+r}, v{acc[0]+2*r}, v{acc[0]+2*r+1}")
    assert QF == 0
    a(f"""
    buffer_store_dwordx4 {v(o,4)}, v{l16}, s[{SWS}:{SWS+3}], s{sXo} offen {STF}
    buffer_store_dwordx4 {v(o+4,4)}, v{l16}, s[{SWS}:{SWS+3}], s{sT0} offen {STF}
    """)
    a.pads_end(8)
    stamp_flush(a, 0, 8, sWave, 4)
    a.label("L_k1_end")
    a("s_endpgm")

    assert V.hi <= 168
    return name, V.hi, 256, 768, WR + NS * WSL
```

```python
from asmlib import *
import os
from k1 import QF, KF, VF, OF, HF, GF, WS_SIZE, srd
from k35 import ST
from kpost import FL, FL_BYTES
FUSED = os.environ.get('FUSED', '1') == '1'
GUROWS = int(os.environ.get('GUROWS', '256'))
from k35 import tr_addr, CS, CSM, MAP5, PFD, wd_touch

ONES = 0x20000
XCH = 0x21000
FLAG = XCH + 8 * 10 * 256
MXS = FLAG + 64
LDS_K2 = MXS


def gen_k2(a):
    name = "attn_kernel"
    V = Regs(1, 256, "v")
    a.raw(f".globl {name}\n.p2align 9\n.type {name},@function")
    a.label(name)
    a.pads_begin("w2")
    SWS = 12
    sWave, sHead, sQb, sQp, sKh, sIt, sT0, sT1, sG, sPass = 16, 17, 18, 19, 20, 21, 22, 23, 24, 25
    a(f"""
    s_cmp_ge_u32 s2, 256
    s_cbranch_scc1 L_k2_end
    s_load_dwordx2 s[8:9], s[0:1], 72
    s_load_dwordx16 s[32:47], s[0:1], 0
    """)
    stamp(a, 0); stamp_real(a, 5)
    lane = V.alloc(); t0 = V.alloc(); t1 = V.alloc(); l16 = V.alloc()
    ka = V.alloc(); va = V.alloc(); vs = V.alloc(); ka0 = V.alloc(); va0 = V.alloc(); vf0 = V.alloc()
    one = V.alloc(2, 2)
    Q = [V.alloc(4, 4) for _ in range(2)]
    M = [V.alloc(16, 4) for _ in range(2)]
    S = [V.alloc(16, 4) for _ in range(2)]
    O = [V.alloc(16, 4) for _ in range(2)]
    P = V.alloc(8, 4)
    Kf = [V.alloc(4, 4) for _ in range(2)]
    Vf = [V.alloc(8, 4) for _ in range(2)]
    a(f"""
    v_lshrrev_b32 v{t0}, 6, v0
    v_and_b32 v{lane}, 63, v0
    s_and_b32 s{sT0}, s2, 7
    v_readfirstlane_b32 s{sWave}, v{t0}
    s_lshr_b32 s{sT1}, s2, 3
    s_lshl_b32 s{sHead}, s{sT0}, 2
    s_and_b32 s{sT0}, s{sT1}, 3
    s_add_u32 s{sHead}, s{sHead}, s{sT0}
    s_lshr_b32 s{sQb}, s{sT1}, 2
    v_lshlrev_b32 v{l16}, 4, v{lane}
    s_and_b32 s{sQp}, s{sWave}, 3
    s_lshr_b32 s{sKh}, s{sWave}, 2
    """)
    a(f"""
    s_cmp_eq_u32 s{sWave}, 8
    s_cbranch_scc1 L_k2_svc
    s_cmp_ge_u32 s{sWave}, 9
    s_cbranch_scc1 L_k2_warm
    s_lshl_b32 s{sT0}, s{sHead}, 16
    s_lshl_b32 s{sIt}, s{sQb}, 13
    s_add_u32 s{sT0}, s{sT0}, s{sIt}
    s_lshl_b32 s{sIt}, s{sQp}, 11
    s_add_u32 s{sT0}, s{sT0}, s{sIt}
    s_movk_i32 s{sG}, 0x43
    s_lshl_b32 s{sT1}, s{sHead}, 16
    s_lshl_b32 s{sIt}, s{sKh}, 15
    s_add_u32 s{sT1}, s{sT1}, s{sIt}
    s_add_u32 s{sT1}, s{sT1}, {hex(KF)}
    s_waitcnt lgkmcnt(0)
    """)
    assert QF == 0 and VF == KF + (2 << 20)
    srd(a, SWS, 8, WS_SIZE)
    stamp(a, 1)
    a(f"""
    buffer_load_dwordx4 {v(Kf[0],4)}, v{l16}, s[{SWS}:{SWS+3}], s{sT1} offen
    buffer_load_dwordx4 {v(Q[0],4)}, v{l16}, s[{SWS}:{SWS+3}], s{sT0} offen
    buffer_load_dwordx4 {v(Q[1],4)}, v{l16}, s[{SWS}:{SWS+3}], s{sT0} offen offset:1024
    """)
    initzero = "\n".join([f"v_mov_b32 v{O[q]+r}, 0" for q in range(2) for r in range(16)] +
                         [f"v_mov_b32 v{P+4+r}, 0" for r in range(4)] + [f"v_mov_b32 v{Vf[1]+4+r}, 0" for r in range(4)])
    a(f"""
    v_mov_b32 v{one}, 0x3f803f80
    v_and_b32 v{t0}, {0x16 if os.environ.get("ZROW", "1") == "1" else 0}, v0
    v_cmp_eq_u32 vcc, 0, v{t0}
    v_lshlrev_b32 v{t0}, 3, v0
    s_nop 0
    v_cndmask_b32 v{one}, 0, v{one}, vcc
    v_mov_b32 v{one+1}, v{one}
    v_add_u32 v{t0}, {hex(ONES)}, v{t0}
    ds_write_b64 v{t0}, {v(one,2)}
    s_lshl_b32 s{sT0}, s{sKh}, 15
    v_add_u32 v{ka0}, s{sT0}, v{l16}
    v_and_b32 v{t0}, 15, v{lane}
    v_lshlrev_b32 v{t0}, 4, v{t0}
    v_lshrrev_b32 v{t1}, 5, v{lane}
    v_lshl_add_u32 v{t1}, v{t1}, 8, v{t0}
    s_add_u32 s{sT0}, s{sT0}, 0x10000
    v_add_u32 v{t1}, s{sT0}, v{t1}
    v_add_u32 v{t0}, {hex(ONES-1024)}, v{t0}
    v_and_b32 v{vs}, 16, v{lane}
    v_cmp_eq_u32 vcc, 0, v{vs}
    v_mov_b32 v{vs}, 0x1000
    s_mov_b32 s{sPass}, 0
    v_cndmask_b32 v{va0}, v{t0}, v{t1}, vcc
    v_cndmask_b32 v{vs}, 0, v{vs}, vcc
    v_add_u32 v{t0}, 1024, v{t0}
    v_cndmask_b32 v{vf0}, v{t0}, v{t1}, vcc
    {initzero}
    s_waitcnt vmcnt(0) lgkmcnt(0)
    """)
    a(f"""
    v_mfma_f32_32x32x16_bf16 {v(S[0],16)}, {v(Kf[0],4)}, {v(Q[0],4)}, 0
    v_mfma_f32_32x32x16_bf16 {v(S[1],16)}, {v(Kf[0],4)}, {v(Q[1],4)}, 0
    s_nop 7
    s_nop 3
    """)

    def max16(dst, src):
        a(f"v_max3_f32 v{dst}, v{src}, v{src+1}, v{src+2}")
        for i in range(3, 15, 2):
            a(f"v_max3_f32 v{dst}, v{dst}, v{src+i}, v{src+i+1}")
        a(f"v_max_f32 v{dst}, v{dst}, v{src+15}")

    def half_max(r, t):
        a(f"""
        v_mov_b32 v{t}, v{r}
        s_nop 1
        v_permlane32_swap_b32 v{r}, v{t}
        s_nop 1
        v_max_f32 v{r}, v{r}, v{t}
        """)

    mx = [V.alloc(), V.alloc()]
    max16(mx[0], S[0])
    max16(mx[1], S[1])
    half_max(mx[0], t0)
    half_max(mx[1], t1)
    a.label("L_k2_start")
    a(f"""
    v_mov_b32 v{ka}, v{ka0}
    v_mov_b32 v{va}, v{va0}
    s_barrier
    ds_read_b128 {v(Vf[0],4)}, v{vf0}
    ds_read_b128 {v(Vf[0]+4,4)}, v{vf0} offset:512
    """)
    for q in range(2):
        for r in range(16):
            a(f"v_sub_f32 v{M[q]+r}, 0, v{mx[q]}")
        if q == 0:
            a(f"""
            s_mov_b32 s{sIt}, 0
            s_nop 0
            v_mfma_f32_32x32x16_bf16 {v(S[0],16)}, {v(Kf[0],4)}, {v(Q[0],4)}, {v(M[0],16)}
            """)
    a("s_waitcnt lgkmcnt(0)")
    pr = os.environ.get("PRIO2", "")
    if pr:
        a(f"""
        s_cmp_eq_u32 s{sKh}, {pr}
        s_cbranch_scc0 L_k2_np
        s_setprio 1
        """)
        a.label("L_k2_np")
    stamp(a, 2)
    if STAMP: a("s_waitcnt lgkmcnt(0)")
    a.label("L_k2_loop")
    a.raw("@NOPAD 1")
    for u in range(8):
        t = u >> 1
        q = u & 1
        Sx = S[q]
        e = lambda i: a(f"v_exp_f32 v{Sx+i}, v{Sx+i}")
        c = lambda j: a(f"v_cvt_pk_bf16_f32 v{P+j}, v{Sx+2*j}, v{Sx+2*j+1}")
        tp = (u - 1) >> 1
        qp = (u - 1) & 1
        tn = (u + 1) >> 1
        qn = (u + 1) & 1
        e(0); e(1)
        a(f"v_mfma_f32_32x32x16_bf16 {v(O[qp],16)}, {v(Vf[tp&1]+4,4)}, {v(P+4,4)}, {v(O[qp],16)}")
        if q == 0:
            if t == 3:
                a(f"""
                s_bitcmp1_b32 s{sG}, s{sIt}
                s_cbranch_scc0 L_k2_syncback
                s_barrier
                """)
                a.label("L_k2_syncback")
            a(f"""
            ds_read_b128 {v(Kf[(t+1)&1],4)}, v{ka} offset:{(t+1)*1024}
            ds_read_b128 {v(Vf[(t+1)&1],4)}, v{va} offset:{(t+1)*1024}
            ds_read_b128 {v(Vf[(t+1)&1]+4,4)}, v{va} offset:{(t+1)*1024+512}
            """)
        e(2); e(3); c(0); c(1); e(4); e(5)
        if q == 1:
            a("s_waitcnt lgkmcnt(0)")
        a(f"v_mfma_f32_32x32x16_bf16 {v(S[qn],16)}, {v(Kf[tn&1],4)}, {v(Q[qn],4)}, {v(M[qn],16)}")
        e(6); e(7); c(2); c(3); e(8); e(9); e(10)
        a(f"v_mfma_f32_32x32x16_bf16 {v(O[q],16)}, {v(Vf[t&1],4)}, {v(P,4)}, {v(O[q],16)}")
        e(11); c(4); c(5); e(12); e(13)
        if u == 7:
            a(f"""
            v_add_u32 v{ka}, 0x1000, v{ka}
            v_add_u32 v{va}, v{vs}, v{va}
            s_add_u32 s{sIt}, s{sIt}, 1
            s_cmp_lt_u32 s{sIt}, 8
            """)
        e(14); e(15); c(6); c(7)
    a("s_cbranch_scc1 L_k2_loop")
    a.raw("@NOPAD 0")
    stamp(a, 3)
    a(f"""
    s_nop 1
    v_mfma_f32_32x32x16_bf16 {v(O[1],16)}, {v(Vf[1]+4,4)}, {v(P+4,4)}, {v(O[1],16)}
    """)
    xw = V.alloc(); xr = V.alloc(); fl = V.alloc()
    R = S[0]
    a(f"""
    s_mul_i32 s{sT0}, s{sWave}, {10*256}
    s_add_u32 s{sT0}, s{sT0}, {hex(XCH)}
    s_xor_b32 s{sT1}, s{sWave}, 4
    s_mul_i32 s{sT1}, s{sT1}, {10*256}
    s_add_u32 s{sT1}, s{sT1}, {hex(XCH)}
    v_add_u32 v{xw}, s{sT0}, v{l16}
    v_add_u32 v{xr}, s{sT1}, v{l16}
    v_lshl_add_u32 v{t0}, v{lane}, 2, s{sT0}
    v_lshl_add_u32 v{t1}, v{lane}, 2, s{sT1}
    s_lshl_b32 s{sT0}, s{sWave}, 2
    s_add_u32 s{sT0}, s{sT0}, {hex(FLAG)}
    v_mov_b32 v{fl}, s{sT0}
    s_mov_b32 s{sT1}, 0x5f800000
    s_nop 2
    v_cmp_nlt_f32 vcc, v{O[0]+8}, s{sT1}
    s_mov_b64 s[26:27], vcc
    v_cmp_nlt_f32 vcc, v{O[1]+8}, s{sT1}
    s_or_b64 s[26:27], s[26:27], vcc
    s_cselect_b32 s{sT0}, 1, 0
    v_mov_b32 v{one}, s{sT0}
    ds_write_b32 v{fl}, v{one}
    s_cmp_eq_u32 s{sKh}, 0
    s_cbranch_scc1 L_k2_x0
    """)
    a(f"""
    ds_write_b128 v{xw}, {v(O[0],4)}
    ds_write_b128 v{xw}, {v(O[0]+4,4)} offset:1024
    ds_write_b32 v{t0}, v{O[0]+8} offset:2048
    ds_write_b32 v{t0}, v{mx[0]} offset:2304
    v_mov_b32 v{M[0]+9}, v{mx[1]}
    s_nop 1
    """)
    for r in range(9):
        a(f"v_mov_b32 v{P if False else M[0]+r}, v{O[1]+r}")
    a("s_branch L_k2_x1")
    a.label("L_k2_x0")
    a(f"""
    ds_write_b128 v{xw}, {v(O[1],4)}
    ds_write_b128 v{xw}, {v(O[1]+4,4)} offset:1024
    ds_write_b32 v{t0}, v{O[1]+8} offset:2048
    ds_write_b32 v{t0}, v{mx[1]} offset:2304
    v_mov_b32 v{M[0]+9}, v{mx[0]}
    """)
    for r in range(9):
        a(f"v_mov_b32 v{M[0]+r}, v{O[0]+r}")
    a.label("L_k2_x1")
    F = S[1]
    a(f"""
    v_mov_b32 v{fl}, {hex(FLAG)}
    s_waitcnt lgkmcnt(0)
    s_barrier
    ds_read_b128 {v(F,4)}, v{fl}
    ds_read_b128 {v(F+4,4)}, v{fl} offset:16
    ds_read_b32 v{R+9}, v{t1} offset:2304
    ds_read_b32 v{R+8}, v{t1} offset:2048
    ds_read_b128 {v(R,4)}, v{xr}
    ds_read_b128 {v(R+4,4)}, v{xr} offset:1024
    s_lshl_b32 s{sT0}, s{sQb}, 3
    s_lshl_b32 s{sT1}, s{sQp}, 1
    s_add_u32 s{sT0}, s{sT0}, s{sT1}
    s_add_u32 s{sT0}, s{sT0}, s{sKh}
    s_lshl_b32 s{sT0}, s{sT0}, 5
    s_add_u32 s{sT0}, s{sT0}, s{sHead}
    s_lshl_b32 s{sT0}, s{sT0}, 10
    s_add_u32 s{sT0}, s{sT0}, {hex(OF)}
    s_waitcnt lgkmcnt(3)
    v_max_f32 v{R+10}, v{R+9}, v{M[0]+9}
    v_or3_b32 v{F}, v{F}, v{F+1}, v{F+2}
    v_sub_f32 v{R+9}, v{R+9}, v{R+10}
    v_sub_f32 v{M[0]+9}, v{M[0]+9}, v{R+10}
    v_or3_b32 v{F+3}, v{F+3}, v{F+4}, v{F+5}
    v_exp_f32 v{R+9}, v{R+9}
    v_exp_f32 v{M[0]+9}, v{M[0]+9}
    v_or3_b32 v{F}, v{F}, v{F+6}, v{F+7}
    v_or_b32 v{F}, v{F}, v{F+3}
    s_waitcnt lgkmcnt(2)
    v_readfirstlane_b32 s{sT1}, v{F}
    v_mul_f32 v{R+8}, v{R+8}, v{R+9}
    v_fma_f32 v{R+8}, v{M[0]+8}, v{M[0]+9}, v{R+8}
    v_rcp_f32 v{R+8}, v{R+8}
    s_andn2_b32 s{sT1}, s{sT1}, s{sPass}
    s_cbranch_scc1 L_k2_fallback
    v_mul_f32 v{R+9}, v{R+9}, v{R+8}
    v_mul_f32 v{M[0]+9}, v{M[0]+9}, v{R+8}
    s_waitcnt lgkmcnt(0)
    """)
    for r in range(8):
        a(f"v_mul_f32 v{R+r}, v{R+r}, v{R+9}")
    for r in range(8):
        a(f"v_fma_f32 v{R+r}, v{M[0]+r}, v{M[0]+9}, v{R+r}")
    for r in range(4):
        a(f"v_cvt_pk_bf16_f32 v{P+r}, v{R+2*r}, v{R+2*r+1}")
    a(f"buffer_store_dwordx4 {v(P,4)}, v{l16}, s[{SWS}:{SWS+3}], s{sT0} offen")
    stamp(a, 4)
    stamp_flush(a, 1, 8, sWave, 8)
    a.label("L_k2_end")
    a("s_endpgm")

    a.label("L_k2_svc")
    a("s_setprio 3")
    PS = 48
    sKV, sJ, sX, sM = 28, 29, 30, 31
    pa = S[0]; pd = S[1]
    a(f"""
    s_lshl_b32 s{sKV}, s{sHead}, 16
    s_add_u32 s{sKV}, s{sKV}, {hex(KF)}
    s_mov_b32 s{sM}, 0
    s_mov_b32 s{sIt}, 0
    s_waitcnt lgkmcnt(0)
    """)
    srd(a, SWS, 8, WS_SIZE)
    a.label("L_k2_grp")
    for part in range(4):
        lo = (part >> 1) * 0x10000 + (part & 1) * 0x8000
        go = (part >> 1) * (2 << 20) + (part & 1) * 0x8000
        a(f"""
        s_add_u32 m0, s{sM}, {hex(lo)}
        s_add_u32 s{sT0}, s{sKV}, {hex(go)}
        """)
        for i in range(4):
            a(f"buffer_load_dwordx4 v{l16}, s[{SWS}:{SWS+3}], s{sT0} offen offset:{i*1024} lds")
    a(f"""
    s_add_u32 s{sM}, s{sM}, 4096
    s_add_u32 s{sKV}, s{sKV}, 4096
    s_add_u32 s{sIt}, s{sIt}, 1
    s_waitcnt vmcnt(32)
    s_cmp_lg_u32 s{sIt}, 1
    s_cbranch_scc1 L_k2_g1
    s_waitcnt vmcnt(0)
    s_barrier
    """)
    a.label("L_k2_g1")
    a(f"""
    s_cmp_lg_u32 s{sIt}, {os.environ.get('B1AT', '4')}
    s_cbranch_scc1 L_k2_g2
    s_barrier
    """)
    a.label("L_k2_g2")
    a(f"""
    s_cmp_lt_u32 s{sIt}, 8
    s_cbranch_scc1 L_k2_grp
    s_lshr_b32 s{sJ}, s2, 3
    s_and_b32 s{sX}, s2, 7
    s_mov_b32 s{PS+3}, 0x00020000
    v_lshlrev_b32 v{pa}, 7, v{lane}
    s_waitcnt vmcnt(0)
    s_barrier
    """)
    k = [0]

    def touch(areg, soff, off=0):
        a(f"buffer_load_dword v{pd+k[0]}, v{areg}, s[{PS}:{PS+3}], {soff} offen" + (f" offset:{off}" if off else ""))
        k[0] += 1

    def setp(p, n):
        a(f"""
        s_mov_b32 s{PS}, s{p}
        s_mov_b32 s{PS+1}, s{p+1}
        s_mov_b32 s{PS+2}, {hex(n)}
        """)
    cs = O[0]; wf = M[0]; on = Q[0]; wd = ka; rw = va
    a(f"""
    s_cmp_ge_u32 s2, {os.environ.get('NCS', '86')}
    s_cbranch_scc1 L_k2_pf
    s_cmp_lt_u32 s2, 43
    s_cselect_b32 s{PS}, s40, s42
    s_cselect_b32 s{PS+1}, s41, s43
    s_cselect_b32 s{sT0}, 0, 43
    s_mov_b32 s{PS+2}, {hex(512*2752)}
    s_sub_u32 s{sJ}, s2, s{sT0}
    s_lshl_b32 s{sKV}, s{sJ}, 6
    v_lshrrev_b32 v{t0}, 2, v{lane}
    v_and_b32 v{t1}, 3, v{lane}
    v_mul_u32_u24 v{t0}, 2752, v{t0}
    v_lshl_add_u32 v{wd}, v{t1}, 4, v{t0}
    s_mov_b32 s{sIt}, 0
    """)
    tr_addr(a, rw, lane, t0, t1)
    a(f"v_add_u32 v{rw}, {hex(XCH)}, v{rw}")
    for r in range(4):
        a(f"v_mov_b32 v{on+r}, 0x3f803f80")
    for r in range(16):
        a(f"v_mov_b32 v{cs+r}, 0")
    a.label("L_k2_csb")
    a(f"""
    s_mov_b32 m0, {hex(XCH)}
    s_mov_b32 s{sM}, 0
    """)
    a.label("L_k2_csd")
    a(f"""
    buffer_load_dwordx4 v{wd}, s[{PS}:{PS+3}], s{sKV} offen lds
    s_add_u32 m0, m0, 1024
    s_add_u32 s{sKV}, s{sKV}, {16*2752}
    s_add_u32 s{sM}, s{sM}, 1
    s_cmp_lt_u32 s{sM}, 16
    s_cbranch_scc1 L_k2_csd
    v_mov_b32 v{t0}, v{rw}
    s_mov_b32 s{sM}, 0
    s_waitcnt vmcnt(0)
    """)
    a.label("L_k2_csm")
    for i in range(4):
        a(f"""
        ds_read_b64_tr_b16 {v(wf+4*i,2)}, v{t0} offset:{i*1024}
        ds_read_b64_tr_b16 {v(wf+4*i+2,2)}, v{t0} offset:{i*1024+256}
        """)
    a(f"""
    v_add_u32 v{t0}, 4096, v{t0}
    s_add_u32 s{sM}, s{sM}, 1
    s_cmp_lt_u32 s{sM}, 4
    s_waitcnt lgkmcnt(0)
    """)
    for i in range(4):
        a(f"v_mfma_f32_32x32x16_bf16 {v(cs,16)}, {v(wf+4*i,4)}, {v(on,4)}, {v(cs,16)}")
    a(f"""
    s_cbranch_scc1 L_k2_csm
    s_add_u32 s{sIt}, s{sIt}, 1
    s_cmp_lt_u32 s{sIt}, 2
    s_cbranch_scc1 L_k2_csb
    s_cmp_lt_u32 s2, 43
    s_cselect_b32 s{sT0}, 0, {CSM}
    s_lshl_b32 s{sJ}, s{sJ}, 7
    s_add_u32 s{sT0}, s{sT0}, s{sJ}
    s_add_u32 s{sT0}, s{sT0}, {hex(CS)}
    v_and_b32 v{t0}, 32, v{lane}
    s_mov_b32 s26, 1
    s_mov_b32 s27, 1
    s_mov_b64 exec, s[26:27]
    s_nop 3
    buffer_store_dwordx4 {v(cs,4)}, v{t0}, s[{SWS}:{SWS+3}], s{sT0} offen
    buffer_store_dwordx4 {v(cs+4,4)}, v{t0}, s[{SWS}:{SWS+3}], s{sT0} offen offset:16
    buffer_store_dwordx4 {v(cs+8,4)}, v{t0}, s[{SWS}:{SWS+3}], s{sT0} offen offset:64
    buffer_store_dwordx4 {v(cs+12,4)}, v{t0}, s[{SWS}:{SWS+3}], s{sT0} offen offset:80
    s_mov_b64 exec, -1
    s_lshr_b32 s{sJ}, s2, 3
    """)
    a.label("L_k2_pf")

    if os.environ.get("PF", "1") == "1":
        if FUSED and os.environ.get("GFT", "1") == "1":
            setp(8, WS_SIZE)
            a(f"""
            s_lshl_b32 s{sT0}, s{sX}, 5
            s_add_u32 s{sT0}, s{sT0}, s{sJ}
            s_mul_i32 s{sT0}, s{sT0}, {172*128}
            s_add_u32 s{sT0}, s{sT0}, {hex(GF)}
            s_add_u32 s{sT1}, s{sT0}, {54*128}
            s_add_u32 s{sM}, s{sT0}, {108*128}
            """)
            touch(pa, f"s{sT0}"); touch(pa, f"s{sT1}"); touch(pa, f"s{sM}")
        setp(36, 512 * 1024)
        a(f"""
        s_lshl_b32 s{sT0}, s{sJ}, 14
        s_add_u32 s{sT1}, s{sT0}, 8192
        """)
        touch(pa, f"s{sT0}"); touch(pa, f"s{sT1}")
        setp(32, 2048 * 1024)
        a(f"""
        s_lshl_b32 s{sT0}, s{sX}, 5
        s_add_u32 s{sT0}, s{sT0}, s{sJ}
        s_lshl_b32 s{sT0}, s{sT0}, 13
        """)
        touch(pa, f"s{sT0}")
        if FUSED:
            setp(8, WS_SIZE)
            a(f"""
            s_add_u32 s{sT1}, s{sT0}, {hex(HF)}
            s_lshr_b32 s{sT0}, s{sT0}, 3
            s_add_u32 s{sT0}, s{sT0}, {hex(ST)}
            v_and_b32 v{pa+1}, {7*128}, v{pa}
            """)
            touch(pa, f"s{sT1}"); touch(pa + 1, f"s{sT0}")
            per = GUROWS // 32 * 2752
            a(f"s_mul_i32 s{sT0}, s{sJ}, {per}")
            for p in (40, 42):
                setp(p, 512 * 2752)
                a(f"v_add_u32 v{pa+1}, s{sT0}, v{pa}")
                a(f"v_add_u32 v{pa+2}, {per}, v{pa+1}")
                a(f"v_sub_u32 v{pa+2}, v{pa+2}, v{pa}")
                n = (per + 128 + 8191) // 8192
                for i in range(n):
                    k[0] = 0
                    touch(pa + 1, 0)
                    if i < n - 1:
                        a(f"v_add_u32 v{pa+1}, 8192, v{pa+1}")
                        a(f"v_min_u32 v{pa+1}, v{pa+1}, v{pa+2}")
        else:
            a(f"""
            v_lshrrev_b32 v{pa+1}, 3, v{lane}
            v_mul_u32_u24 v{pa+1}, 2752, v{pa+1}
            v_and_b32 v{pa+2}, 7, v{lane}
            v_min_u32 v{pa+2}, 6, v{pa+2}
            v_lshl_add_u32 v{pa+1}, v{pa+2}, 7, v{pa+1}
            s_mul_i32 s{sT0}, s{sJ}, {16*2752}
            s_lshr_b32 s{sT1}, s{sX}, 1
            s_mul_i32 s{sT1}, s{sT1}, 768
            s_add_u32 s{sT0}, s{sT0}, s{sT1}
            v_add_u32 v{pa+1}, s{sT0}, v{pa+1}
            v_add_u32 v{pa+2}, {8*2752}, v{pa+1}
            """)
            for p in (40, 42):
                setp(p, 512 * 2752)
                touch(pa + 1, 0); touch(pa + 2, 0)
        setp(44, 1376 * 1024)
        if FUSED and os.environ.get("WDPF", "") == "k2":
            a(f"""
            s_mul_i32 s{sT0}, s{sJ}, {43*1024}
            v_add_u32 v{pa+3}, s{sT0}, v{pa}
            """)
            for i in range(6):
                k[0] = 0
                touch(pa + 3, 0)
                if i < 5:
                    a(f"v_add_u32 v{pa+3}, {8192 if i < 4 else 3072}, v{pa+3}")
        elif PFD == "k4" or FUSED:
            a(f"""
            s_mul_i32 s{sT0}, s2, {43*128}
            v_add_u32 v{pa+3}, s{sT0}, v{pa}
            """)
            touch(pa + 3, 0)
        else:
            wd_touch(a, touch, pa, pa + 3, lane, sJ, sX, sT0, sT1)
    if FUSED:
        a(f"""
        s_cmp_lt_u32 s2, {256 - FL_BYTES // 4096}
        s_cbranch_scc1 L_k2_nz
        v_mov_b32 v{O[1]}, 0
        v_mov_b32 v{O[1]+1}, 0
        v_mov_b32 v{O[1]+2}, 0
        v_mov_b32 v{O[1]+3}, 0
        s_sub_u32 s{sT0}, 255, s2
        s_lshl_b32 s{sT0}, s{sT0}, 12
        s_add_u32 s{sT0}, s{sT0}, {hex(FL)}
        """)
        for q in range(4):
            a(f"buffer_store_dwordx4 {v(O[1],4)}, v{l16}, s[{SWS}:{SWS+3}], s{sT0} offen offset:{q*1024}")
        a.label("L_k2_nz")
    a("s_endpgm")

    a.label("L_k2_warm")
    a("s_barrier\ns_barrier\ns_barrier")
    a.warm_exit("w3", sWave, 2, 9)
    a.pads_end(8)
    a.label("L_k2_fallback")
    a(f"""
    s_mov_b32 s{sPass}, 1
    s_mov_b32 s{sG}, 0
    s_waitcnt lgkmcnt(0)
    v_mov_b32 v{ka}, v{ka0}
    v_mov_b32 v{mx[0]}, 0xff800000
    v_mov_b32 v{mx[1]}, 0xff800000
    s_mov_b32 s{sIt}, 0
    """)
    a.label("L_k2_fbloop")
    a(f"""
    ds_read_b128 {v(Kf[0],4)}, v{ka}
    v_add_u32 v{ka}, 1024, v{ka}
    s_waitcnt lgkmcnt(0)
    v_mfma_f32_32x32x16_bf16 {v(S[0],16)}, {v(Kf[0],4)}, {v(Q[0],4)}, 0
    v_mfma_f32_32x32x16_bf16 {v(S[1],16)}, {v(Kf[0],4)}, {v(Q[1],4)}, 0
    s_nop 7
    s_nop 3
    """)
    for q in range(2):
        for i in range(0, 16, 2):
            a(f"v_max3_f32 v{mx[q]}, v{mx[q]}, v{S[q]+i}, v{S[q]+i+1}")
    a(f"""
    s_add_u32 s{sIt}, s{sIt}, 1
    s_cmp_lt_u32 s{sIt}, 32
    s_cbranch_scc1 L_k2_fbloop
    """)
    half_max(mx[0], t0)
    half_max(mx[1], t1)
    a(f"""
    ds_read_b128 {v(Kf[0],4)}, v{ka0}
    s_waitcnt lgkmcnt(0)
    {initzero}
    s_branch L_k2_start
    """)
    return name, V.hi, 256, 704 if 'w3' in WARMSET else 576, LDS_K2
```

```python
from asmlib import *
from k1 import OF, HF, GF, WS_SIZE, EPS, srd
from k35 import ST, CS, CSM, tr_addr
import math, os

FL = (15 << 20) + (7 << 17)
FLA = FL
FLB = FL + 0x1000
FLX = FL + 0x2000
FL_BYTES = 0xa000
LFLAG = 163840 - 64
SLEEP = int(os.environ.get('SLEEP', '2'))

E = lambda k, d: int(os.environ.get(k, str(d)))
A_PA, A_PW = E('APA', 5), E('APW', 5)
B_NSW, B_PW, B_NSA, B_PA = 9, E('BPW', 4), 6, E('BPA', 3)
C_NSW, C_PW, C_NSA, C_PA = 12, E('CPW', 10), 8, 4
A_AB, A_WB = 0, 0x10000
CSL = 0x20000
B_AB, B_WB, B_W0 = 0, 49152, 7
C_AB, C_WB, C_W0 = 0, 65536, 6
C_EARLY = {9: 1, 10: 1, 11: 2, 12: 2, 14: 1, 15: 1}
SPIN = 400000
WBNT = os.environ.get('WBNT', '')
GT = E('GT', 0)
DBG = os.environ.get('DBG', '0') == '1'
DBG2 = os.environ.get('DBG', '0') == '2'


def gen_post(a):
    name = "post_kernel"
    V = Regs(1, 256, "v")
    a.raw(f".globl {name}\n.p2align 9\n.type {name},@function")
    a.label(name)
    a.pads_begin("w3")
    SW, SWS, SR = 12, 16, 20
    (sWave, sG, sJ, sRb, sCg, sRB, sCB, sT0, sT1, sI, sN, sDm, sGo, sFast, sRa, sRw, sH, sPh, sNa, sNw, sSp,
     sW2, sTr) = range(24, 47)
    FB, FB2 = 48, 64
    PX, PWO, PWG, PWU, PWD, POUT = 48, 52, 56, 58, 60, 62
    a(f"""
    s_cmp_ge_u32 s2, 256
    s_cbranch_scc1 L_p_end
    s_load_dwordx16 s[48:63], s[0:1], 0
    s_load_dwordx2 s[8:9], s[0:1], 72
    """)
    stamp(a, 0); stamp_real(a, 5)
    lane = V.alloc(); t0 = V.alloc(); t1 = V.alloc(); l16 = V.alloc(); l4 = V.alloc()
    a(f"""
    v_lshrrev_b32 v{t0}, 6, v0
    v_and_b32 v{lane}, 63, v0
    s_and_b32 s{sG}, s2, 7
    v_readfirstlane_b32 s{sWave}, v{t0}
    s_lshr_b32 s{sJ}, s2, 3
    v_lshlrev_b32 v{l16}, 4, v{lane}
    v_lshlrev_b32 v{l4}, 2, v{lane}
    s_lshl_b32 s{sRb}, s{sG}, 2
    s_and_b32 s{sT0}, s{sJ}, 3
    s_add_u32 s{sRb}, s{sRb}, s{sT0}
    s_lshr_b32 s{sCg}, s{sJ}, 2
    s_lshl_b32 s{sRB}, s{sG}, 1
    s_and_b32 s{sT0}, s{sJ}, 1
    s_add_u32 s{sRB}, s{sRB}, s{sT0}
    s_lshr_b32 s{sCB}, s{sJ}, 1
    s_and_b32 s{sW2}, s{sWave}, 1
    s_mov_b32 s{SWS+2}, {hex(WS_SIZE)}
    s_mov_b32 s{SWS+3}, 0x00020000
    s_mov_b32 s{SW+3}, 0x00020000
    s_mov_b32 s{sTr}, 0
    s_cmp_lt_u32 s{sWave}, 4
    s_cbranch_scc1 L_p_compute
    s_cmp_lt_u32 s{sWave}, 6
    s_cbranch_scc1 L_p_awave
    """)
    mk = V.mark()

    def sample(off_sreg, vtmp):
        a(f"buffer_load_dword v{vtmp}, v{vtmp+1}, s[{SWS}:{SWS+3}], s{off_sreg} offen sc1")

    def poll(off_sreg, vtmp, lab, thr=1, sampled=None):
        a(f"s_mov_b32 s{sSp}, 0")
        if sampled is not None:
            a(f"""
            s_waitcnt vmcnt({sampled})
            s_branch {lab}_c
            """)
        a.label(lab)
        a(f"s_sleep {SLEEP}")
        sample(off_sreg, vtmp)
        a("s_waitcnt vmcnt(0)")
        a.label(lab + "_c")
        a(f"""
        s_add_u32 s{sSp}, s{sSp}, 1
        v_cmp_gt_u32 vcc, {thr}, v{vtmp}
        s_cmp_ge_u32 s{sSp}, {SPIN}
        s_cbranch_scc1 {lab}_x
        s_cbranch_vccnz {lab}
        """)
        a.label(lab + "_x")

    def stream(tag, n, P, nops, issue, pre_done=0, vt=None, hooks=None, extra=0):
        a.label(f"L_{tag}_pre")
        issue()
        a(f"""
        s_cmp_lt_u32 s{sI}, {P}
        s_cbranch_scc1 L_{tag}_pre
        """)
        stream_loop(tag, n, P, nops, issue, vt, hooks, extra)

    def stream_loop(tag, n, P, nops, issue, vt=None, hooks=None, extra=0):
        def tr():
            if vt is not None:
                trace(a, vt, sTr)
                if STAMP: a(f"s_add_u32 s{sTr}, s{sTr}, 1")
        if P < n:
            a.label(f"L_{tag}_ld")
            a(f"""
            s_waitcnt vmcnt({min(63, nops*(P-1))})
            s_barrier
            """)
            tr()
            issue()
            a(f"""
            s_cmp_lt_u32 s{sI}, {n}
            s_cbranch_scc1 L_{tag}_ld
            """)
        for r in range(P - 1, -1, -1):
            if hooks and r in hooks:
                hooks[r]()
            a(f"""
            s_waitcnt vmcnt({min(63, nops*r+extra)})
            s_barrier
            """)
            tr()

    def ring_adv(slot, base, ns):
        return f"""
        s_add_u32 s{sDm}, s{sDm}, {slot}
        s_add_u32 s{sI}, s{sI}, 1
        s_cmp_ge_u32 s{sDm}, {base+ns*slot}
        s_cselect_b32 s{sT0}, {ns*slot}, 0
        s_sub_u32 s{sDm}, s{sDm}, s{sT0}
        """

    wd = [V.alloc() for _ in range(3)]
    wr = V.alloc(); pd = V.alloc(2)
    a(f"""
    v_lshrrev_b32 v{t0}, 2, v{lane}
    v_and_b32 v{t1}, 3, v{lane}
    v_lshlrev_b32 v{wr}, 10, v{t0}
    v_lshl_add_u32 v{wr}, v{t1}, 4, v{wr}
    v_mul_u32_u24 v{t0}, 2752, v{t0}
    v_lshl_add_u32 v{wd[0]}, v{t1}, 4, v{t0}
    v_add_u32 v{wd[1]}, 64, v{wd[0]}
    v_add_u32 v{wd[2]}, 128, v{wd[0]}
    s_lshl_b32 s{sH}, s{sW2}, 15
    s_lshl_b32 s{sT0}, s{sCg}, 7
    s_add_u32 s{sH}, s{sH}, s{sT0}
    s_mov_b32 s{sGo}, s{sH}
    s_lshl_b32 s{sDm}, s{sW2}, 12
    s_add_u32 s{sDm}, s{sDm}, {A_WB}
    s_mov_b32 s{sI}, 0
    s_mov_b32 s{SW+2}, {hex(512*1024)}
    s_waitcnt lgkmcnt(0)
    s_mov_b32 s{SW}, s{PWO}
    s_mov_b32 s{SW+1}, s{PWO+1}
    s_mov_b32 s{SWS}, s8
    s_mov_b32 s{SWS+1}, s9
    """)
    cs_load = f"""
    v_min_u32 v{pd}, {23*16}, v{l16}
    s_mul_i32 s{sT0}, s{sCB}, 384
    s_mul_i32 s{sT1}, s{sW2}, {CSM}
    s_add_u32 s{sT0}, s{sT0}, s{sT1}
    s_add_u32 s{sT0}, s{sT0}, {hex(CS)}
    s_lshl_b32 s{sT1}, s{sW2}, 10
    s_add_u32 m0, s{sT1}, {CSL}
    s_mov_b64 exec, 0xffffff
    buffer_load_dwordx4 v{pd}, s[{SWS}:{SWS+3}], s{sT0} offen lds
    s_mov_b64 exec, -1
    """

    def issue_w1024(base, ns, step=65536):
        def f():
            a(f"""
            s_mov_b32 m0, s{sDm}
            s_add_u32 s{sT1}, s{sGo}, 64
            buffer_load_dwordx4 v{wr}, s[{SW}:{SW+3}], s{sGo} offen lds
            s_add_u32 m0, m0, 1024
            s_add_u32 s{sN}, s{sGo}, 16384
            buffer_load_dwordx4 v{wr}, s[{SW}:{SW+3}], s{sT1} offen lds
            s_add_u32 m0, m0, 1024
            s_add_u32 s{sT1}, s{sGo}, {16384+64}
            buffer_load_dwordx4 v{wr}, s[{SW}:{SW+3}], s{sN} offen lds
            s_add_u32 m0, m0, 1024
            s_add_u32 s{sGo}, s{sGo}, {step}
            buffer_load_dwordx4 v{wr}, s[{SW}:{SW+3}], s{sT1} offen lds
            """)
            a(ring_adv(8192, base, ns))
            if step != 65536:
                a(f"""
                s_cmp_ge_u32 s{sGo}, {84*16384}
                s_cselect_b32 s{sT0}, {82*16384}, 0
                s_sub_u32 s{sGo}, s{sGo}, s{sT0}
                """)
        return f

    def issue_wB():
        a(f"""
        s_mov_b32 m0, s{sDm}
        s_add_u32 s{sT1}, s{sGo}, {16*2752}
        buffer_load_dwordx4 v{wd[0]}, s[{SW}:{SW+3}], s{sGo} offen {WBNT} lds
        s_add_u32 m0, m0, 1024
        s_nop 0
        buffer_load_dwordx4 v{wd[1]}, s[{SW}:{SW+3}], s{sGo} offen {WBNT} lds
        s_add_u32 m0, m0, 1024
        s_nop 0
        buffer_load_dwordx4 v{wd[2]}, s[{SW}:{SW+3}], s{sGo} offen {WBNT} lds
        s_add_u32 m0, m0, 4096
        s_add_u32 s{sGo}, s{sGo}, {32*2752}
        buffer_load_dwordx4 v{wd[0]}, s[{SW}:{SW+3}], s{sT1} offen {WBNT} lds
        s_add_u32 m0, m0, 1024
        s_nop 0
        buffer_load_dwordx4 v{wd[1]}, s[{SW}:{SW+3}], s{sT1} offen {WBNT} lds
        s_add_u32 m0, m0, 1024
        s_nop 0
        buffer_load_dwordx4 v{wd[2]}, s[{SW}:{SW+3}], s{sT1} offen {WBNT} lds
        """)
        a(ring_adv(12288, B_WB, B_NSW))

    def issue_until(tag, issue, upto):
        a.label(f"L_{tag}")
        issue()
        a(f"""
        s_cmp_lt_u32 s{sI}, {upto}
        s_cbranch_scc1 L_{tag}
        """)

    iwA = issue_w1024(A_WB, 8)
    iwC = issue_w1024(C_WB, C_NSW, 12*16384)
    issue_until("pwA_pre", iwA, A_PW)
    a.label("L_pwA_ld")
    a(f"""
    s_waitcnt vmcnt({4*(A_PW-1)})
    s_barrier
    """)
    iwA()
    a(f"""
    s_cmp_lt_u32 s{sI}, 8
    s_cbranch_scc1 L_pwA_ld
    s_cmp_eq_u32 s{sW2}, 1
    s_cselect_b32 s{SW}, s{PWU}, s{PWG}
    s_cselect_b32 s{SW+1}, s{PWU+1}, s{PWG+1}
    s_mov_b32 s{SW+2}, {hex(512*2752)}
    s_min_u32 s{sGo}, s{sCB}, 14
    s_mul_i32 s{sGo}, s{sGo}, 192
    s_mul_i32 s{sDm}, s{sW2}, 3072
    s_add_u32 s{sDm}, s{sDm}, {B_WB+B_W0*12288}
    s_mov_b32 s{sI}, 0
    """)
    k0 = E('BEARLY', 2)
    for idx, r in enumerate(range(A_PW - 1, -1, -1)):
        if idx == k0:
            a(cs_load)
            issue_until("pwB_e", issue_wB, 2)
        a(f"""
        s_waitcnt vmcnt({4*r + (13 if idx >= k0 else 0)})
        s_barrier
        """)
    a(f"""
    s_waitcnt vmcnt(12)
    s_barrier
    s_barrier
    s_cmp_eq_u32 s{sCB}, 15
    s_cbranch_scc1 L_p_wC
    """)
    issue_until("pwB_pre", issue_wB, B_PW)
    a.label("L_pwB_ld")
    a(f"""
    s_waitcnt vmcnt({6*(B_PW-1)})
    s_barrier
    """)
    issue_wB()
    a(f"""
    s_cmp_lt_u32 s{sI}, 16
    s_cbranch_scc1 L_pwB_ld
    """)
    a.label("L_p_wC")
    a(f"""
    s_mov_b32 s{SW}, s{PWD}
    s_mov_b32 s{SW+1}, s{PWD+1}
    s_mov_b32 s{SW+2}, {hex(1376*1024)}
    s_lshl_b32 s{sDm}, s{sW2}, 12
    s_add_u32 s{sDm}, s{sDm}, {C_WB+C_W0*8192}
    s_mov_b32 s{sI}, 0
    s_lshl_b32 s{sGo}, s{sCg}, 7
    s_mul_i32 s{sH}, s{sW2}, {6*16384}
    s_add_u32 s{sH}, s{sH}, s{sGo}
    s_add_u32 s{sGo}, s{sGo}, {21*65536}
    s_mov_b32 s{sNa}, 0
    s_cmp_eq_u32 s{sCB}, 15
    s_cbranch_scc1 L_p_wC0
    """)
    nC = 0
    for r in range(B_PW - 1, -1, -1):
        bi = 15 - r
        a(f"""
        s_waitcnt vmcnt({6*r + 4*nC})
        s_barrier
        """)
        avail = sum(n for b, n in C_EARLY.items() if b <= bi) - nC
        avail = min(avail, C_PW - nC, 2)
        if avail > 0:
            nC += avail
            a(f"""
            s_mov_b32 s{sNw}, {nC}
            s_getpc_b64 s[4:5]
            s_add_u32 s4, s4, 12
            s_addc_u32 s5, s5, 0
            s_branch L_p_wCi
            """, nopad=True)
    a("s_barrier")
    a(f"s_branch L_p_wC1")
    a.label("L_p_wC0")
    a("s_waitcnt vmcnt(0)")
    a.label("L_p_wC1")
    a(f"""
    s_mov_b32 s{sNw}, {C_PW}
    s_mov_b32 s{sNa}, 1
    s_cmp_ge_u32 s{sI}, {C_PW}
    s_cbranch_scc1 L_pwC_ld
    """)
    a.label("L_p_wCi")
    iwC()
    a(f"""
    s_cmp_eq_u32 s{sI}, 1
    s_cselect_b32 s{sGo}, s{sH}, s{sGo}
    s_cmp_lt_u32 s{sI}, s{sNw}
    s_cbranch_scc1 L_p_wCi
    s_cmp_eq_u32 s{sNa}, 1
    s_cbranch_scc1 L_pwC_ld
    s_setpc_b64 s[4:5]
    """)
    stream_loop("pwC", 22, C_PW, 4, iwC)
    a("s_endpgm")

    V.release(mk)
    a.label("L_p_awave")
    pv = V.alloc(2); vt = V.alloc(); a1 = V.alloc()
    trace_init(a, vt)
    a(f"""
    s_lshl_b32 s{sH}, s{sRb}, 1
    s_add_u32 s{sH}, s{sH}, s{sW2}
    s_lshl_b32 s{sGo}, s{sH}, 15
    s_add_u32 s{sGo}, s{sGo}, {hex(OF)}
    s_lshl_b32 s{sDm}, s{sW2}, 12
    s_add_u32 s{sDm}, s{sDm}, {A_AB}
    s_mov_b32 s{sI}, 0
    v_add_u32 v{a1}, {32768-2048}, v{l16}
    v_lshrrev_b32 v{t0}, 3, v{lane}
    v_and_b32 v{t1}, 7, v{lane}
    v_xor_b32 v{t1}, v{t1}, v{t0}
    v_lshlrev_b32 v{t0}, 10, v{t0}
    v_lshl_add_u32 v{t0}, v{t1}, 4, v{t0}
    s_lshl_b32 s{sT0}, s{sH}, 15
    s_lshl_b32 s{sT1}, s{sCg}, 7
    s_add_u32 s{sT0}, s{sT0}, s{sT1}
    s_add_u32 m0, s{sDm}, {7*8192}
    s_mov_b32 s{SW+2}, {hex(2048*1024)}
    s_waitcnt lgkmcnt(0)
    s_mov_b32 s{SWS}, s8
    s_mov_b32 s{SWS+1}, s9
    s_mov_b32 s{SW}, s{PX}
    s_mov_b32 s{SW+1}, s{PX+1}
    buffer_load_dwordx4 v{t0}, s[{SW}:{SW+3}], s{sT0} offen lds
    s_add_u32 s{sT0}, s{sT0}, {8192-1024}
    buffer_load_dwordx4 v{t0}, s[{SW}:{SW+3}], s{sT0} offen offset:1024 lds
    s_add_u32 s{sT0}, s{sT0}, {8192-1024}
    buffer_load_dwordx4 v{t0}, s[{SW}:{SW+3}], s{sT0} offen offset:2048 lds
    s_add_u32 s{sT0}, s{sT0}, {8192-1024}
    buffer_load_dwordx4 v{t0}, s[{SW}:{SW+3}], s{sT0} offen offset:3072 lds
    """)

    def issue_a4(base, ns, fl, n=4):
        def f():
            a(f"s_mov_b32 m0, s{sDm}")
            a("s_nop 0")
            for k in range(n):
                a(f"buffer_load_dwordx4 v{l16}, s[{SWS}:{SWS+3}], s{sGo} offen offset:{k*1024} {fl} lds")
            a(f"s_add_u32 s{sGo}, s{sGo}, 4096")
            a(ring_adv(8192, base, ns))
        return f
    assert A_PA <= 6
    def cen_sample():
        a(f"""
        s_lshl_b32 s{sN}, s{sG}, 12
        s_add_u32 s{sN}, s{sN}, {hex(FLX)}
        v_and_b32 v{pv+1}, 31, v{lane}
        v_lshlrev_b32 v{pv+1}, 7, v{pv+1}
        """)
        sample(sN, pv)

    stream("paA", 8, A_PA, 4, issue_a4(A_AB, 8, ""), vt=vt, hooks={A_PA - 1: cen_sample}, extra=1)
    poll(sN, pv, "L_p_pollx", 1, sampled=0)
    a(f"""
    v_readfirstlane_b32 s{sT0}, v{pv}
    s_nop 1
    v_cmp_ne_u32 vcc, s{sT0}, v{pv}
    s_cmp_eq_u64 vcc, 0
    s_cselect_b32 s{sT1}, {0 if os.environ.get('SLOW', '0') == '1' else 1}, 0
    s_cmp_eq_u32 s{sT0}, 0
    s_cselect_b32 s{sT1}, 0, s{sT1}
    v_mov_b32 v{pv}, s{sT1}
    v_mov_b32 v{pv+1}, {LFLAG+16}
    ds_write_b32 v{pv+1}, v{pv}
    s_waitcnt lgkmcnt(0)
    s_barrier
    s_barrier
    s_cmp_eq_u32 s{sCB}, 15
    s_cbranch_scc1 L_p_aC
    s_lshl_b32 s{sT0}, s{sRB}, 2
    s_lshl_b32 s{sT1}, s{sW2}, 1
    s_add_u32 s{sT0}, s{sT0}, s{sT1}
    s_lshl_b32 s{sGo}, s{sT0}, 15
    s_add_u32 s{sGo}, s{sGo}, {hex(HF)}
    s_lshl_b32 s{sN}, s{sT0}, 6
    s_add_u32 s{sN}, s{sN}, {hex(FLA)}
    s_lshl_b32 s{sDm}, s{sW2}, 12
    s_add_u32 s{sDm}, s{sDm}, {B_AB}
    s_mov_b32 s{sI}, 0
    """)
    a(f"v_and_b32 v{pv+1}, 0x7c, v{l4}")
    poll(sN, pv, "L_p_pollaB")
    a(f"""
    s_lshl_b32 s{sT0}, s{sW2}, 2
    s_add_u32 s{sT0}, s{sT0}, {LFLAG}
    v_mov_b32 v{pv}, s{sT0}
    ds_write_b32 v{pv}, v{pv}
    """)

    def issue_aB():
        a(f"""
        s_mov_b32 m0, s{sDm}
        s_nop 0
        buffer_load_dwordx4 v{l16}, s[{SWS}:{SWS+3}], s{sGo} offen sc1 lds
        buffer_load_dwordx4 v{l16}, s[{SWS}:{SWS+3}], s{sGo} offen offset:1024 sc1 lds
        buffer_load_dwordx4 v{a1}, s[{SWS}:{SWS+3}], s{sGo} offen offset:2048 sc1 lds
        buffer_load_dwordx4 v{a1}, s[{SWS}:{SWS+3}], s{sGo} offen offset:3072 sc1 lds
        s_add_u32 s{sGo}, s{sGo}, 2048
        """)
        a(ring_adv(8192, B_AB, B_NSA))
    stream("paB", 16, B_PA, 4, issue_aB, vt=vt)
    a("s_barrier")
    a.label("L_p_aC")
    a(f"""
    s_mul_i32 s{sRa}, s{sH}, {86*1024}
    s_add_u32 s{sRa}, s{sRa}, {hex(GF)}
    s_add_u32 s{sGo}, s{sRa}, {84*1024}
    s_lshl_b32 s{sN}, s{sH}, 6
    s_add_u32 s{sN}, s{sN}, {hex(FLB)}
    s_lshl_b32 s{sDm}, s{sW2}, 12
    s_add_u32 s{sDm}, s{sDm}, {C_AB}
    s_mov_b32 s{sI}, 0
    """)
    a(f"""
    v_add_u32 v{a1}, 4096, v{l16}
    s_add_u32 s{sRw}, s{sRa}, {84*1024}
    """)
    a(f"v_min_u32 v{pv+1}, 56, v{l4}")
    poll(sN, pv, "L_p_pollaC")
    issue_a4(C_AB, C_NSA, "sc1", 2)()
    a(f"s_mov_b32 s{sGo}, s{sRa}")

    def issue_aC():
        a(f"""
        s_mov_b32 m0, s{sDm}
        s_nop 0
        buffer_load_dwordx4 v{l16}, s[{SWS}:{SWS+3}], s{sGo} offen sc1 lds
        buffer_load_dwordx4 v{l16}, s[{SWS}:{SWS+3}], s{sGo} offen offset:1024 sc1 lds
        buffer_load_dwordx4 v{a1}, s[{SWS}:{SWS+3}], s{sGo} offen offset:2048 sc1 lds
        buffer_load_dwordx4 v{a1}, s[{SWS}:{SWS+3}], s{sGo} offen offset:3072 sc1 lds
        s_add_u32 s{sGo}, s{sGo}, {12*1024}
        s_cmp_ge_u32 s{sGo}, s{sRw}
        s_cselect_b32 s{sT0}, {82*1024}, 0
        s_sub_u32 s{sGo}, s{sGo}, s{sT0}
        """)
        a(ring_adv(8192, C_AB, C_NSA))

    def tr():
        trace(a, vt, sTr)
        if STAMP: a(f"s_add_u32 s{sTr}, s{sTr}, 1")
    a.label("L_paC_pre")
    issue_aC()
    a(f"""
    s_cmp_lt_u32 s{sI}, 4
    s_cbranch_scc1 L_paC_pre
    """)
    a(f"s_mov_b32 s{sNw}, 2")
    a.label("L_paC_l1")
    a(f"""
    s_waitcnt vmcnt(12)
    s_barrier
    """)
    tr()
    issue_aC()
    a(f"""
    s_mov_b32 s{sT0}, {(1 << 6) | (1 << 13)}
    s_bitcmp1_b32 s{sT0}, s{sI}
    s_cbranch_scc0 L_paC_ns
    """)
    sample(sN, pv)
    a.label("L_paC_ns")
    a(f"""
    s_mov_b32 s{sT0}, {(1 << 8) | (1 << 15)}
    s_bitcmp1_b32 s{sT0}, s{sI}
    s_cbranch_scc0 L_paC_l1
    """)
    poll(sN, pv, "L_p_pollaC2", f"s{sNw}", sampled=8)
    a(f"""
    s_mov_b32 s{sNw}, 3
    s_cmp_lt_u32 s{sI}, 15
    s_cbranch_scc1 L_paC_l1
    """)
    issue_aC()
    a(f"""
    s_waitcnt vmcnt(16)
    s_barrier
    """)
    tr()
    issue_aC()
    a("s_branch L_paC_l3")
    a.label("L_paC_l2")
    a(f"""
    s_waitcnt vmcnt(20)
    s_barrier
    """)
    tr()
    a.label("L_paC_l3")
    issue_aC()
    a(f"""
    s_cmp_lt_u32 s{sI}, 22
    s_cbranch_scc1 L_paC_l2
    """)
    for r in range(5, -1, -1):
        a(f"""
        s_waitcnt vmcnt({4*r})
        s_barrier
        """)
        tr()
    trace_flush(a, vt, 2, 8, sWave, 4, lane)
    a("s_endpgm")

    V.release(mk)
    a.label("L_p_compute")
    ra = V.alloc(); rw = V.alloc(); cw = V.alloc(); ca = V.alloc(); csa = V.alloc(); rm = V.alloc(); trb = V.alloc()
    cen = V.alloc(2)
    acc = [V.alloc(16, 4) for _ in range(6)]
    wf = V.alloc(24, 4)
    an = [V.alloc(4, 4) for _ in range(2)]
    z = V.alloc(16, 4)
    kc = V.alloc(4, 4)
    res = V.alloc(8, 4)
    assert an[0] == wf + 24
    f = wf
    ac = z
    a(f"""
    s_lshr_b32 s{sT1}, s{sWave}, 1
    v_and_b32 v{t0}, 31, v{lane}
    v_lshlrev_b32 v{t0}, 10, v{t0}
    v_lshrrev_b32 v{t1}, 5, v{lane}
    v_lshl_add_u32 v{rm}, v{t1}, 4, v{t0}
    s_lshl_b32 s{sH}, s{sRb}, 16
    s_lshl_b32 s{sN}, s{sW2}, 15
    s_add_u32 s{sH}, s{sH}, s{sN}
    s_lshl_b32 s{sN}, s{sCg}, 7
    s_add_u32 s{sI}, s{sH}, s{sN}
    s_lshl_b32 s{sN}, s{sT1}, 6
    s_add_u32 s{sI}, s{sI}, s{sN}
    v_add_u32 v{rm}, s{sI}, v{rm}
    s_lshl_b32 s{sN}, s{sCg}, 12
    s_add_u32 s{sH}, s{sH}, s{sN}
    s_lshl_b32 s{sN}, s{sT1}, 11
    s_add_u32 s{sH}, s{sH}, s{sN}
    s_add_u32 s{sH}, s{sH}, {hex(HF)}
    s_mov_b32 s{SR+2}, {hex(2048*1024)}
    s_mov_b32 s{SR+3}, 0x00020000
    s_getreg_b32 s{sT0}, hwreg(HW_REG_XCC_ID)
    s_and_b32 s{sT0}, s{sT0}, 15
    s_add_u32 s{sT0}, s{sT0}, 1
    v_mov_b32 v{cen}, s{sT0}
    s_lshl_b32 s{sFast}, s{sG}, 12
    s_add_u32 s{sFast}, s{sFast}, {hex(FLX)}
    s_lshl_b32 s{sT0}, s{sJ}, 7
    v_mov_b32 v{cen+1}, s{sT0}
    v_and_b32 v{ca}, 3, v{lane}
    v_lshlrev_b32 v{ca}, 7, v{ca}
    v_and_b32 v{cw}, 4, v{lane}
    v_lshl_add_u32 v{ca}, v{cw}, 10, v{ca}
    s_lshl_b32 s{sT0}, s{sG}, 9
    s_add_u32 s{sT0}, s{sT0}, {hex(FLA)}
    s_waitcnt lgkmcnt(0)
    s_mov_b32 s{SWS}, s8
    s_mov_b32 s{SWS+1}, s9
    s_mov_b32 s{SR}, s{POUT}
    s_mov_b32 s{SR+1}, s{POUT+1}
    s_cmp_lg_u32 s{sWave}, 0
    s_cbranch_scc1 L_p_nocen
    s_mov_b64 exec, 1
    buffer_store_dword v{cen}, v{cen+1}, s[{SWS}:{SWS+3}], s{sFast} offen sc0 sc1
    s_mov_b64 exec, 0xff
    buffer_load_dword v{kc}, v{ca}, s[{SWS}:{SWS+3}], s{sT0} offen sc1
    v_mov_b32 v{cw}, 0
    v_add_u32 v{ca}, {LFLAG}, v{l4}
    ds_write_b32 v{ca}, v{cw}
    s_mov_b64 exec, -1
    """)
    a.label("L_p_nocen")
    a(f"""
    v_and_b32 v{t0}, 31, v{lane}
    v_lshrrev_b32 v{t1}, 5, v{lane}
    s_lshl_b32 s{sN}, s{sT1}, 2
    v_add_u32 v{t1}, s{sN}, v{t1}
    v_xor_b32 v{t1}, v{t1}, v{t0}
    v_and_b32 v{t1}, 7, v{t1}
    v_lshlrev_b32 v{t0}, 7, v{t0}
    v_lshl_add_u32 v{t0}, v{t1}, 4, v{t0}
    s_lshl_b32 s{sN}, s{sW2}, 12
    s_add_u32 s{sN}, s{sN}, {A_AB+7*8192}
    v_add_u32 v{kc+1}, s{sN}, v{t0}
    v_xor_b32 v{kc+2}, 32, v{kc+1}
    v_and_b32 v{csa}, 32, v{lane}
    v_add_u32 v{csa}, {CSL}, v{csa}
    """)
    late_loads = f"""
    ds_read_b128 {v(res,4)}, v{kc+1}
    ds_read_b128 {v(res+4,4)}, v{kc+2}
    s_waitcnt lgkmcnt(0)
    """
    tr_addr(a, trb, lane, t0, t1)
    a(f"""
    s_lshl_b32 s{sN}, s{sW2}, 12
    s_add_u32 s{sN}, s{sN}, {A_AB}
    v_add_u32 v{ra}, s{sN}, v{l16}
    s_lshl_b32 s{sN}, s{sT1}, 10
    s_add_u32 s{sN}, s{sN}, {A_WB}
    v_add_u32 v{rw}, s{sN}, v{trb}
    s_mov_b32 s{sPh}, 0
    s_mov_b32 s{sN}, 3
    v_mov_b32 v{cen+1}, {LFLAG+16}
    """)
    if not DBG: stamp(a, 1)

    def signal(pre_fast, pre_slow, soff, lab, val):
        a(f"""
        s_cmp_eq_u32 s{sFast}, 1
        s_cbranch_scc0 {lab}_s
        {pre_fast}
        s_waitcnt vmcnt(0)
        s_mov_b64 exec, 1
        buffer_store_dword v{val}, v{t0}, s[{SWS}:{SWS+3}], s{soff} offen
        s_branch {lab}_d
        """)
        a.label(lab + "_s")
        a(f"""
        {pre_slow}
        s_waitcnt vmcnt(0)
        s_mov_b64 exec, 1
        buffer_store_dword v{val}, v{t0}, s[{SWS}:{SWS+3}], s{soff} offen sc0 sc1
        """)
        a.label(lab + "_d")
        a("s_mov_b64 exec, -1")

    def rd(k, odd=0):
        a(f"""
        ds_read_b128 {v(f+8*k,4)}, v{ca} offset:{odd*8192+k*1024}
        ds_read_b64_tr_b16 {v(f+8*k+4,2)}, v{cw} offset:{odd*8192+k*2048}
        ds_read_b64_tr_b16 {v(f+8*k+6,2)}, v{cw} offset:{odd*8192+k*2048+256}
        """)

    def mf(k):
        a(f"v_mfma_f32_32x32x16_bf16 {v(ac,16)}, {v(f+8*k+4,4)}, {v(f+8*k,4)}, {v(ac,16)}")

    adv_s = f"""
    s_add_u32 s{sRw}, s{sRw}, 16384
    s_cmp_ge_u32 s{sRw}, {C_NSW*8192}
    s_cselect_b32 s{sRw}, 0, s{sRw}
    """
    adv_v = f"""
    v_add_u32 v{ca}, 0x4000, v{ca}
    v_add_u32 v{cw}, s{sRw}, v{rw}
    v_and_b32 v{ca}, 0xffff, v{ca}
    """
    assert A_AB == 0 and C_AB == 0 and A_WB == C_WB
    a.label("L_p_gemm")
    for r in range(16):
        a(f"v_mov_b32 v{ac+r}, 0")
    a(f"""
    s_mul_i32 s{sRw}, s{sPh}, {C_W0*8192}
    v_mov_b32 v{ca}, v{ra}
    v_add_u32 v{cw}, s{sRw}, v{rw}
    s_mov_b32 s{sI}, 0
    s_waitcnt lgkmcnt(0)
    s_barrier
    """)
    for k in range(4):
        rd(k)
    a(adv_s)
    a(f"""
    s_cmp_eq_u32 s{sPh}, 0
    s_cbranch_scc0 L_p_g0
    """)
    a(late_loads)
    a.label("L_p_g0")
    a("s_barrier")
    for k in range(4):
        if k in (0, 2):
            a("s_waitcnt lgkmcnt(6)")
        if k == 2:
            a("s_cbranch_scc0 L_p_g2")
        mf(k)
        if k < 2:
            rd(k, 1)
    a("s_branch L_p_g1")
    a.label("L_p_g2")
    a(f"""
    s_cmp_ge_u32 s{sCB}, 14
    s_cbranch_scc1 L_p_nosig3
    """)
    signal("", "", sDm, "L_p_sigB3", csa)
    a.label("L_p_nosig3")
    a.label("L_p_g1")
    rd(2, 1); rd(3, 1)
    a(adv_v)
    a.label("L_p_gloop")
    for odd in range(2):
        a("s_barrier")
        for k in range(4):
            if k in (0, 2):
                a("s_waitcnt lgkmcnt(6)")
            mf(k)
            rd(k, odd)
            if odd == 0 and k == 1: a(adv_s)
            if odd == 1 and k == 1:
                a(f"""
                s_add_u32 s{sI}, s{sI}, 1
                s_cmp_lt_u32 s{sI}, s{sN}
                """)
    a(adv_v)
    a("s_cbranch_scc1 L_p_gloop")
    for k in range(4):
        a(f"s_waitcnt lgkmcnt({9-3*k})")
        mf(k)
    a(f"""
    s_cmp_eq_u32 s{sPh}, 0
    s_cbranch_scc0 L_p_nb
    s_barrier
    ds_read_b32 v{cen}, v{cen+1}
    """)
    a.label("L_p_nb")
    u = f
    for r in range(8):
        a(f"v_lshlrev_b32 v{u+2*r}, 16, v{res+r}")
        a(f"v_and_b32 v{u+2*r+1}, 0xffff0000, v{res+r}")
    for r in range(0, 16, 2):
        a(f"v_pk_add_f32 {v(ac+r,2)}, {v(ac+r,2)}, {v(u+r,2)}")
    for r in range(8):
        a(f"v_cvt_pk_bf16_f32 v{res+r}, v{ac+2*r}, v{ac+2*r+1}")
    a(f"s_cbranch_scc0 L_p_final")
    stamp(a, 1 if DBG else 2)
    sm = f + 16
    a(f"""
    s_mov_b32 s{sT1}, 0x3f803f80
    v_mov_b32 v{sm}, 0
    v_mov_b32 v{sm+1}, 0
    s_waitcnt lgkmcnt(0)
    v_readfirstlane_b32 s{sFast}, v{cen}
    s_nop 3
    s_cmp_eq_u32 s{sFast}, 1
    s_cbranch_scc0 L_p_hs
    buffer_store_dwordx4 {v(res,4)}, v{l16}, s[{SWS}:{SWS+3}], s{sH} offen
    buffer_store_dwordx4 {v(res+4,4)}, v{l16}, s[{SWS}:{SWS+3}], s{sH} offen offset:1024
    s_branch L_p_hd
    """)
    a.label("L_p_hs")
    a(f"""
    buffer_store_dwordx4 {v(res,4)}, v{l16}, s[{SWS}:{SWS+3}], s{sH} offen sc1
    buffer_store_dwordx4 {v(res+4,4)}, v{l16}, s[{SWS}:{SWS+3}], s{sH} offen offset:1024 sc1
    """)
    a.label("L_p_hd")
    for j in range(6):
        for q in range(4):
            a(f"ds_read_b128 {v(acc[j]+4*q,4)}, v{csa} offset:{(j//3)*1024+(j%3)*128+(q>>1)*64+(q&1)*16}")
    for r in range(8):
        a(f"v_dot2_f32_bf16 v{sm}, v{res+r}, s{sT1}, v{sm}")
        a(f"v_dot2_f32_bf16 v{sm+1}, v{res+r}, v{res+r}, v{sm+1}")
    a(f"""
    s_lshl_b32 s{sT0}, s{sRb}, 1
    s_add_u32 s{sT0}, s{sT0}, s{sW2}
    s_lshl_b32 s{sT0}, s{sT0}, 3
    s_add_u32 s{sT0}, s{sT0}, s{sCg}
    s_lshr_b32 s{sT1}, s{sWave}, 1
    s_lshl_b32 s{sN}, s{sT0}, 1
    s_add_u32 s{sN}, s{sN}, s{sT1}
    s_lshl_b32 s{sN}, s{sN}, 2
    s_add_u32 s{sN}, s{sN}, {hex(FLA)}
    s_lshl_b32 s{sT0}, s{sT0}, 9
    s_lshl_b32 s{sT1}, s{sT1}, 3
    s_add_u32 s{sT0}, s{sT0}, s{sT1}
    s_add_u32 s{sT0}, s{sT0}, {hex(ST)}
    v_and_b32 v{t1}, 0x1ff, v{l16}
    v_mov_b32 v{sm+2}, v{sm}
    v_mov_b32 v{sm+3}, v{sm+1}
    s_nop 0
    v_permlane32_swap_b32 v{sm}, v{sm+2}
    v_permlane32_swap_b32 v{sm+1}, v{sm+3}
    s_nop 0
    v_add_f32 v{sm}, v{sm}, v{sm+2}
    v_add_f32 v{sm+1}, v{sm+1}, v{sm+3}
    v_mov_b32 v{t0}, 0
    v_mov_b32 v{sm+4}, 1
    """)

    signal(f"buffer_store_dwordx2 {v(sm,2)}, v{t1}, s[{SWS}:{SWS+3}], s{sT0} offen",
           f"buffer_store_dwordx2 {v(sm,2)}, v{t1}, s[{SWS}:{SWS+3}], s{sT0} offen sc1", sN, "L_p_sigA", sm + 4)
    if DBG: stamp(a, 3); a("s_waitcnt lgkmcnt(0)")
    a(f"""
    s_waitcnt lgkmcnt(0)
    s_barrier
    s_cmp_eq_u32 s{sCB}, 15
    s_cbranch_scc1 L_p_toC
    """)
    stt = z
    a(f"""
    s_lshl_b32 s{sT0}, s{sRB}, 2
    s_add_u32 s{sT0}, s{sT0}, s{sWave}
    s_lshl_b32 s{sN}, s{sT0}, 6
    s_add_u32 s{sN}, s{sN}, {hex(FLA)}
    s_lshl_b32 s{sDm}, s{sT0}, 12
    s_add_u32 s{sDm}, s{sDm}, {hex(ST)}
    v_lshrrev_b32 v{csa}, 5, v{lane}
    v_lshl_add_u32 v{csa}, v{csa}, 11, v{t1}
    s_mul_i32 s{sGo}, s{sT0}, 86
    s_mul_i32 s{sT1}, s{sCB}, 6
    s_add_u32 s{sGo}, s{sGo}, s{sT1}
    s_lshl_b32 s{sGo}, s{sGo}, 10
    s_add_u32 s{sGo}, s{sGo}, {hex(GF)}
    v_lshlrev_b32 v{ca}, 7, v{lane}
    v_min_u32 v{ca}, {47*128}, v{ca}
    s_lshl_b32 s{sT1}, s{sWave}, 11
    s_add_u32 s{sT1}, s{sT1}, {B_AB}
    v_add_u32 v{kc+3}, s{sT1}, v{l16}
    """)
    a(f"""
    s_lshr_b32 s{sT1}, s{sWave}, 1
    s_lshl_b32 s{sT1}, s{sT1}, 2
    s_add_u32 s{sT1}, s{sT1}, {LFLAG}
    v_mov_b32 v{cen+1}, s{sT1}
    """)
    a.label("L_p_lp")
    a(f"""
    ds_read_b32 v{cen}, v{cen+1}
    s_waitcnt lgkmcnt(0)
    v_cmp_eq_u32 vcc, 0, v{cen}
    s_cbranch_vccnz L_p_lp
    """)
    if DBG: stamp(a, 4)
    for i in range(4):
        a(f"buffer_load_dwordx4 {v(stt+4*i,4)}, v{csa}, s[{SWS}:{SWS+3}], s{sDm} offen offset:{i*512} sc1")
    a(f"""
    {f'buffer_load_dword v{cen}, v{ca}, s[{SWS}:{SWS+3}], s{sGo} offen' if GT == 1 else f'v_mov_b32 v{cen+1}, v{ca}'}
    s_lshl_b32 s{sDm}, s{sT0}, 6
    s_lshl_b32 s{sT1}, s{sCB}, 2
    s_add_u32 s{sDm}, s{sDm}, s{sT1}
    s_add_u32 s{sDm}, s{sDm}, {hex(FLB)}
    v_mov_b32 v{ca}, v{kc+3}
    v_add_u32 v{cw}, {B_WB}, v{trb}
    v_add_u32 v{cen}, {B_WB+5*12288}, v{trb}
    s_mov_b32 s{sI}, 0
    s_waitcnt vmcnt({1 if GT == 1 else 0})
    """)
    for i in range(0, 8, 2):
        a(f"v_pk_add_f32 {v(stt+i,2)}, {v(stt+i,2)}, {v(stt+8+i,2)}")
    a(f"""
    v_pk_add_f32 {v(stt,2)}, {v(stt,2)}, {v(stt+4,2)}
    v_pk_add_f32 {v(stt+2,2)}, {v(stt+2,2)}, {v(stt+6,2)}
    s_nop 0
    v_pk_add_f32 {v(stt,2)}, {v(stt,2)}, {v(stt+2,2)}
    s_nop 0
    v_mov_b32 v{stt+2}, v{stt}
    v_mov_b32 v{stt+3}, v{stt+1}
    s_nop 0
    v_permlane32_swap_b32 v{stt}, v{stt+2}
    v_permlane32_swap_b32 v{stt+1}, v{stt+3}
    s_nop 0
    v_add_f32 v{stt}, v{stt}, v{stt+2}
    v_add_f32 v{stt+1}, v{stt+1}, v{stt+3}
    v_mul_f32 v{stt+4}, {hexf(-1.0/512)}, v{stt}
    v_mul_f32 v{stt+1}, {hexf(1.0/512)}, v{stt+1}
    s_barrier
    """)

    def rd_a(ks, dst):
        a(f"ds_read_b128 {v(dst,4)}, v{ca} offset:{((ks>>1)%B_NSA)*8192+(ks&1)*1024}")

    def rd_w(ks, j):
        sl = ((ks >> 1) + B_W0) % B_NSW
        reg, off = (cw, sl * 12288) if sl < 5 else (cen, (sl - 5) * 12288)
        for jj in range(2):
            a(f"ds_read_b64_tr_b16 {v(wf+4*j+2*jj,2)}, v{reg} offset:{off+(ks&1)*6144+j*1024+jj*256}")

    def kstep(ks):
        reads = ks < 31
        for j in range(6):
            if j % 2 == 0:
                a(f"s_waitcnt lgkmcnt({(8 if j == 0 else 9) if reads else 8-2*j})")
            a(f"v_mfma_f32_32x32x16_bf16 {v(acc[j],16)}, {v(wf+4*j,4)}, {v(an[ks&1],4)}, {v(acc[j],16)}")
            if reads:
                if j == 0:
                    rd_a(ks + 1, an[1 - (ks & 1)])
                rd_w(ks + 1, j)
            elif j == 4:
                a("s_barrier")
        if (ks & 1) == 0 and ks < 30:
            a("s_barrier")

    if not DBG: stamp(a, 3)
    if STAMP: a("s_waitcnt lgkmcnt(0)")
    rd_a(0, an[0])
    for j in range(6):
        rd_w(0, j)
    for r in range(0, 96, 2):
        a(f"v_pk_mul_f32 {v(acc[0]+r,2)}, {v(acc[0]+r,2)}, {v(stt+4,2)} op_sel_hi:[1,0]")
    c0 = -2.0 * math.sqrt(2.0 / math.pi) * math.log2(math.e)
    c1 = c0 * 0.044715
    a(f"""
    v_fma_f32 v{t1}, -v{stt+4}, v{stt+4}, v{stt+1}
    v_max_f32 v{t1}, 0, v{t1}
    v_add_f32 v{kc+2}, {hexf(EPS)}, v{t1}
    v_rsq_f32 v{csa}, v{kc+2}
    s_nop 0
    v_mul_f32 v{t1}, v{csa}, v{csa}
    v_mul_f32 v{kc+1}, {hexf(c0)}, v{csa}
    v_mul_f32 v{t1}, v{t1}, v{csa}
    v_mul_f32 v{kc}, {hexf(c1)}, v{t1}
    """)
    for ks in range(32):
        kstep(ks)
    if not DBG: stamp(a, 1 if DBG2 else 4)
    a("s_nop 7")
    sm = an[0] - 4
    for j in range(3):
        o = wf + 8 * j
        g = acc[j]; uu = acc[3 + j]
        for r in range(0, 16, 2):
            a(f"v_pk_mul_f32 {v(z+r,2)}, {v(g+r,2)}, {v(g+r,2)}")
        for r in range(0, 16, 2):
            a(f"v_pk_fma_f32 {v(z+r,2)}, {v(z+r,2)}, {v(kc,2)}, {v(kc,2)} op_sel:[0,0,1] op_sel_hi:[1,0,1]")
        for r in range(0, 16, 2):
            a(f"v_pk_mul_f32 {v(z+r,2)}, {v(z+r,2)}, {v(g+r,2)}")
        for r in range(16):
            a(f"v_exp_f32 v{z+r}, v{z+r}")
        if j > 0:
            a(f"v_mov_b32 v{csa}, {j}")
            if DBG2 and j == 1: stamp(a, 2)
            signal("", "", sDm, f"L_p_sigB{j}", csa)
            if DBG2 and j == 1: stamp(a, 3)
        for r in range(0, 16, 2):
            a(f"v_pk_mul_f32 {v(g+r,2)}, {v(g+r,2)}, {v(uu+r,2)}")
        for r in range(0, 16, 2):
            a(f"v_pk_fma_f32 {v(z+r,2)}, {v(z+r,2)}, {v(kc+2,2)}, {v(kc+2,2)} op_sel_hi:[1,0,0]")
        for r in range(16):
            a(f"v_rcp_f32 v{z+r}, v{z+r}")
        a(f"s_cmp_eq_u32 s{sFast}, 1")
        for r in range(0, 16, 2):
            a(f"v_pk_mul_f32 {v(g+r,2)}, {v(g+r,2)}, {v(z+r,2)}")
        for r in range(8):
            a(f"v_cvt_pk_bf16_f32 v{o+r}, v{g+2*r}, v{g+2*r+1}")
        a(f"""
        s_cbranch_scc0 L_p_gs{j}
        buffer_store_dwordx4 {v(o,4)}, v{l16}, s[{SWS}:{SWS+3}], s{sGo} offen
        buffer_store_dwordx4 {v(o+4,4)}, v{l16}, s[{SWS}:{SWS+3}], s{sGo} offen offset:1024
        s_branch L_p_gd{j}
        """)
        a.label(f"L_p_gs{j}")
        a(f"""
        buffer_store_dwordx4 {v(o,4)}, v{l16}, s[{SWS}:{SWS+3}], s{sGo} offen sc1
        buffer_store_dwordx4 {v(o+4,4)}, v{l16}, s[{SWS}:{SWS+3}], s{sGo} offen offset:1024 sc1
        """)
        a.label(f"L_p_gd{j}")
        if j == 0:
            a(f"""
            s_cmp_eq_u32 s{sCB}, 14
            s_cbranch_scc1 L_p_b14
            """)
        if j < 2:
            a(f"s_add_u32 s{sGo}, s{sGo}, 2048")
    a(f"v_mov_b32 v{csa}, 3")
    a.label("L_p_toC")
    if DBG2: stamp(a, 4)
    a(f"""
    s_mov_b32 s{sPh}, 1
    s_mov_b32 s{sN}, 10
    s_branch L_p_gemm
    """)
    a.label("L_p_b14")
    a(f"v_mov_b32 v{csa}, 3")
    signal("", "", sDm, "L_p_sigB14", csa)
    a("s_branch L_p_toC")
    a.label("L_p_final")
    a(f"""
    buffer_store_dwordx4 {v(res,4)}, v{rm}, s[{SR}:{SR+3}], 0 offen
    buffer_store_dwordx4 {v(res+4,4)}, v{rm}, s[{SR}:{SR+3}], 0 offen offset:32
    """)
    a.pads_end(4)
    stamp_flush(a, 2, 8, sWave, 4)
    a.label("L_p_end")
    a("s_endpgm")
    return name, V.hi, 256, 512, 163840
```
